```python
import torch

def _softmax(x, axis=-1):
    return torch.softmax(x, dim=axis)
def _gelu(x):
    return torch.nn.functional.gelu(x, approximate="tanh")
def _silu(x):
    return torch.nn.functional.silu(x)
def _sigmoid(x):
    return torch.sigmoid(x)
def _layernorm(x, axis=-1, eps=1e-5):
    m = x.mean(dim=axis, keepdim=True)
    v = x.var(dim=axis, keepdim=True, unbiased=False)
    return (x - m) / torch.sqrt(v + eps)
def _scatter_add(tgt, idx, src, axis=0):
    return tgt.clone().index_add_(axis, idx, src)
def _segment_sum(src, seg, n):
    out = torch.zeros((n,) + src.shape[1:], dtype=src.dtype)
    return out.index_add_(0, seg, src)
def _pad(x, pw):
    flat = tuple(v for pair in reversed(pw) for v in pair)
    return torch.nn.functional.pad(x, flat)

kernel_name = 'concat_heads__sliding_block_cached__compressed_kv_cla__decode'

def setup_inputs():

    _w = (lambda a: (lambda t: t.to(torch.bfloat16) if t.is_floating_point() else t)(torch.as_tensor(a)))
    def _A_setup():
        B, Sq, D = 2, 1, 512
        Hq, Hkv, Sk, Dh = 32, 8, 8192, 128
        assert Hq % Hkv == 0, (Hq, Hkv)
        return {
            "x": _w((lambda *s: torch.randn(*s, dtype=torch.bfloat16) * 1.6)(B, Sq, D)),
            "k_cache": _w((lambda *s: torch.randn(*s, dtype=torch.bfloat16) * 1.6)(B, Hkv, Sk, Dh)),
            "v_cache": _w((lambda *s: torch.randn(*s, dtype=torch.bfloat16) * 0.05)(B, Hkv, Sk, Dh)),
            "wq": _w((lambda *s: torch.randn(*s, dtype=torch.bfloat16) * 1.6)(D, Hq * Dh) * (D ** -0.5)),
            "wo": _w((lambda *s: torch.randn(*s, dtype=torch.bfloat16) * 0.05)(Hq * Dh, D) * ((Hq * Dh) ** -0.5)),
        }
    _A_in = _A_setup()

    def _B_setup():
        B, H, Sq, Sk, D, M = 2, 32, 1, 8192, 128, 512
        Dc = 4 * D
        return {
            "x": _w((lambda *s: torch.randn(*s, dtype=torch.bfloat16) * 3.2)(B, Sq, M)),
            "c_kv": _w((lambda *s: torch.randn(*s, dtype=torch.bfloat16) * 0.1)(B, Sk, Dc)),
            "w_q": _w((lambda *s: torch.randn(*s, dtype=torch.bfloat16) * 6.4)(M, H, D) * (M ** -0.5)),
            "w_uk": _w((lambda *s: torch.randn(*s, dtype=torch.bfloat16) * 6.4)(Dc, H, D) * (Dc ** -0.5)),
            "w_uv": _w((lambda *s: torch.randn(*s, dtype=torch.bfloat16) * 0.1)(Dc, H, D) * (Dc ** -0.5)),
            "w_o": _w((lambda *s: torch.randn(*s, dtype=torch.bfloat16) * 0.1)(H, D, M) * ((H * D) ** -0.5)),
        }
    _B_in = _B_setup()

    return {
        "A_x": _A_in["x"],
        "A_k_cache": _A_in["k_cache"],
        "A_v_cache": _A_in["v_cache"],
        "A_wq": _A_in["wq"],
        "A_wo": _A_in["wo"],
        "B_x": _B_in["x"],
        "B_c_kv": _B_in["c_kv"],
        "B_w_q": _B_in["w_q"],
        "B_w_uk": _B_in["w_uk"],
        "B_w_uv": _B_in["w_uv"],
        "B_w_o": _B_in["w_o"],
    }

def reference(A_x, A_k_cache, A_v_cache, A_wq, A_wo, B_x, B_c_kv, B_w_q, B_w_uk, B_w_uv, B_w_o):
    def _A_ref(x, k_cache, v_cache, wq, wo):
        B, Sq, D = x.shape
        Hq, Dh = 32, 128
        Hkv, Sk = k_cache.shape[1], k_cache.shape[2]
        W = min(4096, max(256, Sk // 4))
        rep = Hq // Hkv
        q = (lambda x, *d: x.permute(*d))((x @ wq).reshape(B, Sq, Hq, Dh), 0, 2, 1, 3)
        k = (lambda x, n, axis: torch.repeat_interleave(x, n, dim=axis))(k_cache[:, :, Sk - W:, :], rep, axis=1)
        v = (lambda x, n, axis: torch.repeat_interleave(x, n, dim=axis))(v_cache[:, :, Sk - W:, :], rep, axis=1)
        scores = torch.einsum("bhqd,bhkd->bhqk", q, k) * (Dh ** -0.5)
        p = _softmax(scores, axis=-1)
        o = torch.einsum("bhqk,bhkd->bhqd", p, v)
        return (lambda x, *d: x.permute(*d))(o, 0, 2, 1, 3).reshape(B, Sq, Hq * Dh) @ wo

    def _B_ref(x, c_kv, w_q, w_uk, w_uv, w_o):
        B, Sq, M = x.shape[0], x.shape[1], x.shape[2]
        Sk = c_kv.shape[1]
        H, D = w_q.shape[1], w_q.shape[2]
        q = torch.einsum("bqm,mhd->bhqd", x, w_q)
        k = torch.einsum("bkc,chd->bhkd", c_kv, w_uk)
        v = torch.einsum("bkc,chd->bhkd", c_kv, w_uv)
        scores = torch.einsum("bhqd,bhkd->bhqk", q, k) * (D ** -0.5)
        off = Sk - Sq
        qi = torch.arange(Sq)[:, None]
        kj = torch.arange(Sk)[None, :]
        cmask = kj <= (qi + off)
        scores = torch.where(cmask[None, None], scores, -1e9)
        p = _softmax(scores, axis=-1)
        ctx = torch.einsum("bhqk,bhkd->bhqd", p, v)
        return torch.einsum("bhqd,hdm->bqm", ctx, w_o)

    a = _A_ref(A_x, A_k_cache, A_v_cache, A_wq, A_wo)
    b = _B_ref(B_x, B_c_kv, B_w_q, B_w_uk, B_w_uv, B_w_o)
    return torch.concatenate([a, b], axis=-1)
```

```python
import sys

NAME = "concat_heads__sliding_block_cached__compressed_kv_cla__decode"

WS_QA    = 0x0
WS_QABS  = 0x10000
WS_APART = 0x100000
WS_ASTAT = 0x200000
WS_BSTAT = 0x210000
WS_BPART = 0x400000
WS_OUTP  = 0x1000000

KA = dict(A_x=0, A_k=8, A_v=16, A_wq=24, A_wo=32, B_x=40, B_ckv=48, B_wq=56, B_wuk=64,
          B_wuv=72, B_wo=80, out=88, dbg=96, ws=104)

LOG2E = 0x3fb8aa3b
SCALE = 0x3db504f3
HIMASK = 0xffff0000
STG = 288


class Asm:
    def __init__(self):
        self.lines = []

    def __call__(self, s):
        for ln in s.split("\n"):
            self.lines.append("    " + ln.strip())

    def label(self, s):
        self.lines.append(s + ":")

    def raw(self, s):
        self.lines.append(s)

    def text(self):
        return "\n".join(self.lines) + "\n"


def vr(base, n=4):
    return f"v[{base}:{base + n - 1}]"


def unpack8(a, src, dst):
    for p in range(4):
        a(f"v_lshlrev_b32 v{dst + 2 * p}, 16, v{src + p}")
        a(f"v_and_b32 v{dst + 2 * p + 1}, 0x{HIMASK:x}, v{src + p}")


def unpack1(a, src_reg, idx, dst):
    r = src_reg + (idx >> 1)
    if idx & 1:
        a(f"v_and_b32 v{dst}, 0x{HIMASK:x}, v{r}")
    else:
        a(f"v_lshlrev_b32 v{dst}, 16, v{r}")


def bf16_round_pair(a, x0, x1, tmp):
    a(f"v_cvt_pk_bf16_f32 v{tmp}, v{x0}, v{x1}")
    a(f"v_lshlrev_b32 v{x0}, 16, v{tmp}")
    a(f"v_and_b32 v{x1}, 0x{HIMASK:x}, v{tmp}")


def bperm_reduce(a, op, val, addr_regs, tmp):
    for ar in addr_regs:
        a(f"ds_bpermute_b32 v{tmp}, v{ar}, v{val}")
        a("s_waitcnt lgkmcnt(0)")
        a(f"{op} v{val}, v{val}, v{tmp}")


def make_xor_addrs(a, lane, masks, dst0):
    for i, m in enumerate(masks):
        a(f"v_xor_b32 v{dst0 + i}, {m}, v{lane}")
        a(f"v_lshlrev_b32 v{dst0 + i}, 2, v{dst0 + i}")


def kernel_header(a, name):
    a.raw(f".globl {name}")
    a.raw(".p2align 8")
    a.raw(f".type {name},@function")
    a.label(name)


def descriptor(name, vgpr, sgpr=48):
    acc = (vgpr + 3) // 4 * 4
    return f""".amdhsa_kernel {name}
  .amdhsa_next_free_vgpr {vgpr}
  .amdhsa_next_free_sgpr {sgpr}
  .amdhsa_accum_offset {acc}
  .amdhsa_group_segment_fixed_size 0
  .amdhsa_kernarg_size 112
  .amdhsa_user_sgpr_count 2
  .amdhsa_user_sgpr_kernarg_segment_ptr 1
  .amdhsa_system_sgpr_workgroup_id_x 1
.end_amdhsa_kernel
"""


def gen_k1(a):
    kernel_header(a, "k1q_kernel")
    a("s_cmp_ge_u32 s2, 192")
    a("s_cbranch_scc1 K1_END")
    a(f"s_load_dwordx2 s[4:5], s[0:1], {KA['ws']}")
    a("s_cmp_ge_u32 s2, 128")
    a("s_cbranch_scc1 K1_A")
    a(f"s_load_dwordx2 s[6:7], s[0:1], {KA['B_x']}")
    a(f"s_load_dwordx2 s[8:9], s[0:1], {KA['B_wq']}")
    a(f"s_load_dwordx2 s[10:11], s[0:1], {KA['B_wuk']}")
    a("s_and_b32 s12, s2, 31")
    a("s_lshr_b32 s13, s2, 5")
    a("s_lshl_b32 s14, s12, 8")
    a("v_lshrrev_b32 v1, 4, v0")
    a("v_and_b32 v2, 15, v0")
    a("v_lshlrev_b32 v3, 18, v1")
    a("v_lshlrev_b32 v4, 4, v2")
    a("v_add3_u32 v3, v3, v4, s14")
    a("v_lshlrev_b32 v5, 6, v1")
    a("v_and_b32 v6, 63, v0")
    a("v_lshrrev_b32 v7, 6, v0")
    a("v_and_b32 v8, 15, v6")
    a("v_lshrrev_b32 v9, 4, v6")
    a("s_lshl_b32 s15, s13, 7")
    a("v_lshlrev_b32 v10, 5, v7")
    a("v_add3_u32 v10, v10, v8, s15")
    a("v_lshlrev_b32 v10, 13, v10")
    a("v_lshlrev_b32 v11, 4, v9")
    a("v_add3_u32 v10, v10, v11, s14")
    a("v_add_u32 v11, 0x20000, v10")
    a("s_waitcnt lgkmcnt(0)")
    XB = [192, 208]
    for b in range(2):
        for k in range(4):
            a(f"global_load_dwordx4 {vr(XB[b] + 4 * k)}, v5, s[6:7] offset:{b * 1024 + k * 16}")
    W0 = 64
    for i in range(32):
        a(f"global_load_dwordx4 {vr(W0 + 4 * i)}, v3, s[8:9]")
        a("v_add_u32 v3, 0x2000, v3")
    UK = 224
    for mt in range(2):
        for t in range(4):
            a(f"global_load_dwordx4 {vr(UK + (mt * 4 + t) * 4)}, v{10 + mt}, s[10:11] offset:{t * 64}")
    for r in range(16, 32):
        a(f"v_mov_b32 v{r}, 0")
    for i in range(32):
        a(f"s_waitcnt vmcnt({39 - i})")
        unpack8(a, W0 + 4 * i, 32)
        unpack1(a, XB[0], i, 40)
        unpack1(a, XB[1], i, 41)
        for e in range(8):
            a(f"v_fmac_f32 v{16 + e}, v{32 + e}, v40")
            a(f"v_fmac_f32 v{24 + e}, v{32 + e}, v41")
    a("v_lshlrev_b32 v12, 10, v1")
    a("v_lshlrev_b32 v13, 5, v2")
    a("v_add_u32 v12, v12, v13")
    a(f"ds_write_b128 v12, {vr(16)}")
    a(f"ds_write_b128 v12, {vr(20)} offset:16")
    a(f"ds_write_b128 v12, {vr(24)} offset:512")
    a(f"ds_write_b128 v12, {vr(28)} offset:528")
    a("s_waitcnt lgkmcnt(0)")
    a("s_barrier")
    a("v_lshlrev_b32 v12, 2, v0")
    for rg in range(16):
        a(f"ds_read_b32 v{32 + rg}, v12 offset:{rg * 1024}")
    a("s_waitcnt lgkmcnt(0)")
    for rg in range(1, 16):
        a(f"v_add_f32 v32, v32, v{32 + rg}")
    a("v_cvt_pk_bf16_f32 v33, v32, v32")
    a("v_lshlrev_b32 v13, 1, v0")
    a("ds_write_b16 v13, v33 offset:16384")
    QF = 64
    for r in range(QF, QF + 16):
        a(f"v_mov_b32 v{r}, 0")
    a("s_waitcnt lgkmcnt(0)")
    a("s_barrier")
    a("v_cmp_gt_u32 vcc, 2, v8")
    a("v_lshlrev_b32 v12, 8, v8")
    a("v_lshlrev_b32 v13, 4, v9")
    a("v_add_u32 v12, v12, v13")
    a("s_nop 1")
    a("s_and_saveexec_b64 s[16:17], vcc")
    for t in range(4):
        a(f"ds_read_b128 {vr(QF + 4 * t)}, v12 offset:{16384 + t * 64}")
    a("s_mov_b64 exec, s[16:17]")
    a("s_waitcnt vmcnt(0) lgkmcnt(0)")
    D0 = 96
    for mt in range(2):
        for t in range(4):
            c = "0" if t == 0 else vr(D0 + 4 * mt)
            a(f"v_mfma_f32_16x16x32_bf16 {vr(D0 + 4 * mt)}, {vr(UK + (mt * 4 + t) * 4)}, {vr(QF + 4 * t)}, {c}")
    a("s_nop 7")
    a("s_nop 7")
    for mt in range(2):
        a(f"v_cvt_pk_bf16_f32 v{104 + 2 * mt}, v{D0 + 4 * mt}, v{D0 + 4 * mt + 1}")
        a(f"v_cvt_pk_bf16_f32 v{105 + 2 * mt}, v{D0 + 4 * mt + 2}, v{D0 + 4 * mt + 3}")
    a("v_lshlrev_b32 v12, 15, v8")
    a("v_lshlrev_b32 v13, 6, v7")
    a("v_lshlrev_b32 v14, 3, v9")
    a("v_add3_u32 v12, v12, v13, v14")
    a("s_lshl_b32 s18, s12, 10")
    a("s_lshl_b32 s19, s13, 8")
    a("s_add_u32 s18, s18, s19")
    a(f"s_add_u32 s18, s18, 0x{WS_QABS:x}")
    a("v_add_u32 v12, s18, v12")
    a("s_and_saveexec_b64 s[16:17], vcc")
    a("global_store_dwordx2 v12, v[104:105], s[4:5]")
    a("global_store_dwordx2 v12, v[106:107], s[4:5] offset:32")
    a("s_mov_b64 exec, s[16:17]")
    a("s_branch K1_END")
    a.label("K1_A")
    a(f"s_load_dwordx2 s[6:7], s[0:1], {KA['A_x']}")
    a(f"s_load_dwordx2 s[8:9], s[0:1], {KA['A_wq']}")
    a("s_sub_u32 s12, s2, 128")
    a("s_lshl_b32 s14, s12, 7")
    a("v_lshrrev_b32 v1, 3, v0")
    a("v_and_b32 v2, 7, v0")
    a("v_lshlrev_b32 v3, 17, v1")
    a("v_lshlrev_b32 v4, 4, v2")
    a("v_add3_u32 v3, v3, v4, s14")
    a("v_lshlrev_b32 v5, 5, v1")
    a("s_waitcnt lgkmcnt(0)")
    XA = [160, 168]
    for b in range(2):
        for k in range(2):
            a(f"global_load_dwordx4 {vr(XA[b] + 4 * k)}, v5, s[6:7] offset:{b * 1024 + k * 16}")
    for i in range(16):
        a(f"global_load_dwordx4 {vr(W0 + 4 * i)}, v3, s[8:9]")
        a("v_add_u32 v3, 0x2000, v3")
    for r in range(16, 32):
        a(f"v_mov_b32 v{r}, 0")
    for i in range(16):
        a(f"s_waitcnt vmcnt({15 - i})")
        unpack8(a, W0 + 4 * i, 32)
        unpack1(a, XA[0], i, 40)
        unpack1(a, XA[1], i, 41)
        for e in range(8):
            a(f"v_fmac_f32 v{16 + e}, v{32 + e}, v40")
            a(f"v_fmac_f32 v{24 + e}, v{32 + e}, v41")
    a("v_lshlrev_b32 v12, 9, v1")
    a("v_lshlrev_b32 v13, 5, v2")
    a("v_add_u32 v12, v12, v13")
    a(f"ds_write_b128 v12, {vr(16)}")
    a(f"ds_write_b128 v12, {vr(20)} offset:16")
    a(f"ds_write_b128 v12, {vr(24)} offset:256")
    a(f"ds_write_b128 v12, {vr(28)} offset:272")
    a("s_waitcnt lgkmcnt(0)")
    a("s_barrier")
    a("v_cmp_gt_u32 vcc, 128, v0")
    a("v_lshlrev_b32 v12, 2, v0")
    a("s_nop 1")
    a("s_and_saveexec_b64 s[16:17], vcc")
    a("s_cbranch_execz K1_A_SKIP")
    for rg in range(32):
        a(f"ds_read_b32 v{64 + rg}, v12 offset:{rg * 512}")
    a("s_waitcnt lgkmcnt(0)")
    for rg in range(1, 32):
        a(f"v_add_f32 v64, v64, v{64 + rg}")
    a("v_cvt_pk_bf16_f32 v65, v64, v64")
    a("v_lshrrev_b32 v13, 6, v0")
    a("v_lshlrev_b32 v13, 13, v13")
    a("v_and_b32 v14, 63, v0")
    a("v_lshlrev_b32 v14, 1, v14")
    a("v_add3_u32 v13, v13, v14, s14")
    a(f"global_store_short v13, v65, s[4:5] offset:{WS_QA}")
    a.label("K1_A_SKIP")
    a("s_mov_b64 exec, s[16:17]")
    a.label("K1_END")
    a("s_endpgm")


L_PB = 0
L_MX = L_PB + 8192
L_LB = L_MX + 2048
L_STG = L_LB + 2048
L_SX = L_STG + 4 * 9216
K2_LDS = L_SX + 65536


def score_round16(a, regs, tmp):
    for i in range(0, len(regs), 2):
        x0, x1 = regs[i], regs[i + 1]
        bf16_round_pair(a, x0, x1, tmp)
        a(f"v_mul_f32 v{x0}, s20, v{x0}")
        a(f"v_mul_f32 v{x1}, s20, v{x1}")
        bf16_round_pair(a, x0, x1, tmp)


def exp_inplace(a, regs, mreg, tmp):
    for r in regs:
        a(f"v_sub_f32 v{r}, v{r}, v{mreg}")
        a(f"v_mul_f32 v{r}, s21, v{r}")
        a(f"v_exp_f32 v{r}, v{r}")
    a("s_nop 1")


def gen_k2(a):
    kernel_header(a, "k2att_kernel")
    a("s_cmp_ge_u32 s2, 256")
    a("s_cbranch_scc1 K2_END")
    a(f"s_load_dwordx2 s[4:5], s[0:1], {KA['ws']}")
    a(f"s_mov_b32 s20, 0x{SCALE:x}")
    a(f"s_mov_b32 s21, 0x{LOG2E:x}")
    a("v_and_b32 v6, 63, v0")
    a("v_lshrrev_b32 v7, 6, v0")
    a("s_nop 0")
    a("v_readfirstlane_b32 s22, v7")
    a("v_and_b32 v8, 15, v6")
    a("v_lshrrev_b32 v9, 4, v6")
    a("s_cmp_ge_u32 s2, 128")
    a("s_cbranch_scc1 K2_A")
    a(f"s_load_dwordx2 s[6:7], s[0:1], {KA['B_ckv']}")
    a("s_lshr_b32 s23, s2, 6")
    a("s_and_b32 s24, s2, 63")
    a("s_waitcnt lgkmcnt(0)")
    a("s_lshl_b32 s25, s2, 17")
    a("s_lshl_b32 s26, s22, 8")
    a("s_add_u32 s25, s25, s26")
    a("s_add_u32 s6, s6, s25")
    a("s_addc_u32 s7, s7, 0")
    a("s_lshl_b32 s25, s23, 15")
    a("s_lshl_b32 s26, s22, 8")
    a("s_add_u32 s25, s25, s26")
    a(f"s_add_u32 s25, s25, 0x{WS_QABS:x}")
    a("v_lshlrev_b32 v10, 10, v8")
    a("v_lshlrev_b32 v11, 4, v9")
    a("v_add_u32 v10, v10, v11")
    a("v_add_u32 v11, s25, v10")
    a("v_add_u32 v12, 0x4000, v11")
    QB = 128 + 64
    for nt in range(2):
        for t in range(4):
            a(f"global_load_dwordx4 {vr(QB + (nt * 4 + t) * 4)}, v{11 + nt}, s[4:5] offset:{t * 64}")
    DB = 64
    a("v_mov_b32 v13, v10")
    for mt in range(8):
        for t in range(4):
            a(f"global_load_dwordx4 {vr(DB + (mt * 4 + t) * 4)}, v13, s[6:7] offset:{t * 64}")
        if mt < 7:
            a("v_add_u32 v13, 0x4000, v13")
    SA = 224 - 64 - 64 + 64 - 64 + 0
    SREG = {}
    idx = 0
    pool = list(range(224, 256, 4)) + list(range(32, 64, 4))
    for mt in range(8):
        for nt in range(2):
            SREG[(mt, nt)] = pool[idx]
            idx += 1
    a(f"s_mul_i32 s26, s22, 9216")
    a(f"s_add_u32 s26, s26, {L_STG}")
    a(f"v_mul_u32_u24 v14, {STG}, v8")
    a("v_lshlrev_b32 v15, 4, v9")
    a("v_add3_u32 v14, v14, v15, s26")
    a("v_lshrrev_b32 v15, 2, v8")
    a("v_lshl_add_u32 v15, v9, 2, v15")
    a(f"v_mul_u32_u24 v15, {STG}, v15")
    a("v_and_b32 v16, 3, v6")
    a("v_lshlrev_b32 v16, 3, v16")
    a("v_add3_u32 v15, v15, v16, s26")
    for kb in range(4):
        a(f"s_waitcnt vmcnt({8 * (3 - kb)})")
        for t in range(4):
            for mt2 in range(2):
                mt = 2 * kb + mt2
                for nt in range(2):
                    s = SREG[(mt, nt)]
                    c = "0" if t == 0 else vr(s)
                    a(f"v_mfma_f32_16x16x32_bf16 {vr(s)}, {vr(DB + (mt * 4 + t) * 4)}, {vr(QB + (nt * 4 + t) * 4)}, {c}")
        for mt2 in range(2):
            mt = 2 * kb + mt2
            for t in range(4):
                a(f"ds_write_b128 v14, {vr(DB + (mt * 4 + t) * 4)} offset:{mt2 * 16 * STG + t * 64}")
        a("s_waitcnt lgkmcnt(0)")
        for ct in range(8):
            for hf in range(2):
                a(f"ds_read_b64_tr_b16 {vr(DB + kb * 32 + ct * 4 + hf * 2, 2)}, v15 offset:{hf * 16 * STG + ct * 32}")
        a("s_waitcnt lgkmcnt(0)")
    a("s_lshl_b32 s26, s22, 14")
    a(f"s_add_u32 s26, s26, {L_SX}")
    a("v_lshlrev_b32 v16, 4, v6")
    a("v_add_u32 v17, s26, v16")
    for mt in range(8):
        for nt in range(2):
            a(f"ds_write_b128 v17, {vr(SREG[(mt, nt)])} offset:{(mt * 2 + nt) * 1024}")
    a("s_waitcnt lgkmcnt(0)")
    a("s_barrier")
    a("s_lshl_b32 s26, s22, 12")
    a(f"s_add_u32 s26, s26, {L_SX}")
    a("v_add_u32 v17, s26, v16")
    T0 = 224
    tq = pool
    for w2 in range(4):
        for mt2 in range(2):
            for nt in range(2):
                a(f"ds_read_b128 {vr(tq[w2 * 4 + mt2 * 2 + nt])}, v17 offset:{w2 * 16384 + (mt2 * 2 + nt) * 1024}")
    a("s_waitcnt lgkmcnt(0)")
    for k in range(4):
        for r in range(4):
            for w2 in range(1, 4):
                a(f"v_add_f32 v{tq[k] + r}, v{tq[k] + r}, v{tq[w2 * 4 + k] + r}")
    allS = [tq[k] + r for k in range(4) for r in range(4)]
    score_round16(a, allS, 18)
    for nt in range(2):
        rs = [tq[nt] + r for r in range(4)] + [tq[2 + nt] + r for r in range(4)]
        a(f"v_max3_f32 v{20 + nt}, v{rs[0]}, v{rs[1]}, v{rs[2]}")
        a(f"v_max3_f32 v{20 + nt}, v{20 + nt}, v{rs[3]}, v{rs[4]}")
        a(f"v_max3_f32 v{20 + nt}, v{20 + nt}, v{rs[5]}, v{rs[6]}")
        a(f"v_max_f32 v{20 + nt}, v{20 + nt}, v{rs[7]}")
    a("v_lshlrev_b32 v18, 6, v8")
    a("v_lshlrev_b32 v19, 2, v9")
    a("s_lshl_b32 s26, s22, 4")
    a("v_add3_u32 v19, v18, v19, s26")
    a(f"ds_write_b32 v19, v20 offset:{L_MX}")
    a(f"ds_write_b32 v19, v21 offset:{L_MX + 1024}")
    a("s_waitcnt lgkmcnt(0)")
    a("s_barrier")
    for nt in range(2):
        for k in range(4):
            a(f"ds_read_b128 {vr(tq[4 + nt * 4 + k])}, v18 offset:{L_MX + nt * 1024 + k * 16}")
    a("s_waitcnt lgkmcnt(0)")
    for nt in range(2):
        rs = [tq[4 + nt * 4 + k] + r for k in range(4) for r in range(4)]
        a(f"v_max3_f32 v{20 + nt}, v{rs[0]}, v{rs[1]}, v{rs[2]}")
        for i in range(3, 15, 2):
            a(f"v_max3_f32 v{20 + nt}, v{20 + nt}, v{rs[i]}, v{rs[i + 1]}")
        a(f"v_max_f32 v{20 + nt}, v{20 + nt}, v{rs[15]}")
    for nt in range(2):
        rs = [tq[nt] + r for r in range(4)] + [tq[2 + nt] + r for r in range(4)]
        exp_inplace(a, rs, 20 + nt, 0)
        a(f"v_add_f32 v{22 + nt}, v{rs[0]}, v{rs[1]}")
        for r in rs[2:]:
            a(f"v_add_f32 v{22 + nt}, v{22 + nt}, v{r}")
    a(f"ds_write_b32 v19, v22 offset:{L_LB}")
    a(f"ds_write_b32 v19, v23 offset:{L_LB + 1024}")
    for nt in range(2):
        for mt2 in range(2):
            s = tq[mt2 * 2 + nt]
            a(f"v_cvt_pk_bf16_f32 v{24 + nt * 4 + mt2 * 2}, v{s}, v{s + 1}")
            a(f"v_cvt_pk_bf16_f32 v{25 + nt * 4 + mt2 * 2}, v{s + 2}, v{s + 3}")
    a("s_lshl_b32 s26, s22, 11")
    a("v_add_u32 v17, s26, v16")
    a(f"ds_write_b128 v17, {vr(24)} offset:{L_PB}")
    a(f"ds_write_b128 v17, {vr(28)} offset:{L_PB + 1024}")
    a("s_waitcnt lgkmcnt(0)")
    a("s_barrier")
    PF = 192
    for kb in range(4):
        for nt in range(2):
            a(f"ds_read_b128 {vr(PF + (kb * 2 + nt) * 4)}, v16 offset:{L_PB + (kb * 2 + nt) * 1024}")
    a("s_cmp_lg_u32 s22, 0")
    a("s_cbranch_scc1 K2B_NOSTAT")
    a("v_cmp_gt_u32 vcc, 16, v6")
    a("s_nop 1")
    a("s_and_saveexec_b64 s[16:17], vcc")
    for nt in range(2):
        for k in range(4):
            a(f"ds_read_b128 {vr(tq[nt * 4 + k])}, v18 offset:{L_LB + nt * 1024 + k * 16}")
    a("s_waitcnt lgkmcnt(0)")
    for nt in range(2):
        rs = [tq[nt * 4 + k] + r for k in range(4) for r in range(4)]
        for r in rs[1:]:
            a(f"v_add_f32 v{rs[0]}, v{rs[0]}, v{r}")
    a(f"v_mov_b32 v26, v20")
    a(f"v_mov_b32 v27, v{tq[0]}")
    a(f"v_mov_b32 v28, v21")
    a(f"v_mov_b32 v29, v{tq[4]}")
    a("s_lshl_b32 s26, s2, 8")
    a(f"s_add_u32 s26, s26, 0x{WS_BSTAT:x}")
    a("v_lshlrev_b32 v30, 3, v8")
    a("v_add_u32 v30, s26, v30")
    a("global_store_dwordx2 v30, v[26:27], s[4:5]")
    a("global_store_dwordx2 v30, v[28:29], s[4:5] offset:128")
    a("s_mov_b64 exec, s[16:17]")
    a.label("K2B_NOSTAT")
    a("s_waitcnt lgkmcnt(0)")
    a("s_nop 1")
    for kb in range(4):
        for ct in range(8):
            for nt in range(2):
                o = pool[ct * 2 + nt]
                c = "0" if kb == 0 else vr(o)
                a(f"v_mfma_f32_16x16x32_bf16 {vr(o)}, {vr(DB + kb * 32 + ct * 4)}, {vr(PF + (kb * 2 + nt) * 4)}, {c}")
    a("s_lshl_b32 s26, s2, 16")
    a("s_lshl_b32 s27, s22, 9")
    a("s_add_u32 s26, s26, s27")
    a(f"s_add_u32 s26, s26, 0x{WS_BPART:x}")
    a("s_add_u32 s28, s4, s26")
    a("s_addc_u32 s29, s5, 0")
    a("v_lshlrev_b32 v17, 11, v8")
    a("v_lshlrev_b32 v18, 4, v9")
    a("v_add_u32 v17, v17, v18")
    a("v_add_u32 v18, 0x8000, v17")
    a("s_nop 7")
    a("s_nop 7")
    for ct in range(8):
        for nt in range(2):
            a(f"global_store_dwordx4 v{17 + nt}, {vr(pool[ct * 2 + nt])}, s[28:29] offset:{ct * 64}")
    a("s_branch K2_END")
    a.label("K2_A")
    a(f"s_load_dwordx2 s[6:7], s[0:1], {KA['A_k']}")
    a(f"s_load_dwordx2 s[8:9], s[0:1], {KA['A_v']}")
    a("s_sub_u32 s23, s2, 128")
    a("s_lshr_b32 s24, s23, 3")
    a("s_and_b32 s25, s23, 7")
    a("s_waitcnt lgkmcnt(0)")
    a("s_lshl_b32 s26, s24, 21")
    a("s_lshl_b32 s27, s25, 16")
    a("s_add_u32 s26, s26, s27")
    a("s_lshl_b32 s27, s22, 14")
    a("s_add_u32 s26, s26, s27")
    a(f"s_add_u32 s26, s26, {6144 * 256}")
    a("s_add_u32 s6, s6, s26")
    a("s_addc_u32 s7, s7, 0")
    a("s_add_u32 s8, s8, s26")
    a("s_addc_u32 s9, s9, 0")
    QF = 16
    for r in range(QF, QF + 16):
        a(f"v_mov_b32 v{r}, 0")
    a("s_lshl_b32 s26, s24, 10")
    a("v_lshlrev_b32 v10, 8, v8")
    a("v_lshlrev_b32 v11, 4, v9")
    a("v_add_u32 v10, v10, v11")
    a("v_add_u32 v11, s26, v10")
    a("v_cmp_gt_u32 vcc, 4, v8")
    a("s_nop 1")
    a("s_and_saveexec_b64 s[16:17], vcc")
    for t in range(4):
        a(f"global_load_dwordx4 {vr(QF + 4 * t)}, v11, s[4:5] offset:{WS_QA + t * 64}")
    a("s_mov_b64 exec, s[16:17]")
    KB_ = 64
    a("v_mov_b32 v12, v10")
    for mt in range(4):
        for t in range(4):
            a(f"global_load_dwordx4 {vr(KB_ + (mt * 4 + t) * 4)}, v12, s[6:7] offset:{t * 64}")
        if mt < 3:
            a("v_add_u32 v12, 0x1000, v12")
    VB_ = 128
    a("v_lshlrev_b32 v12, 4, v6")
    for i in range(16):
        if i and i % 4 == 0:
            a("v_add_u32 v12, 0x1000, v12")
        a(f"global_load_dwordx4 {vr(VB_ + 4 * i)}, v12, s[8:9] offset:{(i % 4) * 1024}")
    a(f"s_mul_i32 s26, s22, {64 * STG}")
    a(f"s_add_u32 s26, s26, {L_STG}")
    a(f"v_mul_u32_u24 v14, {STG}, v9")
    a("v_lshlrev_b32 v15, 4, v8")
    a("v_add3_u32 v14, v14, v15, s26")
    a("v_lshrrev_b32 v15, 2, v8")
    a("v_lshl_add_u32 v15, v9, 2, v15")
    a(f"v_mul_u32_u24 v15, {STG}, v15")
    a("v_and_b32 v13, 3, v6")
    a("v_lshlrev_b32 v13, 3, v13")
    a("v_add3_u32 v15, v15, v13, s26")
    SAq = [32, 36, 40, 44]
    a("s_waitcnt vmcnt(16)")
    for t in range(4):
        for mt in range(4):
            c = "0" if t == 0 else vr(SAq[mt])
            a(f"v_mfma_f32_16x16x32_bf16 {vr(SAq[mt])}, {vr(KB_ + (mt * 4 + t) * 4)}, {vr(QF + 4 * t)}, {c}")
    a("s_waitcnt vmcnt(0)")
    for i in range(16):
        a(f"ds_write_b128 v14, {vr(VB_ + 4 * i)} offset:{i * 4 * STG}")
    a("s_nop 7")
    allS = [SAq[mt] + r for mt in range(4) for r in range(4)]
    score_round16(a, allS, 18)
    a(f"v_max3_f32 v20, v{allS[0]}, v{allS[1]}, v{allS[2]}")
    for i in range(3, 15, 2):
        a(f"v_max3_f32 v20, v20, v{allS[i]}, v{allS[i + 1]}")
    a(f"v_max_f32 v20, v20, v{allS[15]}")
    make_xor_addrs(a, 6, [16, 32], 21)
    a("s_waitcnt lgkmcnt(0)")
    bperm_reduce(a, "v_max_f32", 20, [21, 22], 23)
    exp_inplace(a, allS, 20, 0)
    a(f"v_add_f32 v24, v{allS[0]}, v{allS[1]}")
    for r in allS[2:]:
        a(f"v_add_f32 v24, v24, v{r}")
    bperm_reduce(a, "v_add_f32", 24, [21, 22], 23)
    for kb in range(2):
        for mt2 in range(2):
            s = SAq[2 * kb + mt2]
            a(f"v_cvt_pk_bf16_f32 v{48 + kb * 4 + mt2 * 2}, v{s}, v{s + 1}")
            a(f"v_cvt_pk_bf16_f32 v{49 + kb * 4 + mt2 * 2}, v{s + 2}, v{s + 3}")
    for kb in range(2):
        for ct in range(8):
            for hf in range(2):
                a(f"ds_read_b64_tr_b16 {vr(KB_ + (kb * 8 + ct) * 4 + hf * 2, 2)}, v15 offset:{(kb * 32 + hf * 16) * STG + ct * 32}")
    a("s_waitcnt lgkmcnt(0)")
    OA = 192
    for kb in range(2):
        for ct in range(8):
            c = "0" if kb == 0 else vr(OA + 4 * ct)
            a(f"v_mfma_f32_16x16x32_bf16 {vr(OA + 4 * ct)}, {vr(KB_ + (kb * 8 + ct) * 4)}, {vr(48 + kb * 4)}, {c}")
    a("s_lshl_b32 s26, s24, 5")
    a("s_lshl_b32 s27, s25, 2")
    a("s_add_u32 s26, s26, s27")
    a("s_add_u32 s26, s26, s22")
    a("s_lshl_b32 s27, s26, 11")
    a(f"s_add_u32 s27, s27, 0x{WS_APART:x}")
    a("v_lshlrev_b32 v17, 9, v8")
    a("v_lshlrev_b32 v18, 4, v9")
    a("v_add3_u32 v17, v17, v18, s27")
    a("s_lshl_b32 s28, s26, 5")
    a(f"s_add_u32 s28, s28, 0x{WS_ASTAT:x}")
    a("v_lshlrev_b32 v18, 3, v8")
    a("v_add_u32 v18, s28, v18")
    a("v_mov_b32 v26, v20")
    a("v_mov_b32 v27, v24")
    a("v_cmp_gt_u32 vcc, 4, v8")
    a("v_cmp_gt_u32 s[18:19], 4, v6")
    a("s_nop 7")
    a("s_nop 7")
    a("s_and_saveexec_b64 s[16:17], vcc")
    for ct in range(8):
        a(f"global_store_dwordx4 v17, {vr(OA + 4 * ct)}, s[4:5] offset:{ct * 64}")
    a("s_mov_b64 exec, s[18:19]")
    a("global_store_dwordx2 v18, v[26:27], s[4:5]")
    a("s_mov_b64 exec, s[16:17]")
    a.label("K2_END")
    a("s_endpgm")


def fma16(a, wsrc, m0, m1, acc, tmp):
    unpack8(a, wsrc, tmp)
    for e in range(8):
        a(f"v_fmac_f32 v{acc + e}, v{tmp + e}, v{m0}")
        a(f"v_fmac_f32 v{acc + 8 + e}, v{tmp + e}, v{m1}")


def final_out_reduce(a, task_sreg, acc):
    a("v_lshlrev_b32 v12, 12, v7")
    a("v_lshlrev_b32 v13, 5, v6")
    a("v_add_u32 v12, v12, v13")
    a(f"ds_write_b128 v12, {vr(acc)}")
    a(f"ds_write_b128 v12, {vr(acc + 4)} offset:16")
    a(f"ds_write_b128 v12, {vr(acc + 8)} offset:2048")
    a(f"ds_write_b128 v12, {vr(acc + 12)} offset:2064")
    a("s_waitcnt lgkmcnt(0)")
    a("s_barrier")
    a("v_lshlrev_b32 v12, 4, v0")
    for w2 in range(4):
        a(f"ds_read_b128 {vr(32 + 4 * w2)}, v12 offset:{w2 * 4096}")
    a("s_waitcnt lgkmcnt(0)")
    for r in range(4):
        for w2 in range(1, 4):
            a(f"v_add_f32 v{32 + r}, v{32 + r}, v{32 + 4 * w2 + r}")
    a(f"s_lshl_b32 s26, s{task_sreg}, 12")
    a(f"s_add_u32 s26, s26, 0x{WS_OUTP:x}")
    a("v_add_u32 v12, s26, v12")
    a(f"global_store_dwordx4 v12, {vr(32)}, s[4:5]")


def gen_k3(a):
    kernel_header(a, "k3prj_kernel")
    a("s_cmp_ge_u32 s2, 256")
    a("s_cbranch_scc1 K3_END")
    a(f"s_load_dwordx2 s[4:5], s[0:1], {KA['ws']}")
    a(f"s_mov_b32 s21, 0x{LOG2E:x}")
    a("v_and_b32 v6, 63, v0")
    a("v_lshrrev_b32 v7, 6, v0")
    a("s_cmp_ge_u32 s2, 128")
    a("s_cbranch_scc1 K3_A")
    a(f"s_load_dwordx2 s[6:7], s[0:1], {KA['B_wuv']}")
    a(f"s_load_dwordx2 s[8:9], s[0:1], {KA['B_wo']}")
    a("s_and_b32 s12, s2, 31")
    a("s_lshr_b32 s13, s2, 5")
    a("v_lshrrev_b32 v1, 4, v0")
    a("v_and_b32 v2, 15, v0")
    a("s_lshl_b32 s14, s12, 3")
    a(f"s_add_u32 s14, s14, 0x{WS_BSTAT:x}")
    a("v_lshlrev_b32 v3, 8, v0")
    a("v_add_u32 v3, s14, v3")
    a("v_cmp_gt_u32 vcc, 128, v0")
    a("s_waitcnt lgkmcnt(0)")
    a("s_and_saveexec_b64 s[16:17], vcc")
    a("global_load_dwordx2 v[4:5], v3, s[4:5]")
    a("s_mov_b64 exec, s[16:17]")
    a("v_lshrrev_b32 v3, 5, v0")
    a("v_lshlrev_b32 v3, 20, v3")
    a("v_and_b32 v8, 31, v0")
    a("v_lshlrev_b32 v8, 4, v8")
    a("s_lshl_b32 s14, s12, 11")
    a("s_lshl_b32 s15, s13, 9")
    a("s_add_u32 s14, s14, s15")
    a("v_add3_u32 v3, v3, v8, s14")
    a(f"s_add_u32 s28, s4, 0x{WS_BPART:x}")
    a("s_addc_u32 s29, s5, 0")
    OP = 64
    for i in range(16):
        a(f"global_load_dwordx4 {vr(OP + 4 * i)}, v3, s[28:29]")
        if i < 15:
            a("v_add_u32 v3, 0x10000, v3")
    a("s_lshl_b32 s14, s13, 20")
    a("s_lshl_b32 s15, s12, 8")
    a("s_add_u32 s14, s14, s15")
    a("v_lshlrev_b32 v3, 16, v1")
    a("v_lshlrev_b32 v8, 4, v2")
    a("v_add3_u32 v3, v3, v8, s14")
    UV = 128
    for i in range(8):
        a(f"global_load_dwordx4 {vr(UV + 4 * i)}, v3, s[6:7]")
        if i < 7:
            a("v_add_u32 v3, 0x2000, v3")
    a("s_waitcnt vmcnt(24)")
    make_xor_addrs(a, 6, [1, 2, 4, 8, 16, 32], 56)
    a("v_mov_b32 v9, v4")
    bperm_reduce(a, "v_max_f32", 9, range(56, 62), 10)
    a("v_sub_f32 v10, v4, v9")
    a("v_mul_f32 v10, s21, v10")
    a("v_exp_f32 v10, v10")
    a("s_nop 1")
    a("v_mul_f32 v11, v10, v5")
    bperm_reduce(a, "v_add_f32", 11, range(56, 62), 12)
    a("v_rcp_f32 v11, v11")
    a("s_nop 1")
    a("v_mul_f32 v10, v10, v11")
    a("v_lshlrev_b32 v12, 2, v0")
    a("s_and_saveexec_b64 s[16:17], vcc")
    a("ds_write_b32 v12, v10")
    a("s_mov_b64 exec, s[16:17]")
    a("s_waitcnt lgkmcnt(0)")
    a("s_barrier")
    a("s_lshl_b32 s14, s12, 17")
    a("v_lshlrev_b32 v3, 15, v7")
    a("v_lshlrev_b32 v8, 4, v6")
    a("v_add3_u32 v3, v3, v8, s14")
    WO = 160
    a("v_lshrrev_b32 v12, 5, v0")
    a("v_lshlrev_b32 v12, 6, v12")
    for k in range(4):
        a(f"ds_read_b128 {vr(32 + 4 * k)}, v12 offset:{k * 16}")
    a("s_waitcnt vmcnt(8) lgkmcnt(0)")
    for i in range(16):
        for r in range(4):
            if i == 0:
                a(f"v_mul_f32 v{16 + r}, v{OP + r}, v32")
            else:
                a(f"v_fmac_f32 v{16 + r}, v{OP + 4 * i + r}, v{32 + i}")
    a("v_lshlrev_b32 v12, 4, v0")
    a(f"ds_write_b128 v12, {vr(16)} offset:1024")
    a("s_waitcnt lgkmcnt(0)")
    a("s_barrier")
    a("v_lshrrev_b32 v12, 7, v0")
    a("v_lshlrev_b32 v12, 11, v12")
    a("v_and_b32 v13, 127, v0")
    a("v_lshlrev_b32 v13, 2, v13")
    a("v_add_u32 v12, v12, v13")
    for jq in range(4):
        a(f"ds_read_b32 v{32 + jq}, v12 offset:{1024 + jq * 512}")
    a("s_waitcnt lgkmcnt(0)")
    a("v_add_f32 v32, v32, v33")
    a("v_add_f32 v34, v34, v35")
    a("v_add_f32 v32, v32, v34")
    a("v_lshlrev_b32 v12, 2, v0")
    a("ds_write_b32 v12, v32 offset:8192")
    for i in range(24):
        a(f"global_load_dwordx4 {vr(WO + 4 * i)}, v3, s[8:9]")
        a("v_add_u32 v3, 0x400, v3")
    a("s_waitcnt lgkmcnt(0)")
    a("s_barrier")
    a("v_lshlrev_b32 v12, 5, v1")
    for b in range(2):
        for k in range(2):
            a(f"ds_read_b128 {vr(32 + (b * 2 + k) * 4)}, v12 offset:{8192 + b * 512 + k * 16}")
    for r in range(16, 32):
        a(f"v_mov_b32 v{r}, 0")
    a("s_waitcnt vmcnt(24) lgkmcnt(0)")
    for i in range(8):
        fma16(a, UV + 4 * i, 32 + i, 40 + i, 16, 48)
    a("v_lshlrev_b32 v12, 10, v1")
    a("v_lshlrev_b32 v13, 5, v2")
    a("v_add_u32 v12, v12, v13")
    a(f"ds_write_b128 v12, {vr(16)} offset:16384")
    a(f"ds_write_b128 v12, {vr(20)} offset:16400")
    a(f"ds_write_b128 v12, {vr(24)} offset:16896")
    a(f"ds_write_b128 v12, {vr(28)} offset:16912")
    for i in range(24, 32):
        a(f"global_load_dwordx4 {vr(64 + 4 * (i - 24))}, v3, s[8:9]")
        if i < 31:
            a("v_add_u32 v3, 0x400, v3")
    a("s_waitcnt lgkmcnt(0)")
    a("s_barrier")
    a("v_lshlrev_b32 v12, 2, v0")
    for rg in range(16):
        a(f"ds_read_b32 v{32 + rg}, v12 offset:{16384 + rg * 1024}")
    a("s_waitcnt lgkmcnt(0)")
    for rg in range(1, 16):
        a(f"v_add_f32 v32, v32, v{32 + rg}")
    a("ds_write_b32 v12, v32 offset:32768")
    a("s_waitcnt lgkmcnt(0)")
    a("s_barrier")
    a("v_lshlrev_b32 v12, 7, v7")
    MUL = 96
    for b in range(2):
        for k in range(8):
            a(f"ds_read_b128 {vr(MUL + b * 32 + 4 * k)}, v12 offset:{32768 + b * 512 + k * 16}")
    for r in range(16, 32):
        a(f"v_mov_b32 v{r}, 0")
    a("s_waitcnt vmcnt(0) lgkmcnt(0)")
    for i in range(32):
        src = WO + 4 * i if i < 24 else 64 + 4 * (i - 24)
        fma16(a, src, MUL + i, MUL + 32 + i, 16, 48)
    a("s_barrier")
    a("s_add_u32 s15, s2, 128")
    final_out_reduce(a, 15, 16)
    a("s_branch K3_END")
    a.label("K3_A")
    a(f"s_load_dwordx2 s[8:9], s[0:1], {KA['A_wo']}")
    a("s_sub_u32 s11, s2, 128")
    a("s_and_b32 s12, s11, 31")
    a("s_lshr_b32 s13, s11, 5")
    a("s_lshr_b32 s14, s12, 2")
    a("s_and_b32 s15, s12, 3")
    a("v_lshrrev_b32 v1, 5, v0")
    a("v_and_b32 v2, 31, v0")
    a("v_lshlrev_b32 v3, 8, v1")
    a("v_add_u32 v3, v3, v2")
    a("s_lshl_b32 s18, s14, 5")
    a("v_add_u32 v3, s18, v3")
    a("v_lshlrev_b32 v4, 5, v3")
    a("s_lshl_b32 s19, s15, 3")
    a(f"s_add_u32 s19, s19, 0x{WS_ASTAT:x}")
    a("v_add_u32 v4, s19, v4")
    a("v_cmp_gt_u32 vcc, 64, v0")
    a("s_waitcnt lgkmcnt(0)")
    a("s_and_saveexec_b64 s[16:17], vcc")
    a("global_load_dwordx2 v[4:5], v4, s[4:5]")
    a("s_mov_b64 exec, s[16:17]")
    a("v_lshrrev_b32 v1, 7, v0")
    a("v_bfe_u32 v2, v0, 2, 5")
    a("v_lshlrev_b32 v3, 8, v1")
    a("v_add_u32 v3, v3, v2")
    a("v_add_u32 v3, s18, v3")
    a("v_lshlrev_b32 v3, 11, v3")
    a("v_and_b32 v8, 3, v0")
    a("v_lshlrev_b32 v8, 5, v8")
    a("s_lshl_b32 s19, s15, 9")
    a("s_lshl_b32 s22, s13, 7")
    a("s_add_u32 s19, s19, s22")
    a(f"s_add_u32 s19, s19, 0x{WS_APART:x}")
    a("v_add3_u32 v3, v3, v8, s19")
    a(f"global_load_dwordx4 {vr(64)}, v3, s[4:5]")
    a(f"global_load_dwordx4 {vr(68)}, v3, s[4:5] offset:16")
    a("s_lshl_b32 s22, s12, 17")
    a("s_lshl_b32 s23, s13, 15")
    a("s_add_u32 s22, s22, s23")
    a("v_lshlrev_b32 v3, 13, v7")
    a("v_lshlrev_b32 v8, 4, v6")
    a("v_add3_u32 v3, v3, v8, s22")
    for i in range(8):
        a(f"global_load_dwordx4 {vr(96 + 4 * i)}, v3, s[8:9] offset:{(i % 4) * 1024}")
        if i == 3:
            a("v_add_u32 v3, 0x1000, v3")
    a("s_waitcnt vmcnt(10)")
    make_xor_addrs(a, 6, [1, 2, 4, 8, 16], 56)
    a("v_mov_b32 v9, v4")
    bperm_reduce(a, "v_max_f32", 9, range(56, 61), 10)
    a("v_sub_f32 v10, v4, v9")
    a("v_mul_f32 v10, s21, v10")
    a("v_exp_f32 v10, v10")
    a("s_nop 1")
    a("v_mul_f32 v11, v10, v5")
    bperm_reduce(a, "v_add_f32", 11, range(56, 61), 12)
    a("v_rcp_f32 v11, v11")
    a("s_nop 1")
    a("v_mul_f32 v10, v10, v11")
    a("v_lshlrev_b32 v12, 2, v0")
    a("s_and_saveexec_b64 s[16:17], vcc")
    a("ds_write_b32 v12, v10")
    a("s_mov_b64 exec, s[16:17]")
    a("s_waitcnt lgkmcnt(0)")
    a("s_barrier")
    a("v_lshrrev_b32 v12, 2, v0")
    a("v_lshlrev_b32 v12, 2, v12")
    a("ds_read_b32 v13, v12")
    a("s_waitcnt vmcnt(8) lgkmcnt(0)")
    for r in range(8):
        a(f"v_mul_f32 v{64 + r}, v{64 + r}, v13")
    a("v_lshlrev_b32 v12, 5, v0")
    a(f"ds_write_b128 v12, {vr(64)} offset:1024")
    a(f"ds_write_b128 v12, {vr(68)} offset:1040")
    a("s_waitcnt lgkmcnt(0)")
    a("s_barrier")
    a("v_lshrrev_b32 v12, 5, v0")
    a("v_lshlrev_b32 v12, 12, v12")
    a("v_and_b32 v13, 31, v0")
    a("v_lshlrev_b32 v13, 2, v13")
    a("v_add_u32 v12, v12, v13")
    a("s_and_saveexec_b64 s[16:17], vcc")
    a("s_cbranch_execz K3A_SKIP")
    for sp in range(32):
        a(f"ds_read_b32 v{128 + sp}, v12 offset:{1024 + sp * 128}")
    a("s_waitcnt lgkmcnt(0)")
    for sp in range(1, 32):
        a(f"v_add_f32 v128, v128, v{128 + sp}")
    bf16_round_pair(a, 128, 129, 130)
    a("v_lshlrev_b32 v13, 2, v0")
    a("ds_write_b32 v13, v128 offset:16384")
    a.label("K3A_SKIP")
    a("s_mov_b64 exec, s[16:17]")
    a("s_waitcnt lgkmcnt(0)")
    a("s_barrier")
    a("v_lshlrev_b32 v12, 5, v7")
    for b in range(2):
        for k in range(2):
            a(f"ds_read_b128 {vr(32 + (b * 2 + k) * 4)}, v12 offset:{16384 + b * 128 + k * 16}")
    for r in range(16, 32):
        a(f"v_mov_b32 v{r}, 0")
    a("s_waitcnt vmcnt(0) lgkmcnt(0)")
    for i in range(8):
        fma16(a, 96 + 4 * i, 32 + i, 40 + i, 16, 48)
    a("s_barrier")
    final_out_reduce(a, 11, 16)
    a.label("K3_END")
    a("s_endpgm")


def gen_k4(a):
    kernel_header(a, "k4fin_kernel")
    a("s_cmp_ge_u32 s2, 16")
    a("s_cbranch_scc1 K4_END")
    a(f"s_load_dwordx2 s[4:5], s[0:1], {KA['ws']}")
    a(f"s_load_dwordx2 s[6:7], s[0:1], {KA['out']}")
    a("s_lshr_b32 s10, s2, 3")
    a("s_bfe_u32 s11, s2, 0x10002")
    a("s_and_b32 s12, s2, 3")
    a("v_lshrrev_b32 v1, 5, v0")
    a("v_and_b32 v2, 31, v0")
    a("s_lshl_b32 s13, s10, 19")
    a("s_lshl_b32 s14, s11, 11")
    a("s_add_u32 s13, s13, s14")
    a("s_lshl_b32 s14, s12, 9")
    a("s_add_u32 s13, s13, s14")
    a(f"s_add_u32 s13, s13, 0x{WS_OUTP:x}")
    a("v_lshlrev_b32 v3, 16, v1")
    a("v_lshlrev_b32 v4, 4, v2")
    a("v_add3_u32 v3, v3, v4, s13")
    a("s_waitcnt lgkmcnt(0)")
    for i in range(16):
        a(f"global_load_dwordx4 {vr(16 + 4 * i)}, v3, s[4:5]")
        if i < 15:
            a("v_add_u32 v3, 0x1000, v3")
    a("s_waitcnt vmcnt(0)")
    for i in range(1, 16):
        for r in range(4):
            a(f"v_add_f32 v{16 + r}, v{16 + r}, v{16 + 4 * i + r}")
    a("v_lshlrev_b32 v5, 4, v0")
    a(f"ds_write_b128 v5, {vr(16)}")
    a("s_waitcnt lgkmcnt(0)")
    a("s_barrier")
    a("v_cmp_gt_u32 vcc, 32, v0")
    a("s_nop 1")
    a("s_and_saveexec_b64 s[16:17], vcc")
    a("s_cbranch_execz K4_SKIP")
    for tg in range(8):
        a(f"ds_read_b128 {vr(16 + 4 * tg)}, v5 offset:{tg * 512}")
    a("s_waitcnt lgkmcnt(0)")
    for tg in range(1, 8):
        for r in range(4):
            a(f"v_add_f32 v{16 + r}, v{16 + r}, v{16 + 4 * tg + r}")
    a("v_cvt_pk_bf16_f32 v8, v16, v17")
    a("v_cvt_pk_bf16_f32 v9, v18, v19")
    a("s_lshl_b32 s13, s11, 11")
    a("s_lshl_b32 s14, s10, 10")
    a("s_add_u32 s13, s13, s14")
    a("s_lshl_b32 s14, s12, 8")
    a("s_add_u32 s13, s13, s14")
    a("v_lshlrev_b32 v6, 3, v2")
    a("v_add_u32 v6, s13, v6")
    a("global_store_dwordx2 v6, v[8:9], s[6:7]")
    a.label("K4_SKIP")
    a("s_mov_b64 exec, s[16:17]")
    a.label("K4_END")
    a("s_endpgm")


HEADER = open("cdna_kernels/" + NAME + ".s.ref").read().split("; @launch")[0]


def main(out):
    a = Asm()
    gen_k1(a)
    gen_k2(a)
    gen_k3(a)
    gen_k4(a)
    txt = HEADER
    txt += "; @launch kernel=k1q_kernel grid=(192,1,1) block=(256,1,1) lds=20480\n"
    txt += f"; @launch kernel=k2att_kernel grid=(256,1,1) block=(256,1,1) lds={K2_LDS}\n"
    txt += "; @launch kernel=k3prj_kernel grid=(256,1,1) block=(256,1,1) lds=36864\n"
    txt += "; @launch kernel=k4fin_kernel grid=(16,1,1) block=(256,1,1) lds=4096\n"
    txt += '.amdgcn_target "amdgcn-amd-amdhsa--gfx950"\n.text\n'
    txt += a.text()
    txt += '.section .rodata,"a"\n.p2align 6\n'
    for k in ["k1q_kernel", "k2att_kernel", "k3prj_kernel", "k4fin_kernel"]:
        txt += descriptor(k, 256)
    open(out, "w").write(txt)


if __name__ == "__main__":
    main(sys.argv[1] if len(sys.argv) > 1 else "cdna_kernels/" + NAME + ".s")
```

```python
import sys

NAME = "concat_heads__sliding_block_cached__compressed_kv_cla__decode"

WS_QA    = 0x0
WS_QABS  = 0x10000
WS_APART = 0x100000
WS_ASTAT = 0x200000
WS_BSTAT = 0x210000
WS_BPART = 0x400000
WS_OUTP  = 0x1000000

KA = dict(A_x=0, A_k=8, A_v=16, A_wq=24, A_wo=32, B_x=40, B_ckv=48, B_wq=56, B_wuk=64,
          B_wuv=72, B_wo=80, out=88, dbg=96, ws=104)

LOG2E = 0x3fb8aa3b
SCALE = 0x3db504f3
HIMASK = 0xffff0000
STG = 288


class Asm:
    def __init__(self):
        self.lines = []

    def __call__(self, s):
        for ln in s.split("\n"):
            self.lines.append("    " + ln.strip())

    def label(self, s):
        self.lines.append(s + ":")

    def raw(self, s):
        self.lines.append(s)

    def text(self):
        return "\n".join(self.lines) + "\n"


def vr(base, n=4):
    return f"v[{base}:{base + n - 1}]"


def unpack8(a, src, dst):
    for p in range(4):
        a(f"v_lshlrev_b32 v{dst + 2 * p}, 16, v{src + p}")
        a(f"v_and_b32 v{dst + 2 * p + 1}, 0x{HIMASK:x}, v{src + p}")


def unpack1(a, src_reg, idx, dst):
    r = src_reg + (idx >> 1)
    if idx & 1:
        a(f"v_and_b32 v{dst}, 0x{HIMASK:x}, v{r}")
    else:
        a(f"v_lshlrev_b32 v{dst}, 16, v{r}")


def bf16_round_pair(a, x0, x1, tmp):
    a(f"v_cvt_pk_bf16_f32 v{tmp}, v{x0}, v{x1}")
    a(f"v_lshlrev_b32 v{x0}, 16, v{tmp}")
    a(f"v_and_b32 v{x1}, 0x{HIMASK:x}, v{tmp}")


def bperm_reduce(a, op, val, addr_regs, tmp):
    for ar in addr_regs:
        a(f"ds_bpermute_b32 v{tmp}, v{ar}, v{val}")
        a("s_waitcnt lgkmcnt(0)")
        a(f"{op} v{val}, v{val}, v{tmp}")


def make_xor_addrs(a, lane, masks, dst0):
    for i, m in enumerate(masks):
        a(f"v_xor_b32 v{dst0 + i}, {m}, v{lane}")
        a(f"v_lshlrev_b32 v{dst0 + i}, 2, v{dst0 + i}")


STAMP = False
FUSED = True
SC = " sc1"
WS_STAMP = 0x2000000


def stamp_init(a):
    if STAMP:
        for r in range(64, 80):
            a(f"s_mov_b32 s{r}, 0")
        stamp(a, 0)


def stamp(a, k):
    if STAMP:
        a(f"s_memrealtime s[{64 + 2 * k}:{65 + 2 * k}]")


def stamp_flush(a, kidx):
    if not STAMP:
        return
    a("s_waitcnt vmcnt(0) lgkmcnt(0)")
    a("v_lshrrev_b32 v1, 6, v0")
    a("v_readfirstlane_b32 s80, v1")
    a(f"s_lshl_b32 s81, s2, 8")
    a("s_lshl_b32 s80, s80, 6")
    a("s_add_u32 s81, s81, s80")
    a(f"s_add_u32 s81, s81, 0x{WS_STAMP + kidx * 512 * 256:x}")
    a("v_mov_b32 v2, s81")
    for k in range(16):
        a(f"v_mov_b32 v{4 + k}, s{64 + k}")
    a("s_mov_b64 s[82:83], exec")
    a("s_mov_b64 exec, 1")
    a("s_nop 3")
    for k in range(4):
        a(f"global_store_dwordx4 v2, {vr(4 + 4 * k)}, s[4:5] offset:{16 * k}")
    a("s_mov_b64 exec, s[82:83]")


def kernel_header(a, name):
    if FUSED:
        return
    a.raw(f".globl {name}")
    a.raw(".p2align 8")
    a.raw(f".type {name},@function")
    a.label(name)


def descriptor(name, vgpr, sgpr=96):
    acc = (vgpr + 3) // 4 * 4
    return f""".amdhsa_kernel {name}
  .amdhsa_next_free_vgpr {vgpr}
  .amdhsa_next_free_sgpr {sgpr}
  .amdhsa_accum_offset {acc}
  .amdhsa_group_segment_fixed_size 0
  .amdhsa_kernarg_size 112
  .amdhsa_user_sgpr_count 2
  .amdhsa_user_sgpr_kernarg_segment_ptr 1
  .amdhsa_system_sgpr_workgroup_id_x 1
.end_amdhsa_kernel
"""


def gen_k1(a):
    kernel_header(a, "k1q_kernel")
    if FUSED:
        a("s_cmp_ge_u32 s2, 192")
        a("s_cbranch_scc1 K1_END")
    else:
        a("s_cmp_ge_u32 s2, 192")
        a("s_cbranch_scc1 K1_EXIT")
        stamp_init(a)
        a(f"s_load_dwordx2 s[4:5], s[0:1], {KA['ws']}")
    a("s_cmp_ge_u32 s2, 128")
    a("s_cbranch_scc1 K1_A")
    a(f"s_load_dwordx2 s[6:7], s[0:1], {KA['B_x']}")
    a(f"s_load_dwordx2 s[8:9], s[0:1], {KA['B_wq']}")
    a(f"s_load_dwordx2 s[10:11], s[0:1], {KA['B_wuk']}")
    a("s_and_b32 s12, s2, 31")
    a("s_lshr_b32 s13, s2, 5")
    a("s_lshl_b32 s14, s12, 8")
    a("v_lshrrev_b32 v1, 4, v0")
    a("v_and_b32 v2, 15, v0")
    a("v_lshlrev_b32 v3, 18, v1")
    a("v_lshlrev_b32 v4, 4, v2")
    a("v_add3_u32 v3, v3, v4, s14")
    a("v_lshlrev_b32 v5, 6, v1")
    a("v_and_b32 v6, 63, v0")
    a("v_lshrrev_b32 v7, 6, v0")
    a("v_and_b32 v8, 15, v6")
    a("v_lshrrev_b32 v9, 4, v6")
    a("s_lshl_b32 s15, s13, 7")
    a("v_lshlrev_b32 v10, 5, v7")
    a("v_add3_u32 v10, v10, v8, s15")
    a("v_lshlrev_b32 v10, 13, v10")
    a("v_lshlrev_b32 v11, 4, v9")
    a("v_add3_u32 v10, v10, v11, s14")
    a("v_add_u32 v11, 0x20000, v10")
    a("s_waitcnt lgkmcnt(0)")
    XB = [192, 208]
    for b in range(2):
        for k in range(4):
            a(f"global_load_dwordx4 {vr(XB[b] + 4 * k)}, v5, s[6:7] offset:{b * 1024 + k * 16}")
    W0 = 64
    for i in range(32):
        a(f"global_load_dwordx4 {vr(W0 + 4 * i)}, v3, s[8:9]")
        a("v_add_u32 v3, 0x2000, v3")
    UK = 224
    for mt in range(2):
        for t in range(4):
            a(f"global_load_dwordx4 {vr(UK + (mt * 4 + t) * 4)}, v{10 + mt}, s[10:11] offset:{t * 64}")
    stamp(a, 1)
    for r in range(16, 32):
        a(f"v_mov_b32 v{r}, 0")
    for i in range(32):
        a(f"s_waitcnt vmcnt({39 - i})")
        unpack8(a, W0 + 4 * i, 32)
        unpack1(a, XB[0], i, 40)
        unpack1(a, XB[1], i, 41)
        for e in range(8):
            a(f"v_fmac_f32 v{16 + e}, v{32 + e}, v40")
            a(f"v_fmac_f32 v{24 + e}, v{32 + e}, v41")
    stamp(a, 2)
    a("v_lshlrev_b32 v12, 10, v1")
    a("v_lshlrev_b32 v13, 5, v2")
    a("v_add_u32 v12, v12, v13")
    a(f"ds_write_b128 v12, {vr(16)}")
    a(f"ds_write_b128 v12, {vr(20)} offset:16")
    a(f"ds_write_b128 v12, {vr(24)} offset:512")
    a(f"ds_write_b128 v12, {vr(28)} offset:528")
    a("s_waitcnt lgkmcnt(0)")
    a("s_barrier")
    a("v_lshlrev_b32 v12, 2, v0")
    for rg in range(16):
        a(f"ds_read_b32 v{32 + rg}, v12 offset:{rg * 1024}")
    a("s_waitcnt lgkmcnt(0)")
    for rg in range(1, 16):
        a(f"v_add_f32 v32, v32, v{32 + rg}")
    a("v_cvt_pk_bf16_f32 v33, v32, v32")
    a("v_lshlrev_b32 v13, 1, v0")
    a("ds_write_b16 v13, v33 offset:16384")
    QF = 64
    for r in range(QF, QF + 16):
        a(f"v_mov_b32 v{r}, 0")
    a("s_waitcnt lgkmcnt(0)")
    a("s_barrier")
    stamp(a, 3)
    a("v_cmp_gt_u32 vcc, 2, v8")
    a("v_lshlrev_b32 v12, 8, v8")
    a("v_lshlrev_b32 v13, 4, v9")
    a("v_add_u32 v12, v12, v13")
    a("s_nop 1")
    a("s_and_saveexec_b64 s[16:17], vcc")
    for t in range(4):
        a(f"ds_read_b128 {vr(QF + 4 * t)}, v12 offset:{16384 + t * 64}")
    a("s_mov_b64 exec, s[16:17]")
    a("s_waitcnt vmcnt(0) lgkmcnt(0)")
    D0 = 96
    for mt in range(2):
        for t in range(4):
            c = "0" if t == 0 else vr(D0 + 4 * mt)
            a(f"v_mfma_f32_16x16x32_bf16 {vr(D0 + 4 * mt)}, {vr(UK + (mt * 4 + t) * 4)}, {vr(QF + 4 * t)}, {c}")
    a("s_nop 7")
    a("s_nop 7")
    for mt in range(2):
        a(f"v_cvt_pk_bf16_f32 v{104 + 2 * mt}, v{D0 + 4 * mt}, v{D0 + 4 * mt + 1}")
        a(f"v_cvt_pk_bf16_f32 v{105 + 2 * mt}, v{D0 + 4 * mt + 2}, v{D0 + 4 * mt + 3}")
    a("v_lshlrev_b32 v12, 15, v8")
    a("v_lshlrev_b32 v13, 6, v7")
    a("v_lshlrev_b32 v14, 3, v9")
    a("v_add3_u32 v12, v12, v13, v14")
    a("s_lshl_b32 s18, s12, 10")
    a("s_lshl_b32 s19, s13, 8")
    a("s_add_u32 s18, s18, s19")
    a(f"s_add_u32 s18, s18, 0x{WS_QABS:x}")
    a("v_add_u32 v12, s18, v12")
    a("s_and_saveexec_b64 s[16:17], vcc")
    a("global_store_dwordx2 v12, v[104:105], s[4:5]" + SC)
    a("global_store_dwordx2 v12, v[106:107], s[4:5] offset:32" + SC)
    a("s_mov_b64 exec, s[16:17]")
    a("s_branch K1_END")
    a.label("K1_A")
    a(f"s_load_dwordx2 s[6:7], s[0:1], {KA['A_x']}")
    a(f"s_load_dwordx2 s[8:9], s[0:1], {KA['A_wq']}")
    a("s_sub_u32 s12, s2, 128")
    a("s_lshl_b32 s14, s12, 7")
    a("v_lshrrev_b32 v1, 3, v0")
    a("v_and_b32 v2, 7, v0")
    a("v_lshlrev_b32 v3, 17, v1")
    a("v_lshlrev_b32 v4, 4, v2")
    a("v_add3_u32 v3, v3, v4, s14")
    a("v_lshlrev_b32 v5, 5, v1")
    a("s_waitcnt lgkmcnt(0)")
    XA = [160, 168]
    for b in range(2):
        for k in range(2):
            a(f"global_load_dwordx4 {vr(XA[b] + 4 * k)}, v5, s[6:7] offset:{b * 1024 + k * 16}")
    for i in range(16):
        a(f"global_load_dwordx4 {vr(W0 + 4 * i)}, v3, s[8:9]")
        a("v_add_u32 v3, 0x2000, v3")
    for r in range(16, 32):
        a(f"v_mov_b32 v{r}, 0")
    for i in range(16):
        a(f"s_waitcnt vmcnt({15 - i})")
        unpack8(a, W0 + 4 * i, 32)
        unpack1(a, XA[0], i, 40)
        unpack1(a, XA[1], i, 41)
        for e in range(8):
            a(f"v_fmac_f32 v{16 + e}, v{32 + e}, v40")
            a(f"v_fmac_f32 v{24 + e}, v{32 + e}, v41")
    a("v_lshlrev_b32 v12, 9, v1")
    a("v_lshlrev_b32 v13, 5, v2")
    a("v_add_u32 v12, v12, v13")
    a(f"ds_write_b128 v12, {vr(16)}")
    a(f"ds_write_b128 v12, {vr(20)} offset:16")
    a(f"ds_write_b128 v12, {vr(24)} offset:256")
    a(f"ds_write_b128 v12, {vr(28)} offset:272")
    a("s_waitcnt lgkmcnt(0)")
    a("s_barrier")
    a("v_cmp_gt_u32 vcc, 128, v0")
    a("v_lshlrev_b32 v12, 2, v0")
    a("s_nop 1")
    a("s_and_saveexec_b64 s[16:17], vcc")
    a("s_cbranch_execz K1_A_SKIP")
    for rg in range(32):
        a(f"ds_read_b32 v{64 + rg}, v12 offset:{rg * 512}")
    a("s_waitcnt lgkmcnt(0)")
    for rg in range(1, 32):
        a(f"v_add_f32 v64, v64, v{64 + rg}")
    a("v_cvt_pk_bf16_f32 v65, v64, v64")
    a("v_lshrrev_b32 v13, 6, v0")
    a("v_lshlrev_b32 v13, 13, v13")
    a("v_and_b32 v14, 63, v0")
    a("v_lshlrev_b32 v14, 1, v14")
    a("v_add3_u32 v13, v13, v14, s14")
    a(f"global_store_short v13, v65, s[4:5] offset:{WS_QA}{SC}")
    a.label("K1_A_SKIP")
    a("s_mov_b64 exec, s[16:17]")
    a.label("K1_END")
    if FUSED:
        return
    stamp(a, 7)
    stamp_flush(a, 0)
    a.label("K1_EXIT")
    a("s_endpgm")


L_PB = 0
L_MX = L_PB + 8192
L_LB = L_MX + 2048
L_STG = L_LB + 2048
L_SX = L_STG + 4 * 9216
K2_LDS = L_SX + 65536


def score_round16(a, regs, tmp):
    for i in range(0, len(regs), 2):
        x0, x1 = regs[i], regs[i + 1]
        bf16_round_pair(a, x0, x1, tmp)
        a(f"v_mul_f32 v{x0}, s20, v{x0}")
        a(f"v_mul_f32 v{x1}, s20, v{x1}")
        bf16_round_pair(a, x0, x1, tmp)


def exp_inplace(a, regs, mreg, tmp):
    for r in regs:
        a(f"v_sub_f32 v{r}, v{r}, v{mreg}")
        a(f"v_mul_f32 v{r}, s21, v{r}")
        a(f"v_exp_f32 v{r}, v{r}")
    a("s_nop 1")


def gen_k2(a):
    kernel_header(a, "k2att_kernel")
    if not FUSED:
        a("s_cmp_ge_u32 s2, 256")
        a("s_cbranch_scc1 K2_EXIT")
        stamp_init(a)
        a(f"s_load_dwordx2 s[4:5], s[0:1], {KA['ws']}")
    a(f"s_mov_b32 s20, 0x{SCALE:x}")
    a(f"s_mov_b32 s21, 0x{LOG2E:x}")
    a("v_and_b32 v6, 63, v0")
    a("v_lshrrev_b32 v7, 6, v0")
    a("s_nop 0")
    a("v_readfirstlane_b32 s22, v7")
    a("v_and_b32 v8, 15, v6")
    a("v_lshrrev_b32 v9, 4, v6")
    a("s_cmp_ge_u32 s2, 128")
    a("s_cbranch_scc1 K2_A")
    a(f"s_load_dwordx2 s[6:7], s[0:1], {KA['B_ckv']}")
    a("s_lshr_b32 s23, s2, 6")
    a("s_and_b32 s24, s2, 63")
    a("s_waitcnt lgkmcnt(0)")
    a("s_lshl_b32 s25, s2, 17")
    a("s_lshl_b32 s26, s22, 8")
    a("s_add_u32 s25, s25, s26")
    a("s_add_u32 s6, s6, s25")
    a("s_addc_u32 s7, s7, 0")
    a("s_lshl_b32 s25, s23, 15")
    a("s_lshl_b32 s26, s22, 8")
    a("s_add_u32 s25, s25, s26")
    a(f"s_add_u32 s25, s25, 0x{WS_QABS:x}")
    a("v_lshlrev_b32 v10, 10, v8")
    a("v_lshlrev_b32 v11, 4, v9")
    a("v_add_u32 v10, v10, v11")
    a("v_add_u32 v11, s25, v10")
    a("v_add_u32 v12, 0x4000, v11")
    QB = 128 + 64
    for nt in range(2):
        for t in range(4):
            a(f"global_load_dwordx4 {vr(QB + (nt * 4 + t) * 4)}, v{11 + nt}, s[4:5] offset:{t * 64}{SC}")
    DB = 64
    a("v_mov_b32 v13, v10")
    for mt in range(8):
        for t in range(4):
            a(f"global_load_dwordx4 {vr(DB + (mt * 4 + t) * 4)}, v13, s[6:7] offset:{t * 64}")
        if mt < 7:
            a("v_add_u32 v13, 0x4000, v13")
    stamp(a, 1)
    SREG = {}
    idx = 0
    pool = list(range(224, 256, 4)) + list(range(32, 64, 4))
    for mt in range(8):
        for nt in range(2):
            SREG[(mt, nt)] = pool[idx]
            idx += 1
    a(f"s_mul_i32 s26, s22, 9216")
    a(f"s_add_u32 s26, s26, {L_STG}")
    a(f"v_mul_u32_u24 v14, {STG}, v8")
    a("v_lshlrev_b32 v15, 4, v9")
    a("v_add3_u32 v14, v14, v15, s26")
    a("v_lshrrev_b32 v15, 2, v8")
    a("v_lshl_add_u32 v15, v9, 2, v15")
    a(f"v_mul_u32_u24 v15, {STG}, v15")
    a("v_and_b32 v16, 3, v6")
    a("v_lshlrev_b32 v16, 3, v16")
    a("v_add3_u32 v15, v15, v16, s26")
    for kb in range(4):
        a(f"s_waitcnt vmcnt({8 * (3 - kb)})")
        if kb == 0:
            stamp(a, 2)
        for t in range(4):
            for mt2 in range(2):
                mt = 2 * kb + mt2
                for nt in range(2):
                    s = SREG[(mt, nt)]
                    c = "0" if t == 0 else vr(s)
                    a(f"v_mfma_f32_16x16x32_bf16 {vr(s)}, {vr(DB + (mt * 4 + t) * 4)}, {vr(QB + (nt * 4 + t) * 4)}, {c}")
        for mt2 in range(2):
            mt = 2 * kb + mt2
            for t in range(4):
                a(f"ds_write_b128 v14, {vr(DB + (mt * 4 + t) * 4)} offset:{mt2 * 16 * STG + t * 64}")
        a("s_waitcnt lgkmcnt(0)")
        for ct in range(8):
            for hf in range(2):
                a(f"ds_read_b64_tr_b16 {vr(DB + kb * 32 + ct * 4 + hf * 2, 2)}, v15 offset:{hf * 16 * STG + ct * 32}")
        a("s_waitcnt lgkmcnt(0)")
    stamp(a, 3)
    a("s_lshl_b32 s26, s22, 14")
    a(f"s_add_u32 s26, s26, {L_SX}")
    a("v_lshlrev_b32 v16, 4, v6")
    a("v_add_u32 v17, s26, v16")
    for mt in range(8):
        for nt in range(2):
            a(f"ds_write_b128 v17, {vr(SREG[(mt, nt)])} offset:{(mt * 2 + nt) * 1024}")
    a("s_waitcnt lgkmcnt(0)")
    a("s_barrier")
    stamp(a, 4)
    a("s_lshl_b32 s26, s22, 12")
    a(f"s_add_u32 s26, s26, {L_SX}")
    a("v_add_u32 v17, s26, v16")
    T0 = 224
    tq = pool
    for w2 in range(4):
        for mt2 in range(2):
            for nt in range(2):
                a(f"ds_read_b128 {vr(tq[w2 * 4 + mt2 * 2 + nt])}, v17 offset:{w2 * 16384 + (mt2 * 2 + nt) * 1024}")
    a("s_waitcnt lgkmcnt(0)")
    for k in range(4):
        for r in range(4):
            for w2 in range(1, 4):
                a(f"v_add_f32 v{tq[k] + r}, v{tq[k] + r}, v{tq[w2 * 4 + k] + r}")
    allS = [tq[k] + r for k in range(4) for r in range(4)]
    score_round16(a, allS, 18)
    for nt in range(2):
        rs = [tq[nt] + r for r in range(4)] + [tq[2 + nt] + r for r in range(4)]
        a(f"v_max3_f32 v{20 + nt}, v{rs[0]}, v{rs[1]}, v{rs[2]}")
        a(f"v_max3_f32 v{20 + nt}, v{20 + nt}, v{rs[3]}, v{rs[4]}")
        a(f"v_max3_f32 v{20 + nt}, v{20 + nt}, v{rs[5]}, v{rs[6]}")
        a(f"v_max_f32 v{20 + nt}, v{20 + nt}, v{rs[7]}")
    a("v_lshlrev_b32 v18, 6, v8")
    a("v_lshlrev_b32 v19, 2, v9")
    a("s_lshl_b32 s26, s22, 4")
    a("v_add3_u32 v19, v18, v19, s26")
    a(f"ds_write_b32 v19, v20 offset:{L_MX}")
    a(f"ds_write_b32 v19, v21 offset:{L_MX + 1024}")
    a("s_waitcnt lgkmcnt(0)")
    a("s_barrier")
    for nt in range(2):
        for k in range(4):
            a(f"ds_read_b128 {vr(tq[4 + nt * 4 + k])}, v18 offset:{L_MX + nt * 1024 + k * 16}")
    a("s_waitcnt lgkmcnt(0)")
    for nt in range(2):
        rs = [tq[4 + nt * 4 + k] + r for k in range(4) for r in range(4)]
        a(f"v_max3_f32 v{20 + nt}, v{rs[0]}, v{rs[1]}, v{rs[2]}")
        for i in range(3, 15, 2):
            a(f"v_max3_f32 v{20 + nt}, v{20 + nt}, v{rs[i]}, v{rs[i + 1]}")
        a(f"v_max_f32 v{20 + nt}, v{20 + nt}, v{rs[15]}")
    for nt in range(2):
        rs = [tq[nt] + r for r in range(4)] + [tq[2 + nt] + r for r in range(4)]
        exp_inplace(a, rs, 20 + nt, 0)
        a(f"v_add_f32 v{22 + nt}, v{rs[0]}, v{rs[1]}")
        for r in rs[2:]:
            a(f"v_add_f32 v{22 + nt}, v{22 + nt}, v{r}")
    a(f"ds_write_b32 v19, v22 offset:{L_LB}")
    a(f"ds_write_b32 v19, v23 offset:{L_LB + 1024}")
    for nt in range(2):
        for mt2 in range(2):
            s = tq[mt2 * 2 + nt]
            a(f"v_cvt_pk_bf16_f32 v{24 + nt * 4 + mt2 * 2}, v{s}, v{s + 1}")
            a(f"v_cvt_pk_bf16_f32 v{25 + nt * 4 + mt2 * 2}, v{s + 2}, v{s + 3}")
    a("s_lshl_b32 s26, s22, 11")
    a("v_add_u32 v17, s26, v16")
    a(f"ds_write_b128 v17, {vr(24)} offset:{L_PB}")
    a(f"ds_write_b128 v17, {vr(28)} offset:{L_PB + 1024}")
    a("s_waitcnt lgkmcnt(0)")
    a("s_barrier")
    stamp(a, 5)
    PF = 192
    for kb in range(4):
        for nt in range(2):
            a(f"ds_read_b128 {vr(PF + (kb * 2 + nt) * 4)}, v16 offset:{L_PB + (kb * 2 + nt) * 1024}")
    a("s_cmp_lg_u32 s22, 0")
    a("s_cbranch_scc1 K2B_NOSTAT")
    a("v_cmp_gt_u32 vcc, 16, v6")
    a("s_nop 1")
    a("s_and_saveexec_b64 s[16:17], vcc")
    for nt in range(2):
        for k in range(4):
            a(f"ds_read_b128 {vr(tq[nt * 4 + k])}, v18 offset:{L_LB + nt * 1024 + k * 16}")
    a("s_waitcnt lgkmcnt(0)")
    for nt in range(2):
        rs = [tq[nt * 4 + k] + r for k in range(4) for r in range(4)]
        for r in rs[1:]:
            a(f"v_add_f32 v{rs[0]}, v{rs[0]}, v{r}")
    a(f"v_mov_b32 v26, v20")
    a(f"v_mov_b32 v27, v{tq[0]}")
    a(f"v_mov_b32 v28, v21")
    a(f"v_mov_b32 v29, v{tq[4]}")
    a("s_lshl_b32 s26, s2, 8")
    a(f"s_add_u32 s26, s26, 0x{WS_BSTAT:x}")
    a("v_lshlrev_b32 v30, 3, v8")
    a("v_add_u32 v30, s26, v30")
    a("global_store_dwordx2 v30, v[26:27], s[4:5]" + SC)
    a("global_store_dwordx2 v30, v[28:29], s[4:5] offset:128" + SC)
    a("s_mov_b64 exec, s[16:17]")
    a.label("K2B_NOSTAT")
    a("s_waitcnt lgkmcnt(0)")
    a("s_nop 1")
    for kb in range(4):
        for ct in range(8):
            for nt in range(2):
                o = pool[ct * 2 + nt]
                c = "0" if kb == 0 else vr(o)
                a(f"v_mfma_f32_16x16x32_bf16 {vr(o)}, {vr(DB + kb * 32 + ct * 4)}, {vr(PF + (kb * 2 + nt) * 4)}, {c}")
    stamp(a, 6)
    a("s_lshl_b32 s26, s2, 16")
    a("s_lshl_b32 s27, s22, 9")
    a("s_add_u32 s26, s26, s27")
    a(f"s_add_u32 s26, s26, 0x{WS_BPART:x}")
    a("s_add_u32 s28, s4, s26")
    a("s_addc_u32 s29, s5, 0")
    a("v_lshlrev_b32 v17, 11, v8")
    a("v_lshlrev_b32 v18, 4, v9")
    a("v_add_u32 v17, v17, v18")
    a("v_add_u32 v18, 0x8000, v17")
    a("s_nop 7")
    a("s_nop 7")
    for ct in range(8):
        for nt in range(2):
            a(f"global_store_dwordx4 v{17 + nt}, {vr(pool[ct * 2 + nt])}, s[28:29] offset:{ct * 64}{SC}")
    a("s_branch K2_END")
    a.label("K2_A")
    a(f"s_load_dwordx2 s[6:7], s[0:1], {KA['A_k']}")
    a(f"s_load_dwordx2 s[8:9], s[0:1], {KA['A_v']}")
    a("s_sub_u32 s23, s2, 128")
    a("s_lshr_b32 s24, s23, 3")
    a("s_and_b32 s25, s23, 7")
    a("s_waitcnt lgkmcnt(0)")
    a("s_lshl_b32 s26, s24, 21")
    a("s_lshl_b32 s27, s25, 16")
    a("s_add_u32 s26, s26, s27")
    a("s_lshl_b32 s27, s22, 14")
    a("s_add_u32 s26, s26, s27")
    a(f"s_add_u32 s26, s26, {6144 * 256}")
    a("s_add_u32 s6, s6, s26")
    a("s_addc_u32 s7, s7, 0")
    a("s_add_u32 s8, s8, s26")
    a("s_addc_u32 s9, s9, 0")
    QF = 16
    for r in range(QF, QF + 16):
        a(f"v_mov_b32 v{r}, 0")
    a("s_lshl_b32 s26, s24, 10")
    a("v_lshlrev_b32 v10, 8, v8")
    a("v_lshlrev_b32 v11, 4, v9")
    a("v_add_u32 v10, v10, v11")
    a("v_add_u32 v11, s26, v10")
    a("v_cmp_gt_u32 vcc, 4, v8")
    a("s_nop 1")
    a("s_and_saveexec_b64 s[16:17], vcc")
    for t in range(4):
        a(f"global_load_dwordx4 {vr(QF + 4 * t)}, v11, s[4:5] offset:{WS_QA + t * 64}{SC}")
    a("s_mov_b64 exec, s[16:17]")
    KB_ = 64
    a("v_mov_b32 v12, v10")
    for mt in range(4):
        for t in range(4):
            a(f"global_load_dwordx4 {vr(KB_ + (mt * 4 + t) * 4)}, v12, s[6:7] offset:{t * 64}")
        if mt < 3:
            a("v_add_u32 v12, 0x1000, v12")
    VB_ = 128
    a("v_lshlrev_b32 v12, 4, v6")
    for i in range(16):
        if i and i % 4 == 0:
            a("v_add_u32 v12, 0x1000, v12")
        a(f"global_load_dwordx4 {vr(VB_ + 4 * i)}, v12, s[8:9] offset:{(i % 4) * 1024}")
    stamp(a, 1)
    a(f"s_mul_i32 s26, s22, {64 * STG}")
    a(f"s_add_u32 s26, s26, {L_STG}")
    a(f"v_mul_u32_u24 v14, {STG}, v9")
    a("v_lshlrev_b32 v15, 4, v8")
    a("v_add3_u32 v14, v14, v15, s26")
    a("v_lshrrev_b32 v15, 2, v8")
    a("v_lshl_add_u32 v15, v9, 2, v15")
    a(f"v_mul_u32_u24 v15, {STG}, v15")
    a("v_and_b32 v13, 3, v6")
    a("v_lshlrev_b32 v13, 3, v13")
    a("v_add3_u32 v15, v15, v13, s26")
    SAq = [32, 36, 40, 44]
    a("s_waitcnt vmcnt(16)")
    stamp(a, 2)
    for t in range(4):
        for mt in range(4):
            c = "0" if t == 0 else vr(SAq[mt])
            a(f"v_mfma_f32_16x16x32_bf16 {vr(SAq[mt])}, {vr(KB_ + (mt * 4 + t) * 4)}, {vr(QF + 4 * t)}, {c}")
    a("s_waitcnt vmcnt(0)")
    stamp(a, 3)
    for i in range(16):
        a(f"ds_write_b128 v14, {vr(VB_ + 4 * i)} offset:{i * 4 * STG}")
    a("s_nop 7")
    allS = [SAq[mt] + r for mt in range(4) for r in range(4)]
    score_round16(a, allS, 18)
    a(f"v_max3_f32 v20, v{allS[0]}, v{allS[1]}, v{allS[2]}")
    for i in range(3, 15, 2):
        a(f"v_max3_f32 v20, v20, v{allS[i]}, v{allS[i + 1]}")
    a(f"v_max_f32 v20, v20, v{allS[15]}")
    make_xor_addrs(a, 6, [16, 32], 21)
    a("s_waitcnt lgkmcnt(0)")
    bperm_reduce(a, "v_max_f32", 20, [21, 22], 23)
    exp_inplace(a, allS, 20, 0)
    a(f"v_add_f32 v24, v{allS[0]}, v{allS[1]}")
    for r in allS[2:]:
        a(f"v_add_f32 v24, v24, v{r}")
    bperm_reduce(a, "v_add_f32", 24, [21, 22], 23)
    for kb in range(2):
        for mt2 in range(2):
            s = SAq[2 * kb + mt2]
            a(f"v_cvt_pk_bf16_f32 v{48 + kb * 4 + mt2 * 2}, v{s}, v{s + 1}")
            a(f"v_cvt_pk_bf16_f32 v{49 + kb * 4 + mt2 * 2}, v{s + 2}, v{s + 3}")
    for kb in range(2):
        for ct in range(8):
            for hf in range(2):
                a(f"ds_read_b64_tr_b16 {vr(KB_ + (kb * 8 + ct) * 4 + hf * 2, 2)}, v15 offset:{(kb * 32 + hf * 16) * STG + ct * 32}")
    a("s_waitcnt lgkmcnt(0)")
    OA = 192
    for kb in range(2):
        for ct in range(8):
            c = "0" if kb == 0 else vr(OA + 4 * ct)
            a(f"v_mfma_f32_16x16x32_bf16 {vr(OA + 4 * ct)}, {vr(KB_ + (kb * 8 + ct) * 4)}, {vr(48 + kb * 4)}, {c}")
    stamp(a, 6)
    a("s_lshl_b32 s26, s24, 5")
    a("s_lshl_b32 s27, s25, 2")
    a("s_add_u32 s26, s26, s27")
    a("s_add_u32 s26, s26, s22")
    a("s_lshl_b32 s27, s26, 11")
    a(f"s_add_u32 s27, s27, 0x{WS_APART:x}")
    a("v_lshlrev_b32 v17, 9, v8")
    a("v_lshlrev_b32 v18, 4, v9")
    a("v_add3_u32 v17, v17, v18, s27")
    a("s_lshl_b32 s28, s26, 5")
    a(f"s_add_u32 s28, s28, 0x{WS_ASTAT:x}")
    a("v_lshlrev_b32 v18, 3, v8")
    a("v_add_u32 v18, s28, v18")
    a("v_mov_b32 v26, v20")
    a("v_mov_b32 v27, v24")
    a("v_cmp_gt_u32 vcc, 4, v8")
    a("v_cmp_gt_u32 s[18:19], 4, v6")
    a("s_nop 7")
    a("s_nop 7")
    a("s_and_saveexec_b64 s[16:17], vcc")
    for ct in range(8):
        a(f"global_store_dwordx4 v17, {vr(OA + 4 * ct)}, s[4:5] offset:{ct * 64}{SC}")
    a("s_mov_b64 exec, s[18:19]")
    a("global_store_dwordx2 v18, v[26:27], s[4:5]" + SC)
    a("s_mov_b64 exec, s[16:17]")
    a.label("K2_END")
    if FUSED:
        return
    stamp(a, 7)
    stamp_flush(a, 1)
    a.label("K2_EXIT")
    a("s_endpgm")


def fma16(a, wsrc, m0, m1, acc, tmp):
    unpack8(a, wsrc, tmp)
    for e in range(8):
        a(f"v_fmac_f32 v{acc + e}, v{tmp + e}, v{m0}")
        a(f"v_fmac_f32 v{acc + 8 + e}, v{tmp + e}, v{m1}")


def final_out_reduce(a, task_sreg, acc):
    a("v_lshlrev_b32 v12, 12, v7")
    a("v_lshlrev_b32 v13, 5, v6")
    a("v_add_u32 v12, v12, v13")
    a(f"ds_write_b128 v12, {vr(acc)}")
    a(f"ds_write_b128 v12, {vr(acc + 4)} offset:16")
    a(f"ds_write_b128 v12, {vr(acc + 8)} offset:2048")
    a(f"ds_write_b128 v12, {vr(acc + 12)} offset:2064")
    a("s_waitcnt lgkmcnt(0)")
    a("s_barrier")
    a("v_lshlrev_b32 v12, 4, v0")
    for w2 in range(4):
        a(f"ds_read_b128 {vr(32 + 4 * w2)}, v12 offset:{w2 * 4096}")
    a("s_waitcnt lgkmcnt(0)")
    for r in range(4):
        for w2 in range(1, 4):
            a(f"v_add_f32 v{32 + r}, v{32 + r}, v{32 + 4 * w2 + r}")
    a(f"s_lshl_b32 s26, s{task_sreg}, 12")
    a(f"s_add_u32 s26, s26, 0x{WS_OUTP:x}")
    a("v_add_u32 v12, s26, v12")
    a(f"global_store_dwordx4 v12, {vr(32)}, s[4:5]{SC}")


def gen_k3(a):
    kernel_header(a, "k3prj_kernel")
    if not FUSED:
        a("s_cmp_ge_u32 s2, 256")
        a("s_cbranch_scc1 K3_EXIT")
        stamp_init(a)
        a(f"s_load_dwordx2 s[4:5], s[0:1], {KA['ws']}")
    a(f"s_mov_b32 s21, 0x{LOG2E:x}")
    a("v_and_b32 v6, 63, v0")
    a("v_lshrrev_b32 v7, 6, v0")
    a("s_cmp_ge_u32 s2, 128")
    a("s_cbranch_scc1 K3_A")
    a(f"s_load_dwordx2 s[6:7], s[0:1], {KA['B_wuv']}")
    a(f"s_load_dwordx2 s[8:9], s[0:1], {KA['B_wo']}")
    a("s_and_b32 s12, s2, 31")
    a("s_lshr_b32 s13, s2, 5")
    a("v_lshrrev_b32 v1, 4, v0")
    a("v_and_b32 v2, 15, v0")
    a("s_lshl_b32 s14, s12, 3")
    a(f"s_add_u32 s14, s14, 0x{WS_BSTAT:x}")
    a("v_lshlrev_b32 v3, 8, v0")
    a("v_add_u32 v3, s14, v3")
    a("v_cmp_gt_u32 vcc, 128, v0")
    a("s_waitcnt lgkmcnt(0)")
    a("s_and_saveexec_b64 s[16:17], vcc")
    a("global_load_dwordx2 v[4:5], v3, s[4:5]" + SC)
    a("s_mov_b64 exec, s[16:17]")
    a("v_lshrrev_b32 v3, 5, v0")
    a("v_lshlrev_b32 v3, 20, v3")
    a("v_and_b32 v8, 31, v0")
    a("v_lshlrev_b32 v8, 4, v8")
    a("s_lshl_b32 s14, s12, 11")
    a("s_lshl_b32 s15, s13, 9")
    a("s_add_u32 s14, s14, s15")
    a("v_add3_u32 v3, v3, v8, s14")
    a(f"s_add_u32 s28, s4, 0x{WS_BPART:x}")
    a("s_addc_u32 s29, s5, 0")
    OP = 64
    for i in range(16):
        a(f"global_load_dwordx4 {vr(OP + 4 * i)}, v3, s[28:29]{SC}")
        if i < 15:
            a("v_add_u32 v3, 0x10000, v3")
    a("s_lshl_b32 s14, s13, 20")
    a("s_lshl_b32 s15, s12, 8")
    a("s_add_u32 s14, s14, s15")
    a("v_lshlrev_b32 v3, 16, v1")
    a("v_lshlrev_b32 v8, 4, v2")
    a("v_add3_u32 v3, v3, v8, s14")
    UV = 128
    for i in range(8):
        a(f"global_load_dwordx4 {vr(UV + 4 * i)}, v3, s[6:7]")
        if i < 7:
            a("v_add_u32 v3, 0x2000, v3")
    stamp(a, 1)
    a("s_waitcnt vmcnt(24)")
    make_xor_addrs(a, 6, [1, 2, 4, 8, 16, 32], 56)
    a("v_mov_b32 v9, v4")
    bperm_reduce(a, "v_max_f32", 9, range(56, 62), 10)
    a("v_sub_f32 v10, v4, v9")
    a("v_mul_f32 v10, s21, v10")
    a("v_exp_f32 v10, v10")
    a("s_nop 1")
    a("v_mul_f32 v11, v10, v5")
    bperm_reduce(a, "v_add_f32", 11, range(56, 62), 12)
    a("v_rcp_f32 v11, v11")
    a("s_nop 1")
    a("v_mul_f32 v10, v10, v11")
    a("v_lshlrev_b32 v12, 2, v0")
    a("s_and_saveexec_b64 s[16:17], vcc")
    a("ds_write_b32 v12, v10")
    a("s_mov_b64 exec, s[16:17]")
    a("s_waitcnt lgkmcnt(0)")
    a("s_barrier")
    stamp(a, 2)
    a("s_lshl_b32 s14, s12, 17")
    a("v_lshlrev_b32 v3, 15, v7")
    a("v_lshlrev_b32 v8, 4, v6")
    a("v_add3_u32 v3, v3, v8, s14")
    WO = 160
    a("v_lshrrev_b32 v12, 5, v0")
    a("v_lshlrev_b32 v12, 6, v12")
    for k in range(4):
        a(f"ds_read_b128 {vr(32 + 4 * k)}, v12 offset:{k * 16}")
    a("s_waitcnt vmcnt(8) lgkmcnt(0)")
    for i in range(16):
        for r in range(4):
            if i == 0:
                a(f"v_mul_f32 v{16 + r}, v{OP + r}, v32")
            else:
                a(f"v_fmac_f32 v{16 + r}, v{OP + 4 * i + r}, v{32 + i}")
    a("v_lshlrev_b32 v12, 4, v0")
    a(f"ds_write_b128 v12, {vr(16)} offset:1024")
    a("s_waitcnt lgkmcnt(0)")
    a("s_barrier")
    a("v_lshrrev_b32 v12, 7, v0")
    a("v_lshlrev_b32 v12, 11, v12")
    a("v_and_b32 v13, 127, v0")
    a("v_lshlrev_b32 v13, 2, v13")
    a("v_add_u32 v12, v12, v13")
    for jq in range(4):
        a(f"ds_read_b32 v{32 + jq}, v12 offset:{1024 + jq * 512}")
    a("s_waitcnt lgkmcnt(0)")
    a("v_add_f32 v32, v32, v33")
    a("v_add_f32 v34, v34, v35")
    a("v_add_f32 v32, v32, v34")
    a("v_lshlrev_b32 v12, 2, v0")
    a("ds_write_b32 v12, v32 offset:8192")
    for i in range(24):
        a(f"global_load_dwordx4 {vr(WO + 4 * i)}, v3, s[8:9]")
        a("v_add_u32 v3, 0x400, v3")
    a("s_waitcnt lgkmcnt(0)")
    a("s_barrier")
    stamp(a, 3)
    a("v_lshlrev_b32 v12, 5, v1")
    for b in range(2):
        for k in range(2):
            a(f"ds_read_b128 {vr(32 + (b * 2 + k) * 4)}, v12 offset:{8192 + b * 512 + k * 16}")
    for r in range(16, 32):
        a(f"v_mov_b32 v{r}, 0")
    a("s_waitcnt vmcnt(24) lgkmcnt(0)")
    for i in range(8):
        fma16(a, UV + 4 * i, 32 + i, 40 + i, 16, 48)
    a("v_lshlrev_b32 v12, 10, v1")
    a("v_lshlrev_b32 v13, 5, v2")
    a("v_add_u32 v12, v12, v13")
    a(f"ds_write_b128 v12, {vr(16)} offset:16384")
    a(f"ds_write_b128 v12, {vr(20)} offset:16400")
    a(f"ds_write_b128 v12, {vr(24)} offset:16896")
    a(f"ds_write_b128 v12, {vr(28)} offset:16912")
    for i in range(24, 32):
        a(f"global_load_dwordx4 {vr(64 + 4 * (i - 24))}, v3, s[8:9]")
        if i < 31:
            a("v_add_u32 v3, 0x400, v3")
    a("s_waitcnt lgkmcnt(0)")
    a("s_barrier")
    a("v_lshlrev_b32 v12, 2, v0")
    for rg in range(16):
        a(f"ds_read_b32 v{32 + rg}, v12 offset:{16384 + rg * 1024}")
    a("s_waitcnt lgkmcnt(0)")
    for rg in range(1, 16):
        a(f"v_add_f32 v32, v32, v{32 + rg}")
    a("ds_write_b32 v12, v32 offset:32768")
    a("s_waitcnt lgkmcnt(0)")
    a("s_barrier")
    stamp(a, 4)
    a("v_lshlrev_b32 v12, 7, v7")
    MUL = 96
    for b in range(2):
        for k in range(8):
            a(f"ds_read_b128 {vr(MUL + b * 32 + 4 * k)}, v12 offset:{32768 + b * 512 + k * 16}")
    for r in range(16, 32):
        a(f"v_mov_b32 v{r}, 0")
    a("s_waitcnt vmcnt(0) lgkmcnt(0)")
    for i in range(32):
        src = WO + 4 * i if i < 24 else 64 + 4 * (i - 24)
        fma16(a, src, MUL + i, MUL + 32 + i, 16, 48)
    stamp(a, 5)
    a("s_barrier")
    a("s_add_u32 s15, s2, 128")
    final_out_reduce(a, 15, 16)
    a("s_branch K3_END")
    a.label("K3_A")
    a(f"s_load_dwordx2 s[8:9], s[0:1], {KA['A_wo']}")
    a("s_sub_u32 s11, s2, 128")
    a("s_and_b32 s12, s11, 31")
    a("s_lshr_b32 s13, s11, 5")
    a("s_lshr_b32 s14, s12, 2")
    a("s_and_b32 s15, s12, 3")
    a("v_lshrrev_b32 v1, 5, v0")
    a("v_and_b32 v2, 31, v0")
    a("v_lshlrev_b32 v3, 8, v1")
    a("v_add_u32 v3, v3, v2")
    a("s_lshl_b32 s18, s14, 5")
    a("v_add_u32 v3, s18, v3")
    a("v_lshlrev_b32 v4, 5, v3")
    a("s_lshl_b32 s19, s15, 3")
    a(f"s_add_u32 s19, s19, 0x{WS_ASTAT:x}")
    a("v_add_u32 v4, s19, v4")
    a("v_cmp_gt_u32 vcc, 64, v0")
    a("s_waitcnt lgkmcnt(0)")
    a("s_and_saveexec_b64 s[16:17], vcc")
    a("global_load_dwordx2 v[4:5], v4, s[4:5]" + SC)
    a("s_mov_b64 exec, s[16:17]")
    a("v_lshrrev_b32 v1, 7, v0")
    a("v_bfe_u32 v2, v0, 2, 5")
    a("v_lshlrev_b32 v3, 8, v1")
    a("v_add_u32 v3, v3, v2")
    a("v_add_u32 v3, s18, v3")
    a("v_lshlrev_b32 v3, 11, v3")
    a("v_and_b32 v8, 3, v0")
    a("v_lshlrev_b32 v8, 5, v8")
    a("s_lshl_b32 s19, s15, 9")
    a("s_lshl_b32 s22, s13, 7")
    a("s_add_u32 s19, s19, s22")
    a(f"s_add_u32 s19, s19, 0x{WS_APART:x}")
    a("v_add3_u32 v3, v3, v8, s19")
    a(f"global_load_dwordx4 {vr(64)}, v3, s[4:5]{SC}")
    a(f"global_load_dwordx4 {vr(68)}, v3, s[4:5] offset:16{SC}")
    a("s_lshl_b32 s22, s12, 17")
    a("s_lshl_b32 s23, s13, 15")
    a("s_add_u32 s22, s22, s23")
    a("v_lshlrev_b32 v3, 13, v7")
    a("v_lshlrev_b32 v8, 4, v6")
    a("v_add3_u32 v3, v3, v8, s22")
    for i in range(8):
        a(f"global_load_dwordx4 {vr(96 + 4 * i)}, v3, s[8:9] offset:{(i % 4) * 1024}")
        if i == 3:
            a("v_add_u32 v3, 0x1000, v3")
    a("s_waitcnt vmcnt(10)")
    make_xor_addrs(a, 6, [1, 2, 4, 8, 16], 56)
    a("v_mov_b32 v9, v4")
    bperm_reduce(a, "v_max_f32", 9, range(56, 61), 10)
    a("v_sub_f32 v10, v4, v9")
    a("v_mul_f32 v10, s21, v10")
    a("v_exp_f32 v10, v10")
    a("s_nop 1")
    a("v_mul_f32 v11, v10, v5")
    bperm_reduce(a, "v_add_f32", 11, range(56, 61), 12)
    a("v_rcp_f32 v11, v11")
    a("s_nop 1")
    a("v_mul_f32 v10, v10, v11")
    a("v_lshlrev_b32 v12, 2, v0")
    a("s_and_saveexec_b64 s[16:17], vcc")
    a("ds_write_b32 v12, v10")
    a("s_mov_b64 exec, s[16:17]")
    a("s_waitcnt lgkmcnt(0)")
    a("s_barrier")
    a("v_lshrrev_b32 v12, 2, v0")
    a("v_lshlrev_b32 v12, 2, v12")
    a("ds_read_b32 v13, v12")
    a("s_waitcnt vmcnt(8) lgkmcnt(0)")
    for r in range(8):
        a(f"v_mul_f32 v{64 + r}, v{64 + r}, v13")
    a("v_lshlrev_b32 v12, 5, v0")
    a(f"ds_write_b128 v12, {vr(64)} offset:1024")
    a(f"ds_write_b128 v12, {vr(68)} offset:1040")
    a("s_waitcnt lgkmcnt(0)")
    a("s_barrier")
    a("v_lshrrev_b32 v12, 5, v0")
    a("v_lshlrev_b32 v12, 12, v12")
    a("v_and_b32 v13, 31, v0")
    a("v_lshlrev_b32 v13, 2, v13")
    a("v_add_u32 v12, v12, v13")
    a("s_and_saveexec_b64 s[16:17], vcc")
    a("s_cbranch_execz K3A_SKIP")
    for sp in range(32):
        a(f"ds_read_b32 v{128 + sp}, v12 offset:{1024 + sp * 128}")
    a("s_waitcnt lgkmcnt(0)")
    for sp in range(1, 32):
        a(f"v_add_f32 v128, v128, v{128 + sp}")
    bf16_round_pair(a, 128, 129, 130)
    a("v_lshlrev_b32 v13, 2, v0")
    a("ds_write_b32 v13, v128 offset:16384")
    a.label("K3A_SKIP")
    a("s_mov_b64 exec, s[16:17]")
    a("s_waitcnt lgkmcnt(0)")
    a("s_barrier")
    a("v_lshlrev_b32 v12, 5, v7")
    for b in range(2):
        for k in range(2):
            a(f"ds_read_b128 {vr(32 + (b * 2 + k) * 4)}, v12 offset:{16384 + b * 128 + k * 16}")
    for r in range(16, 32):
        a(f"v_mov_b32 v{r}, 0")
    a("s_waitcnt vmcnt(0) lgkmcnt(0)")
    for i in range(8):
        fma16(a, 96 + 4 * i, 32 + i, 40 + i, 16, 48)
    a("s_barrier")
    final_out_reduce(a, 11, 16)
    a.label("K3_END")
    if FUSED:
        return
    stamp(a, 7)
    stamp_flush(a, 2)
    a.label("K3_EXIT")
    a("s_endpgm")


def gen_k4(a):
    kernel_header(a, "k4fin_kernel")
    a("s_cmp_ge_u32 s2, 16")
    a("s_cbranch_scc1 K4_EXIT")
    if not FUSED:
        stamp_init(a)
        a(f"s_load_dwordx2 s[4:5], s[0:1], {KA['ws']}")
    a(f"s_load_dwordx2 s[6:7], s[0:1], {KA['out']}")
    a("s_lshr_b32 s10, s2, 3")
    a("s_bfe_u32 s11, s2, 0x10002")
    a("s_and_b32 s12, s2, 3")
    a("v_lshrrev_b32 v1, 5, v0")
    a("v_and_b32 v2, 31, v0")
    a("s_lshl_b32 s13, s10, 19")
    a("s_lshl_b32 s14, s11, 11")
    a("s_add_u32 s13, s13, s14")
    a("s_lshl_b32 s14, s12, 9")
    a("s_add_u32 s13, s13, s14")
    a(f"s_add_u32 s13, s13, 0x{WS_OUTP:x}")
    a("v_lshlrev_b32 v3, 16, v1")
    a("v_lshlrev_b32 v4, 4, v2")
    a("v_add3_u32 v3, v3, v4, s13")
    a("s_waitcnt lgkmcnt(0)")
    for i in range(16):
        a(f"global_load_dwordx4 {vr(16 + 4 * i)}, v3, s[4:5]{SC}")
        if i < 15:
            a("v_add_u32 v3, 0x1000, v3")
    a("s_waitcnt vmcnt(0)")
    for i in range(1, 16):
        for r in range(4):
            a(f"v_add_f32 v{16 + r}, v{16 + r}, v{16 + 4 * i + r}")
    a("v_lshlrev_b32 v5, 4, v0")
    a(f"ds_write_b128 v5, {vr(16)}")
    a("s_waitcnt lgkmcnt(0)")
    a("s_barrier")
    a("v_cmp_gt_u32 vcc, 32, v0")
    a("s_nop 1")
    a("s_and_saveexec_b64 s[16:17], vcc")
    a("s_cbranch_execz K4_SKIP")
    for tg in range(8):
        a(f"ds_read_b128 {vr(16 + 4 * tg)}, v5 offset:{tg * 512}")
    a("s_waitcnt lgkmcnt(0)")
    for tg in range(1, 8):
        for r in range(4):
            a(f"v_add_f32 v{16 + r}, v{16 + r}, v{16 + 4 * tg + r}")
    a("v_cvt_pk_bf16_f32 v8, v16, v17")
    a("v_cvt_pk_bf16_f32 v9, v18, v19")
    a("s_lshl_b32 s13, s11, 11")
    a("s_lshl_b32 s14, s10, 10")
    a("s_add_u32 s13, s13, s14")
    a("s_lshl_b32 s14, s12, 8")
    a("s_add_u32 s13, s13, s14")
    a("v_lshlrev_b32 v6, 3, v2")
    a("v_add_u32 v6, s13, v6")
    a("global_store_dwordx2 v6, v[8:9], s[6:7]")
    a.label("K4_SKIP")
    a("s_mov_b64 exec, s[16:17]")
    a.label("K4_END")
    stamp(a, 7)
    stamp_flush(a, 3)
    a.label("K4_EXIT")
    a("s_endpgm")


def grid_barrier(a, idx, target=256):
    L = f"GB{idx}"
    a("s_waitcnt vmcnt(0) lgkmcnt(0)")
    a("s_barrier")
    a("v_cmp_eq_u32 vcc, 0, v0")
    a("v_mov_b32 v1, 1")
    a(f"v_mov_b32 v2, {idx * 64}")
    a("s_nop 1")
    a("s_and_saveexec_b64 s[16:17], vcc")
    a(f"s_cbranch_execz {L}_W")
    a("global_atomic_add v2, v1, s[30:31] sc1")
    a("s_mov_b32 s18, 0")
    a.label(f"{L}_P")
    a("global_load_dword v3, v2, s[30:31] sc1")
    a("s_waitcnt vmcnt(0)")
    a("v_readfirstlane_b32 s19, v3")
    a("s_add_u32 s18, s18, 1")
    a(f"s_cmp_ge_u32 s19, {target}")
    a(f"s_cbranch_scc1 {L}_W")
    a("s_sleep 2")
    a("s_cmp_lt_u32 s18, 0x400000")
    a(f"s_cbranch_scc1 {L}_P")
    a.label(f"{L}_W")
    a("s_mov_b64 exec, s[16:17]")
    a("s_barrier")


HEADER = open("cdna_kernels/" + NAME + ".s.ref").read().split("; @launch")[0]


def main_fused(out):
    a = Asm()
    name = NAME + "_kernel"
    a.raw(f".globl {name}")
    a.raw(".p2align 8")
    a.raw(f".type {name},@function")
    a.label(name)
    a("s_cmp_ge_u32 s2, 256")
    a("s_cbranch_scc1 K4_EXIT")
    a(f"s_load_dwordx2 s[4:5], s[0:1], {KA['ws']}")
    a(f"s_load_dwordx2 s[30:31], s[0:1], {KA['dbg']}")
    stamp_init(a)
    gen_k1(a)
    stamp(a, 8)
    grid_barrier(a, 0)
    stamp(a, 9)
    gen_k2(a)
    stamp(a, 10)
    grid_barrier(a, 1)
    stamp(a, 11)
    gen_k3(a)
    stamp(a, 12)
    grid_barrier(a, 2)
    stamp(a, 13)
    gen_k4(a)
    txt = HEADER
    txt += f"; @launch grid=(256,1,1) block=(256,1,1) lds={K2_LDS}\n"
    txt += '.amdgcn_target "amdgcn-amd-amdhsa--gfx950"\n.text\n'
    txt += a.text()
    txt += '.section .rodata,"a"\n.p2align 6\n'
    txt += descriptor(name, 256)
    open(out, "w").write(txt)


def main(out):
    if FUSED:
        return main_fused(out)
    a = Asm()
    gen_k1(a)
    gen_k2(a)
    gen_k3(a)
    gen_k4(a)
    txt = HEADER
    txt += "; @launch kernel=k1q_kernel grid=(192,1,1) block=(256,1,1) lds=20480\n"
    txt += f"; @launch kernel=k2att_kernel grid=(256,1,1) block=(256,1,1) lds={K2_LDS}\n"
    txt += "; @launch kernel=k3prj_kernel grid=(256,1,1) block=(256,1,1) lds=36864\n"
    txt += "; @launch kernel=k4fin_kernel grid=(16,1,1) block=(256,1,1) lds=4096\n"
    txt += '.amdgcn_target "amdgcn-amd-amdhsa--gfx950"\n.text\n'
    txt += a.text()
    txt += '.section .rodata,"a"\n.p2align 6\n'
    for k in ["k1q_kernel", "k2att_kernel", "k3prj_kernel", "k4fin_kernel"]:
        txt += descriptor(k, 256)
    open(out, "w").write(txt)


if __name__ == "__main__":
    if len(sys.argv) > 2 and sys.argv[2] == "stamp":
        STAMP = True
    main(sys.argv[1] if len(sys.argv) > 1 else "cdna_kernels/" + NAME + ".s")
```

```python
import sys

NAME = "concat_heads__sliding_block_cached__compressed_kv_cla__decode"

WS_QA    = 0x0
WS_QABS  = 0x10000
WS_APART = 0x100000
WS_ASTAT = 0x200000
WS_BSTAT = 0x210000
WS_BPART = 0x400000
WS_OUTP  = 0x1000000

KA = dict(A_x=0, A_k=8, A_v=16, A_wq=24, A_wo=32, B_x=40, B_ckv=48, B_wq=56, B_wuk=64,
          B_wuv=72, B_wo=80, out=88, dbg=96, ws=104)

LOG2E = 0x3fb8aa3b
SCALE = 0x3db504f3
HIMASK = 0xffff0000
STG = 288


class Asm:
    def __init__(self):
        self.lines = []

    def __call__(self, s):
        for ln in s.split("\n"):
            self.lines.append("    " + ln.strip())

    def label(self, s):
        self.lines.append(s + ":")

    def raw(self, s):
        self.lines.append(s)

    def text(self):
        return "\n".join(self.lines) + "\n"


def vr(base, n=4):
    return f"v[{base}:{base + n - 1}]"


def ar_(base, n=4):
    return f"a[{base}:{base + n - 1}]"


def unpack8(a, src, dst):
    for p in range(4):
        a(f"v_lshlrev_b32 v{dst + 2 * p}, 16, v{src + p}")
        a(f"v_and_b32 v{dst + 2 * p + 1}, 0x{HIMASK:x}, v{src + p}")


def unpack1(a, src_reg, idx, dst):
    r = src_reg + (idx >> 1)
    if idx & 1:
        a(f"v_and_b32 v{dst}, 0x{HIMASK:x}, v{r}")
    else:
        a(f"v_lshlrev_b32 v{dst}, 16, v{r}")


def bf16_round_pair(a, x0, x1, tmp):
    a(f"v_cvt_pk_bf16_f32 v{tmp}, v{x0}, v{x1}")
    a(f"v_lshlrev_b32 v{x0}, 16, v{tmp}")
    a(f"v_and_b32 v{x1}, 0x{HIMASK:x}, v{tmp}")


def bperm_reduce(a, op, val, addr_regs, tmp):
    for ar in addr_regs:
        a(f"ds_bpermute_b32 v{tmp}, v{ar}, v{val}")
        a("s_waitcnt lgkmcnt(0)")
        a(f"{op} v{val}, v{val}, v{tmp}")


def make_xor_addrs(a, lane, masks, dst0):
    for i, m in enumerate(masks):
        a(f"v_xor_b32 v{dst0 + i}, {m}, v{lane}")
        a(f"v_lshlrev_b32 v{dst0 + i}, 2, v{dst0 + i}")


STAMP = False
FUSED = True
SC = ""
SCQ = " sc1"
WS_STAMP = 0x2000000


CUR_PHASE = [0]
PH_MAP = {1: {0: 0, 1: 1, 2: 2}, 2: {1: 5, 3: 6, 5: 7}, 3: {1: 10, 3: 11, 5: 12}, 4: {}}


def stamp_init(a):
    if STAMP:
        for r in range(64, 96):
            a(f"s_mov_b32 s{r}, 0")
        stamp_slot(a, 0)


def stamp_slot(a, k):
    if STAMP:
        a(f"s_memrealtime s[{64 + 2 * k}:{65 + 2 * k}]")


def stamp(a, k):
    if STAMP:
        m = PH_MAP.get(CUR_PHASE[0], {})
        if k in m:
            stamp_slot(a, m[k])


def stamp_flush(a, kidx):
    if not STAMP:
        return
    a("s_waitcnt vmcnt(0) lgkmcnt(0)")
    a("v_lshrrev_b32 v1, 6, v0")
    a("s_nop 1")
    a("v_readfirstlane_b32 s32, v1")
    a(f"s_lshl_b32 s33, s2, 9")
    a("s_lshl_b32 s32, s32, 7")
    a("s_add_u32 s33, s33, s32")
    a(f"s_add_u32 s33, s33, 0x{WS_STAMP:x}")
    a("v_mov_b32 v2, s33")
    for k in range(32):
        a(f"v_mov_b32 v{4 + k}, s{64 + k}")
    a("s_mov_b64 s[34:35], exec")
    a("s_mov_b64 exec, 1")
    a("s_nop 3")
    for k in range(8):
        a(f"global_store_dwordx4 v2, {vr(4 + 4 * k)}, s[4:5] offset:{16 * k}")
    a("s_mov_b64 exec, s[34:35]")


def kernel_header(a, name):
    if FUSED:
        return
    a.raw(f".globl {name}")
    a.raw(".p2align 8")
    a.raw(f".type {name},@function")
    a.label(name)


def descriptor(name, vgpr, sgpr=96):
    acc = (vgpr + 3) // 4 * 4
    return f""".amdhsa_kernel {name}
  .amdhsa_next_free_vgpr {vgpr}
  .amdhsa_next_free_sgpr {sgpr}
  .amdhsa_accum_offset {acc}
  .amdhsa_group_segment_fixed_size 0
  .amdhsa_kernarg_size 112
  .amdhsa_user_sgpr_count 2
  .amdhsa_user_sgpr_kernarg_segment_ptr 1
  .amdhsa_system_sgpr_workgroup_id_x 1
.end_amdhsa_kernel
"""


def gen_k1(a):
    kernel_header(a, "k1q_kernel")
    if FUSED:
        a("s_cmp_ge_u32 s2, 192")
        a("s_cbranch_scc1 K1_END")
    else:
        a("s_cmp_ge_u32 s2, 192")
        a("s_cbranch_scc1 K1_EXIT")
        stamp_init(a)
        a(f"s_load_dwordx2 s[4:5], s[0:1], {KA['ws']}")
    a("s_cmp_ge_u32 s2, 128")
    a("s_cbranch_scc1 K1_A")
    a(f"s_load_dwordx2 s[6:7], s[0:1], {KA['B_x']}")
    a(f"s_load_dwordx2 s[8:9], s[0:1], {KA['B_wq']}")
    a(f"s_load_dwordx2 s[10:11], s[0:1], {KA['B_wuk']}")
    a("s_and_b32 s12, s2, 31")
    a("s_lshr_b32 s13, s2, 5")
    a("s_lshl_b32 s14, s12, 8")
    a("v_lshrrev_b32 v1, 4, v0")
    a("v_and_b32 v2, 15, v0")
    a("v_lshlrev_b32 v3, 18, v1")
    a("v_lshlrev_b32 v4, 4, v2")
    a("v_add3_u32 v3, v3, v4, s14")
    a("v_lshlrev_b32 v5, 6, v1")
    a("v_and_b32 v6, 63, v0")
    a("v_lshrrev_b32 v7, 6, v0")
    a("v_and_b32 v8, 15, v6")
    a("v_lshrrev_b32 v9, 4, v6")
    a("s_lshl_b32 s15, s13, 7")
    a("v_lshlrev_b32 v10, 5, v7")
    a("v_add3_u32 v10, v10, v8, s15")
    a("v_lshlrev_b32 v10, 13, v10")
    a("v_lshlrev_b32 v11, 4, v9")
    a("v_add3_u32 v10, v10, v11, s14")
    a("v_add_u32 v11, 0x20000, v10")
    a("s_waitcnt lgkmcnt(0)")
    XB = [192, 208]
    for b in range(2):
        for k in range(4):
            a(f"global_load_dwordx4 {vr(XB[b] + 4 * k)}, v5, s[6:7] offset:{b * 1024 + k * 16}")
    W0 = 64
    for i in range(32):
        a(f"global_load_dwordx4 {vr(W0 + 4 * i)}, v3, s[8:9]")
        a("v_add_u32 v3, 0x2000, v3")
    UK = 224
    for mt in range(2):
        for t in range(4):
            a(f"global_load_dwordx4 {vr(UK + (mt * 4 + t) * 4)}, v{10 + mt}, s[10:11] offset:{t * 64}")
    stamp(a, 1)
    for r in range(16, 32):
        a(f"v_mov_b32 v{r}, 0")
    for i in range(32):
        a(f"s_waitcnt vmcnt({39 - i})")
        unpack8(a, W0 + 4 * i, 32)
        unpack1(a, XB[0], i, 40)
        unpack1(a, XB[1], i, 41)
        for e in range(8):
            a(f"v_fmac_f32 v{16 + e}, v{32 + e}, v40")
            a(f"v_fmac_f32 v{24 + e}, v{32 + e}, v41")
    stamp(a, 2)
    a("v_lshlrev_b32 v12, 10, v1")
    a("v_lshlrev_b32 v13, 5, v2")
    a("v_add_u32 v12, v12, v13")
    a(f"ds_write_b128 v12, {vr(16)}")
    a(f"ds_write_b128 v12, {vr(20)} offset:16")
    a(f"ds_write_b128 v12, {vr(24)} offset:512")
    a(f"ds_write_b128 v12, {vr(28)} offset:528")
    a("s_waitcnt lgkmcnt(0)")
    a("s_barrier")
    a("v_lshlrev_b32 v12, 2, v0")
    for rg in range(16):
        a(f"ds_read_b32 v{32 + rg}, v12 offset:{rg * 1024}")
    a("s_waitcnt lgkmcnt(0)")
    for rg in range(1, 16):
        a(f"v_add_f32 v32, v32, v{32 + rg}")
    a("v_cvt_pk_bf16_f32 v33, v32, v32")
    a("v_lshlrev_b32 v13, 1, v0")
    a("ds_write_b16 v13, v33 offset:16384")
    QF = 64
    for r in range(QF, QF + 16):
        a(f"v_mov_b32 v{r}, 0")
    a("s_waitcnt lgkmcnt(0)")
    a("s_barrier")
    stamp(a, 3)
    a("v_cmp_gt_u32 vcc, 2, v8")
    a("v_lshlrev_b32 v12, 8, v8")
    a("v_lshlrev_b32 v13, 4, v9")
    a("v_add_u32 v12, v12, v13")
    a("s_nop 1")
    a("s_and_saveexec_b64 s[16:17], vcc")
    for t in range(4):
        a(f"ds_read_b128 {vr(QF + 4 * t)}, v12 offset:{16384 + t * 64}")
    a("s_mov_b64 exec, s[16:17]")
    a("s_waitcnt vmcnt(0) lgkmcnt(0)")
    D0 = 96
    for mt in range(2):
        for t in range(4):
            c = "0" if t == 0 else vr(D0 + 4 * mt)
            a(f"v_mfma_f32_16x16x32_bf16 {vr(D0 + 4 * mt)}, {vr(UK + (mt * 4 + t) * 4)}, {vr(QF + 4 * t)}, {c}")
    a("s_nop 7")
    a("s_nop 7")
    for mt in range(2):
        a(f"v_cvt_pk_bf16_f32 v{104 + 2 * mt}, v{D0 + 4 * mt}, v{D0 + 4 * mt + 1}")
        a(f"v_cvt_pk_bf16_f32 v{105 + 2 * mt}, v{D0 + 4 * mt + 2}, v{D0 + 4 * mt + 3}")
    a("v_lshlrev_b32 v12, 15, v8")
    a("v_lshlrev_b32 v13, 6, v7")
    a("v_lshlrev_b32 v14, 3, v9")
    a("v_add3_u32 v12, v12, v13, v14")
    a("s_lshl_b32 s18, s12, 10")
    a("s_lshl_b32 s19, s13, 8")
    a("s_add_u32 s18, s18, s19")
    a(f"s_add_u32 s18, s18, 0x{WS_QABS:x}")
    a("v_add_u32 v12, s18, v12")
    a("s_and_saveexec_b64 s[16:17], vcc")
    a("global_store_dwordx2 v12, v[104:105], s[4:5]" + SCQ)
    a("global_store_dwordx2 v12, v[106:107], s[4:5] offset:32" + SCQ)
    a("s_mov_b64 exec, s[16:17]")
    a("s_branch K1_END")
    a.label("K1_A")
    a(f"s_load_dwordx2 s[6:7], s[0:1], {KA['A_x']}")
    a(f"s_load_dwordx2 s[8:9], s[0:1], {KA['A_wq']}")
    a("s_sub_u32 s12, s2, 128")
    a("s_lshl_b32 s14, s12, 7")
    a("v_lshrrev_b32 v1, 3, v0")
    a("v_and_b32 v2, 7, v0")
    a("v_lshlrev_b32 v3, 17, v1")
    a("v_lshlrev_b32 v4, 4, v2")
    a("v_add3_u32 v3, v3, v4, s14")
    a("v_lshlrev_b32 v5, 5, v1")
    a("s_waitcnt lgkmcnt(0)")
    XA = [160, 168]
    for b in range(2):
        for k in range(2):
            a(f"global_load_dwordx4 {vr(XA[b] + 4 * k)}, v5, s[6:7] offset:{b * 1024 + k * 16}")
    for i in range(16):
        a(f"global_load_dwordx4 {vr(W0 + 4 * i)}, v3, s[8:9]")
        a("v_add_u32 v3, 0x2000, v3")
    for r in range(16, 32):
        a(f"v_mov_b32 v{r}, 0")
    for i in range(16):
        a(f"s_waitcnt vmcnt({15 - i})")
        unpack8(a, W0 + 4 * i, 32)
        unpack1(a, XA[0], i, 40)
        unpack1(a, XA[1], i, 41)
        for e in range(8):
            a(f"v_fmac_f32 v{16 + e}, v{32 + e}, v40")
            a(f"v_fmac_f32 v{24 + e}, v{32 + e}, v41")
    a("v_lshlrev_b32 v12, 9, v1")
    a("v_lshlrev_b32 v13, 5, v2")
    a("v_add_u32 v12, v12, v13")
    a(f"ds_write_b128 v12, {vr(16)}")
    a(f"ds_write_b128 v12, {vr(20)} offset:16")
    a(f"ds_write_b128 v12, {vr(24)} offset:256")
    a(f"ds_write_b128 v12, {vr(28)} offset:272")
    a("s_waitcnt lgkmcnt(0)")
    a("s_barrier")
    a("v_cmp_gt_u32 vcc, 128, v0")
    a("v_lshlrev_b32 v12, 2, v0")
    a("s_nop 1")
    a("s_and_saveexec_b64 s[16:17], vcc")
    a("s_cbranch_execz K1_A_SKIP")
    for rg in range(32):
        a(f"ds_read_b32 v{64 + rg}, v12 offset:{rg * 512}")
    a("s_waitcnt lgkmcnt(0)")
    for rg in range(1, 32):
        a(f"v_add_f32 v64, v64, v{64 + rg}")
    a("v_cvt_pk_bf16_f32 v65, v64, v64")
    a("v_lshrrev_b32 v13, 6, v0")
    a("v_lshlrev_b32 v13, 13, v13")
    a("v_and_b32 v14, 63, v0")
    a("v_lshlrev_b32 v14, 1, v14")
    a("v_add3_u32 v13, v13, v14, s14")
    a(f"global_store_short v13, v65, s[4:5] offset:{WS_QA}{SCQ}")
    a.label("K1_A_SKIP")
    a("s_mov_b64 exec, s[16:17]")
    a.label("K1_END")
    if FUSED:
        return
    stamp(a, 7)
    stamp_flush(a, 0)
    a.label("K1_EXIT")
    a("s_endpgm")


L_PB = 0
L_MX = L_PB + 8192
L_LB = L_MX + 2048
L_STG = L_LB + 2048
L_SX = L_STG + 4 * 9216
K2_LDS = L_SX + 65536


def score_round16(a, regs, tmp):
    for i in range(0, len(regs), 2):
        x0, x1 = regs[i], regs[i + 1]
        bf16_round_pair(a, x0, x1, tmp)
        a(f"v_mul_f32 v{x0}, s20, v{x0}")
        a(f"v_mul_f32 v{x1}, s20, v{x1}")
        bf16_round_pair(a, x0, x1, tmp)


def exp_inplace(a, regs, mreg, tmp):
    for r in regs:
        a(f"v_sub_f32 v{r}, v{r}, v{mreg}")
        a(f"v_mul_f32 v{r}, s21, v{r}")
        a(f"v_exp_f32 v{r}, v{r}")
    a("s_nop 1")


def gen_k2_a_pre(a):
    a.label("K2_APRE")
    a(f"s_load_dwordx2 s[6:7], s[0:1], {KA['A_k']}")
    a(f"s_load_dwordx2 s[8:9], s[0:1], {KA['A_v']}")
    a("s_sub_u32 s23, s2, 128")
    a("s_lshr_b32 s24, s23, 3")
    a("s_and_b32 s25, s23, 7")
    a("s_waitcnt lgkmcnt(0)")
    a("s_lshl_b32 s26, s24, 21")
    a("s_lshl_b32 s27, s25, 16")
    a("s_add_u32 s26, s26, s27")
    a("s_lshl_b32 s27, s22, 14")
    a("s_add_u32 s26, s26, s27")
    a(f"s_add_u32 s26, s26, {6144 * 256}")
    a("s_add_u32 s6, s6, s26")
    a("s_addc_u32 s7, s7, 0")
    a("s_add_u32 s8, s8, s26")
    a("s_addc_u32 s9, s9, 0")
    a("v_lshlrev_b32 v10, 8, v8")
    a("v_lshlrev_b32 v11, 4, v9")
    a("v_add_u32 v10, v10, v11")
    a("v_mov_b32 v12, v10")
    for mt in range(4):
        for t in range(4):
            a(f"global_load_dwordx4 {ar_((mt * 4 + t) * 4)}, v12, s[6:7] offset:{t * 64}")
        if mt < 3:
            a("v_add_u32 v12, 0x1000, v12")
    a("v_lshlrev_b32 v12, 4, v6")
    for i in range(16):
        if i and i % 4 == 0:
            a("v_add_u32 v12, 0x1000, v12")
        a(f"global_load_dwordx4 {ar_(64 + 4 * i)}, v12, s[8:9] offset:{(i % 4) * 1024}")


def gen_k2(a):
    kernel_header(a, "k2att_kernel")
    if not FUSED:
        a("s_cmp_ge_u32 s2, 256")
        a("s_cbranch_scc1 K2_EXIT")
        stamp_init(a)
        a(f"s_load_dwordx2 s[4:5], s[0:1], {KA['ws']}")
    a(f"s_mov_b32 s20, 0x{SCALE:x}")
    a(f"s_mov_b32 s21, 0x{LOG2E:x}")
    a("v_and_b32 v6, 63, v0")
    a("v_lshrrev_b32 v7, 6, v0")
    a("s_nop 0")
    a("v_readfirstlane_b32 s22, v7")
    a("v_and_b32 v8, 15, v6")
    a("v_lshrrev_b32 v9, 4, v6")
    a("s_cmp_ge_u32 s2, 128")
    a("s_cbranch_scc1 K2_APRE")
    a(f"s_load_dwordx2 s[6:7], s[0:1], {KA['B_ckv']}")
    a("s_lshr_b32 s23, s2, 6")
    a("s_and_b32 s24, s2, 63")
    a("s_waitcnt lgkmcnt(0)")
    a("s_lshl_b32 s25, s2, 17")
    a("s_lshl_b32 s26, s22, 8")
    a("s_add_u32 s25, s25, s26")
    a("s_add_u32 s6, s6, s25")
    a("s_addc_u32 s7, s7, 0")
    a("s_lshl_b32 s25, s23, 15")
    a("s_lshl_b32 s26, s22, 8")
    a("s_add_u32 s25, s25, s26")
    a(f"s_add_u32 s25, s25, 0x{WS_QABS:x}")
    a("v_lshlrev_b32 v10, 10, v8")
    a("v_lshlrev_b32 v11, 4, v9")
    a("v_add_u32 v10, v10, v11")
    a("v_add_u32 v11, s25, v10")
    a("v_add_u32 v12, 0x4000, v11")
    QB = 128 + 64
    DB = 64
    a("v_mov_b32 v13, v10")
    for mt in range(8):
        for t in range(4):
            a(f"global_load_dwordx4 {ar_(0 + (mt * 4 + t) * 4)}, v13, s[6:7] offset:{t * 64}")
        if mt < 7:
            a("v_add_u32 v13, 0x4000, v13")
    a("s_branch K2_BAR")
    gen_k2_a_pre(a)
    a.label("K2_BAR")
    grid_barrier(a, 0, drain=32)
    stamp(a, 0)
    a("s_cmp_ge_u32 s2, 128")
    a("s_cbranch_scc1 K2_A")
    for nt in range(2):
        for t in range(4):
            a(f"global_load_dwordx4 {vr(QB + (nt * 4 + t) * 4)}, v{11 + nt}, s[4:5] offset:{t * 64}{SCQ}")
    stamp(a, 1)
    SREG = {}
    idx = 0
    pool = list(range(224, 256, 4)) + list(range(32, 64, 4))
    for mt in range(8):
        for nt in range(2):
            SREG[(mt, nt)] = pool[idx]
            idx += 1
    a(f"s_mul_i32 s26, s22, 9216")
    a(f"s_add_u32 s26, s26, {L_STG}")
    a(f"v_mul_u32_u24 v14, {STG}, v8")
    a("v_lshlrev_b32 v15, 4, v9")
    a("v_add3_u32 v14, v14, v15, s26")
    a("v_lshrrev_b32 v15, 2, v8")
    a("v_lshl_add_u32 v15, v9, 2, v15")
    a(f"v_mul_u32_u24 v15, {STG}, v15")
    a("v_and_b32 v16, 3, v6")
    a("v_lshlrev_b32 v16, 3, v16")
    a("v_add3_u32 v15, v15, v16, s26")
    for kb in range(4):
        if kb == 0:
            a("s_waitcnt vmcnt(0)")
            stamp(a, 2)
        for t in range(4):
            for mt2 in range(2):
                mt = 2 * kb + mt2
                for nt in range(2):
                    s = SREG[(mt, nt)]
                    c = "0" if t == 0 else vr(s)
                    a(f"v_mfma_f32_16x16x32_bf16 {vr(s)}, {ar_((mt * 4 + t) * 4)}, {vr(QB + (nt * 4 + t) * 4)}, {c}")
        for mt2 in range(2):
            mt = 2 * kb + mt2
            for t in range(4):
                a(f"ds_write_b128 v14, {ar_((mt * 4 + t) * 4)} offset:{mt2 * 16 * STG + t * 64}")
        a("s_waitcnt lgkmcnt(0)")
        for ct in range(8):
            for hf in range(2):
                a(f"ds_read_b64_tr_b16 {vr(DB + kb * 32 + ct * 4 + hf * 2, 2)}, v15 offset:{hf * 16 * STG + ct * 32}")
        a("s_waitcnt lgkmcnt(0)")
    stamp(a, 3)
    a("s_lshl_b32 s26, s22, 14")
    a(f"s_add_u32 s26, s26, {L_SX}")
    a("v_lshlrev_b32 v16, 4, v6")
    a("v_add_u32 v17, s26, v16")
    for mt in range(8):
        for nt in range(2):
            a(f"ds_write_b128 v17, {vr(SREG[(mt, nt)])} offset:{(mt * 2 + nt) * 1024}")
    a("s_waitcnt lgkmcnt(0)")
    a("s_barrier")
    stamp(a, 4)
    a("s_lshl_b32 s26, s22, 12")
    a(f"s_add_u32 s26, s26, {L_SX}")
    a("v_add_u32 v17, s26, v16")
    T0 = 224
    tq = pool
    for w2 in range(4):
        for mt2 in range(2):
            for nt in range(2):
                a(f"ds_read_b128 {vr(tq[w2 * 4 + mt2 * 2 + nt])}, v17 offset:{w2 * 16384 + (mt2 * 2 + nt) * 1024}")
    a("s_waitcnt lgkmcnt(0)")
    for k in range(4):
        for r in range(4):
            for w2 in range(1, 4):
                a(f"v_add_f32 v{tq[k] + r}, v{tq[k] + r}, v{tq[w2 * 4 + k] + r}")
    allS = [tq[k] + r for k in range(4) for r in range(4)]
    score_round16(a, allS, 18)
    for nt in range(2):
        rs = [tq[nt] + r for r in range(4)] + [tq[2 + nt] + r for r in range(4)]
        a(f"v_max3_f32 v{20 + nt}, v{rs[0]}, v{rs[1]}, v{rs[2]}")
        a(f"v_max3_f32 v{20 + nt}, v{20 + nt}, v{rs[3]}, v{rs[4]}")
        a(f"v_max3_f32 v{20 + nt}, v{20 + nt}, v{rs[5]}, v{rs[6]}")
        a(f"v_max_f32 v{20 + nt}, v{20 + nt}, v{rs[7]}")
    a("v_lshlrev_b32 v18, 6, v8")
    a("v_lshlrev_b32 v19, 2, v9")
    a("s_lshl_b32 s26, s22, 4")
    a("v_add3_u32 v19, v18, v19, s26")
    a(f"ds_write_b32 v19, v20 offset:{L_MX}")
    a(f"ds_write_b32 v19, v21 offset:{L_MX + 1024}")
    a("s_waitcnt lgkmcnt(0)")
    a("s_barrier")
    for nt in range(2):
        for k in range(4):
            a(f"ds_read_b128 {vr(tq[4 + nt * 4 + k])}, v18 offset:{L_MX + nt * 1024 + k * 16}")
    a("s_waitcnt lgkmcnt(0)")
    for nt in range(2):
        rs = [tq[4 + nt * 4 + k] + r for k in range(4) for r in range(4)]
        a(f"v_max3_f32 v{20 + nt}, v{rs[0]}, v{rs[1]}, v{rs[2]}")
        for i in range(3, 15, 2):
            a(f"v_max3_f32 v{20 + nt}, v{20 + nt}, v{rs[i]}, v{rs[i + 1]}")
        a(f"v_max_f32 v{20 + nt}, v{20 + nt}, v{rs[15]}")
    for nt in range(2):
        rs = [tq[nt] + r for r in range(4)] + [tq[2 + nt] + r for r in range(4)]
        exp_inplace(a, rs, 20 + nt, 0)
        a(f"v_add_f32 v{22 + nt}, v{rs[0]}, v{rs[1]}")
        for r in rs[2:]:
            a(f"v_add_f32 v{22 + nt}, v{22 + nt}, v{r}")
    a(f"ds_write_b32 v19, v22 offset:{L_LB}")
    a(f"ds_write_b32 v19, v23 offset:{L_LB + 1024}")
    for nt in range(2):
        for mt2 in range(2):
            s = tq[mt2 * 2 + nt]
            a(f"v_cvt_pk_bf16_f32 v{24 + nt * 4 + mt2 * 2}, v{s}, v{s + 1}")
            a(f"v_cvt_pk_bf16_f32 v{25 + nt * 4 + mt2 * 2}, v{s + 2}, v{s + 3}")
    a("s_lshl_b32 s26, s22, 11")
    a("v_add_u32 v17, s26, v16")
    a(f"ds_write_b128 v17, {vr(24)} offset:{L_PB}")
    a(f"ds_write_b128 v17, {vr(28)} offset:{L_PB + 1024}")
    a("s_waitcnt lgkmcnt(0)")
    a("s_barrier")
    stamp(a, 5)
    PF = 192
    for kb in range(4):
        for nt in range(2):
            a(f"ds_read_b128 {vr(PF + (kb * 2 + nt) * 4)}, v16 offset:{L_PB + (kb * 2 + nt) * 1024}")
    a("s_cmp_lg_u32 s22, 0")
    a("s_cbranch_scc1 K2B_NOSTAT")
    a("v_cmp_gt_u32 vcc, 16, v6")
    a("s_nop 1")
    a("s_and_saveexec_b64 s[16:17], vcc")
    for nt in range(2):
        for k in range(4):
            a(f"ds_read_b128 {vr(tq[nt * 4 + k])}, v18 offset:{L_LB + nt * 1024 + k * 16}")
    a("s_waitcnt lgkmcnt(0)")
    for nt in range(2):
        rs = [tq[nt * 4 + k] + r for k in range(4) for r in range(4)]
        for r in rs[1:]:
            a(f"v_add_f32 v{rs[0]}, v{rs[0]}, v{r}")
    a(f"v_mov_b32 v26, v20")
    a(f"v_mov_b32 v27, v{tq[0]}")
    a(f"v_mov_b32 v28, v21")
    a(f"v_mov_b32 v29, v{tq[4]}")
    a("s_lshl_b32 s26, s2, 8")
    a(f"s_add_u32 s26, s26, 0x{WS_BSTAT:x}")
    a("v_lshlrev_b32 v30, 3, v8")
    a("v_add_u32 v30, s26, v30")
    a("global_store_dwordx2 v30, v[26:27], s[4:5]" + SC)
    a("global_store_dwordx2 v30, v[28:29], s[4:5] offset:128" + SC)
    a("s_mov_b64 exec, s[16:17]")
    a.label("K2B_NOSTAT")
    a("s_waitcnt lgkmcnt(0)")
    a("s_nop 1")
    for kb in range(4):
        for ct in range(8):
            for nt in range(2):
                o = pool[ct * 2 + nt]
                c = "0" if kb == 0 else vr(o)
                a(f"v_mfma_f32_16x16x32_bf16 {vr(o)}, {vr(DB + kb * 32 + ct * 4)}, {vr(PF + (kb * 2 + nt) * 4)}, {c}")
    stamp(a, 6)
    a("s_lshl_b32 s26, s2, 16")
    a("s_lshl_b32 s27, s22, 9")
    a("s_add_u32 s26, s26, s27")
    a(f"s_add_u32 s26, s26, 0x{WS_BPART:x}")
    a("s_add_u32 s28, s4, s26")
    a("s_addc_u32 s29, s5, 0")
    a("v_lshlrev_b32 v17, 11, v8")
    a("v_lshlrev_b32 v18, 4, v9")
    a("v_add_u32 v17, v17, v18")
    a("v_add_u32 v18, 0x8000, v17")
    a("s_nop 7")
    a("s_nop 7")
    for ct in range(8):
        for nt in range(2):
            a(f"global_store_dwordx4 v{17 + nt}, {vr(pool[ct * 2 + nt])}, s[28:29] offset:{ct * 64}{SC}")
    a("s_branch K2_END")
    a.label("K2_A")
    KB_ = 64
    QF = 16
    for r in range(QF, QF + 16):
        a(f"v_mov_b32 v{r}, 0")
    a("s_lshl_b32 s26, s24, 10")
    a("v_lshlrev_b32 v10, 8, v8")
    a("v_lshlrev_b32 v11, 4, v9")
    a("v_add_u32 v10, v10, v11")
    a("v_add_u32 v11, s26, v10")
    a("v_cmp_gt_u32 vcc, 4, v8")
    a("s_nop 1")
    a("s_and_saveexec_b64 s[16:17], vcc")
    for t in range(4):
        a(f"global_load_dwordx4 {vr(QF + 4 * t)}, v11, s[4:5] offset:{WS_QA + t * 64}{SCQ}")
    a("s_mov_b64 exec, s[16:17]")
    stamp(a, 1)
    a(f"s_mul_i32 s26, s22, {64 * STG}")
    a(f"s_add_u32 s26, s26, {L_STG}")
    a(f"v_mul_u32_u24 v14, {STG}, v9")
    a("v_lshlrev_b32 v15, 4, v8")
    a("v_add3_u32 v14, v14, v15, s26")
    a("v_lshrrev_b32 v15, 2, v8")
    a("v_lshl_add_u32 v15, v9, 2, v15")
    a(f"v_mul_u32_u24 v15, {STG}, v15")
    a("v_and_b32 v13, 3, v6")
    a("v_lshlrev_b32 v13, 3, v13")
    a("v_add3_u32 v15, v15, v13, s26")
    SAq = [32, 36, 40, 44]
    a("s_waitcnt vmcnt(0)")
    stamp(a, 2)
    for t in range(4):
        for mt in range(4):
            c = "0" if t == 0 else vr(SAq[mt])
            a(f"v_mfma_f32_16x16x32_bf16 {vr(SAq[mt])}, {ar_((mt * 4 + t) * 4)}, {vr(QF + 4 * t)}, {c}")
    a("s_waitcnt vmcnt(0)")
    stamp(a, 3)
    for i in range(16):
        a(f"ds_write_b128 v14, {ar_(64 + 4 * i)} offset:{i * 4 * STG}")
    a("s_nop 7")
    allS = [SAq[mt] + r for mt in range(4) for r in range(4)]
    score_round16(a, allS, 18)
    a(f"v_max3_f32 v20, v{allS[0]}, v{allS[1]}, v{allS[2]}")
    for i in range(3, 15, 2):
        a(f"v_max3_f32 v20, v20, v{allS[i]}, v{allS[i + 1]}")
    a(f"v_max_f32 v20, v20, v{allS[15]}")
    make_xor_addrs(a, 6, [16, 32], 21)
    a("s_waitcnt lgkmcnt(0)")
    bperm_reduce(a, "v_max_f32", 20, [21, 22], 23)
    exp_inplace(a, allS, 20, 0)
    a(f"v_add_f32 v24, v{allS[0]}, v{allS[1]}")
    for r in allS[2:]:
        a(f"v_add_f32 v24, v24, v{r}")
    bperm_reduce(a, "v_add_f32", 24, [21, 22], 23)
    for kb in range(2):
        for mt2 in range(2):
            s = SAq[2 * kb + mt2]
            a(f"v_cvt_pk_bf16_f32 v{48 + kb * 4 + mt2 * 2}, v{s}, v{s + 1}")
            a(f"v_cvt_pk_bf16_f32 v{49 + kb * 4 + mt2 * 2}, v{s + 2}, v{s + 3}")
    for kb in range(2):
        for ct in range(8):
            for hf in range(2):
                a(f"ds_read_b64_tr_b16 {vr(KB_ + (kb * 8 + ct) * 4 + hf * 2, 2)}, v15 offset:{(kb * 32 + hf * 16) * STG + ct * 32}")
    a("s_waitcnt lgkmcnt(0)")
    OA = 192
    for kb in range(2):
        for ct in range(8):
            c = "0" if kb == 0 else vr(OA + 4 * ct)
            a(f"v_mfma_f32_16x16x32_bf16 {vr(OA + 4 * ct)}, {vr(KB_ + (kb * 8 + ct) * 4)}, {vr(48 + kb * 4)}, {c}")
    stamp(a, 6)
    a("s_lshl_b32 s26, s24, 5")
    a("s_lshl_b32 s27, s25, 2")
    a("s_add_u32 s26, s26, s27")
    a("s_add_u32 s26, s26, s22")
    a("s_lshl_b32 s27, s26, 11")
    a(f"s_add_u32 s27, s27, 0x{WS_APART:x}")
    a("v_lshlrev_b32 v17, 9, v8")
    a("v_lshlrev_b32 v18, 4, v9")
    a("v_add3_u32 v17, v17, v18, s27")
    a("s_lshl_b32 s28, s26, 5")
    a(f"s_add_u32 s28, s28, 0x{WS_ASTAT:x}")
    a("v_lshlrev_b32 v18, 3, v8")
    a("v_add_u32 v18, s28, v18")
    a("v_mov_b32 v26, v20")
    a("v_mov_b32 v27, v24")
    a("v_cmp_gt_u32 vcc, 4, v8")
    a("v_cmp_gt_u32 s[18:19], 4, v6")
    a("s_nop 7")
    a("s_nop 7")
    a("s_and_saveexec_b64 s[16:17], vcc")
    for ct in range(8):
        a(f"global_store_dwordx4 v17, {vr(OA + 4 * ct)}, s[4:5] offset:{ct * 64}{SC}")
    a("s_mov_b64 exec, s[18:19]")
    a("global_store_dwordx2 v18, v[26:27], s[4:5]" + SC)
    a("s_mov_b64 exec, s[16:17]")
    a.label("K2_END")
    if FUSED:
        return
    stamp(a, 7)
    stamp_flush(a, 1)
    a.label("K2_EXIT")
    a("s_endpgm")


def fma16(a, wsrc, m0, m1, acc, tmp):
    unpack8(a, wsrc, tmp)
    for e in range(8):
        a(f"v_fmac_f32 v{acc + e}, v{tmp + e}, v{m0}")
        a(f"v_fmac_f32 v{acc + 8 + e}, v{tmp + e}, v{m1}")


def final_out_reduce(a, task_sreg, acc):
    a("v_lshlrev_b32 v12, 12, v7")
    a("v_lshlrev_b32 v13, 5, v6")
    a("v_add_u32 v12, v12, v13")
    a(f"ds_write_b128 v12, {vr(acc)}")
    a(f"ds_write_b128 v12, {vr(acc + 4)} offset:16")
    a(f"ds_write_b128 v12, {vr(acc + 8)} offset:2048")
    a(f"ds_write_b128 v12, {vr(acc + 12)} offset:2064")
    a("s_waitcnt lgkmcnt(0)")
    a("s_barrier")
    a("v_lshlrev_b32 v12, 4, v0")
    for w2 in range(4):
        a(f"ds_read_b128 {vr(32 + 4 * w2)}, v12 offset:{w2 * 4096}")
    a("s_waitcnt lgkmcnt(0)")
    for r in range(4):
        for w2 in range(1, 4):
            a(f"v_add_f32 v{32 + r}, v{32 + r}, v{32 + 4 * w2 + r}")
    a(f"s_lshl_b32 s26, s{task_sreg}, 12")
    a(f"s_add_u32 s26, s26, 0x{WS_OUTP:x}")
    a("v_add_u32 v12, s26, v12")
    a(f"global_store_dwordx4 v12, {vr(32)}, s[4:5]{SC}")


def gen_k3(a):
    kernel_header(a, "k3prj_kernel")
    if not FUSED:
        a("s_cmp_ge_u32 s2, 256")
        a("s_cbranch_scc1 K3_EXIT")
        stamp_init(a)
        a(f"s_load_dwordx2 s[4:5], s[0:1], {KA['ws']}")
    a(f"s_mov_b32 s21, 0x{LOG2E:x}")
    a("v_and_b32 v6, 63, v0")
    a("v_lshrrev_b32 v7, 6, v0")
    a("s_cmp_ge_u32 s2, 128")
    a("s_cbranch_scc1 K3_A")
    a(f"s_load_dwordx2 s[6:7], s[0:1], {KA['B_wuv']}")
    a(f"s_load_dwordx2 s[8:9], s[0:1], {KA['B_wo']}")
    a("s_and_b32 s12, s2, 31")
    a("s_lshr_b32 s13, s2, 5")
    a("v_lshrrev_b32 v1, 4, v0")
    a("v_and_b32 v2, 15, v0")
    a("s_lshl_b32 s14, s12, 3")
    a(f"s_add_u32 s14, s14, 0x{WS_BSTAT:x}")
    a("v_lshlrev_b32 v3, 8, v0")
    a("v_add_u32 v3, s14, v3")
    a("v_cmp_gt_u32 vcc, 128, v0")
    a("s_waitcnt lgkmcnt(0)")
    a("s_and_saveexec_b64 s[16:17], vcc")
    a("global_load_dwordx2 v[4:5], v3, s[4:5]" + SC)
    a("s_mov_b64 exec, s[16:17]")
    a("v_lshrrev_b32 v3, 5, v0")
    a("v_lshlrev_b32 v3, 20, v3")
    a("v_and_b32 v8, 31, v0")
    a("v_lshlrev_b32 v8, 4, v8")
    a("s_lshl_b32 s14, s12, 11")
    a("s_lshl_b32 s15, s13, 9")
    a("s_add_u32 s14, s14, s15")
    a("v_add3_u32 v3, v3, v8, s14")
    a(f"s_add_u32 s28, s4, 0x{WS_BPART:x}")
    a("s_addc_u32 s29, s5, 0")
    OP = 64
    for i in range(16):
        a(f"global_load_dwordx4 {vr(OP + 4 * i)}, v3, s[28:29]{SC}")
        if i < 15:
            a("v_add_u32 v3, 0x10000, v3")
    a("s_lshl_b32 s14, s13, 20")
    a("s_lshl_b32 s15, s12, 8")
    a("s_add_u32 s14, s14, s15")
    a("v_lshlrev_b32 v3, 16, v1")
    a("v_lshlrev_b32 v8, 4, v2")
    a("v_add3_u32 v3, v3, v8, s14")
    UV = 128
    for i in range(8):
        a(f"global_load_dwordx4 {vr(UV + 4 * i)}, v3, s[6:7]")
        if i < 7:
            a("v_add_u32 v3, 0x2000, v3")
    stamp(a, 1)
    a("s_waitcnt vmcnt(24)")
    make_xor_addrs(a, 6, [1, 2, 4, 8, 16, 32], 56)
    a("v_mov_b32 v9, v4")
    bperm_reduce(a, "v_max_f32", 9, range(56, 62), 10)
    a("v_sub_f32 v10, v4, v9")
    a("v_mul_f32 v10, s21, v10")
    a("v_exp_f32 v10, v10")
    a("s_nop 1")
    a("v_mul_f32 v11, v10, v5")
    bperm_reduce(a, "v_add_f32", 11, range(56, 62), 12)
    a("v_rcp_f32 v11, v11")
    a("s_nop 1")
    a("v_mul_f32 v10, v10, v11")
    a("v_lshlrev_b32 v12, 2, v0")
    a("s_and_saveexec_b64 s[16:17], vcc")
    a("ds_write_b32 v12, v10")
    a("s_mov_b64 exec, s[16:17]")
    a("s_waitcnt lgkmcnt(0)")
    a("s_barrier")
    stamp(a, 2)
    a("s_lshl_b32 s14, s12, 17")
    a("v_lshlrev_b32 v3, 15, v7")
    a("v_lshlrev_b32 v8, 4, v6")
    a("v_add3_u32 v3, v3, v8, s14")
    WO = 160
    a("v_lshrrev_b32 v12, 5, v0")
    a("v_lshlrev_b32 v12, 6, v12")
    for k in range(4):
        a(f"ds_read_b128 {vr(32 + 4 * k)}, v12 offset:{k * 16}")
    a("s_waitcnt vmcnt(8) lgkmcnt(0)")
    for i in range(16):
        for r in range(4):
            if i == 0:
                a(f"v_mul_f32 v{16 + r}, v{OP + r}, v32")
            else:
                a(f"v_fmac_f32 v{16 + r}, v{OP + 4 * i + r}, v{32 + i}")
    a("v_lshlrev_b32 v12, 4, v0")
    a(f"ds_write_b128 v12, {vr(16)} offset:1024")
    a("s_waitcnt lgkmcnt(0)")
    a("s_barrier")
    a("v_lshrrev_b32 v12, 7, v0")
    a("v_lshlrev_b32 v12, 11, v12")
    a("v_and_b32 v13, 127, v0")
    a("v_lshlrev_b32 v13, 2, v13")
    a("v_add_u32 v12, v12, v13")
    for jq in range(4):
        a(f"ds_read_b32 v{32 + jq}, v12 offset:{1024 + jq * 512}")
    a("s_waitcnt lgkmcnt(0)")
    a("v_add_f32 v32, v32, v33")
    a("v_add_f32 v34, v34, v35")
    a("v_add_f32 v32, v32, v34")
    a("v_lshlrev_b32 v12, 2, v0")
    a("ds_write_b32 v12, v32 offset:8192")
    for i in range(24):
        a(f"global_load_dwordx4 {vr(WO + 4 * i)}, v3, s[8:9]")
        a("v_add_u32 v3, 0x400, v3")
    a("s_waitcnt lgkmcnt(0)")
    a("s_barrier")
    stamp(a, 3)
    a("v_lshlrev_b32 v12, 5, v1")
    for b in range(2):
        for k in range(2):
            a(f"ds_read_b128 {vr(32 + (b * 2 + k) * 4)}, v12 offset:{8192 + b * 512 + k * 16}")
    for r in range(16, 32):
        a(f"v_mov_b32 v{r}, 0")
    a("s_waitcnt vmcnt(24) lgkmcnt(0)")
    for i in range(8):
        fma16(a, UV + 4 * i, 32 + i, 40 + i, 16, 48)
    a("v_lshlrev_b32 v12, 10, v1")
    a("v_lshlrev_b32 v13, 5, v2")
    a("v_add_u32 v12, v12, v13")
    a(f"ds_write_b128 v12, {vr(16)} offset:16384")
    a(f"ds_write_b128 v12, {vr(20)} offset:16400")
    a(f"ds_write_b128 v12, {vr(24)} offset:16896")
    a(f"ds_write_b128 v12, {vr(28)} offset:16912")
    for i in range(24, 32):
        a(f"global_load_dwordx4 {vr(64 + 4 * (i - 24))}, v3, s[8:9]")
        if i < 31:
            a("v_add_u32 v3, 0x400, v3")
    a("s_waitcnt lgkmcnt(0)")
    a("s_barrier")
    a("v_lshlrev_b32 v12, 2, v0")
    for rg in range(16):
        a(f"ds_read_b32 v{32 + rg}, v12 offset:{16384 + rg * 1024}")
    a("s_waitcnt lgkmcnt(0)")
    for rg in range(1, 16):
        a(f"v_add_f32 v32, v32, v{32 + rg}")
    a("ds_write_b32 v12, v32 offset:32768")
    a("s_waitcnt lgkmcnt(0)")
    a("s_barrier")
    stamp(a, 4)
    a("v_lshlrev_b32 v12, 7, v7")
    MUL = 96
    for b in range(2):
        for k in range(8):
            a(f"ds_read_b128 {vr(MUL + b * 32 + 4 * k)}, v12 offset:{32768 + b * 512 + k * 16}")
    for r in range(16, 32):
        a(f"v_mov_b32 v{r}, 0")
    a("s_waitcnt vmcnt(0) lgkmcnt(0)")
    for i in range(32):
        src = WO + 4 * i if i < 24 else 64 + 4 * (i - 24)
        fma16(a, src, MUL + i, MUL + 32 + i, 16, 48)
    stamp(a, 5)
    a("s_barrier")
    a("s_add_u32 s15, s2, 128")
    final_out_reduce(a, 15, 16)
    a("s_branch K3_END")
    a.label("K3_A")
    a(f"s_load_dwordx2 s[8:9], s[0:1], {KA['A_wo']}")
    a("s_sub_u32 s11, s2, 128")
    a("s_and_b32 s12, s11, 31")
    a("s_lshr_b32 s13, s11, 5")
    a("s_lshr_b32 s14, s12, 2")
    a("s_and_b32 s15, s12, 3")
    a("v_lshrrev_b32 v1, 5, v0")
    a("v_and_b32 v2, 31, v0")
    a("v_lshlrev_b32 v3, 8, v1")
    a("v_add_u32 v3, v3, v2")
    a("s_lshl_b32 s18, s14, 5")
    a("v_add_u32 v3, s18, v3")
    a("v_lshlrev_b32 v4, 5, v3")
    a("s_lshl_b32 s19, s15, 3")
    a(f"s_add_u32 s19, s19, 0x{WS_ASTAT:x}")
    a("v_add_u32 v4, s19, v4")
    a("v_cmp_gt_u32 vcc, 64, v0")
    a("s_waitcnt lgkmcnt(0)")
    a("s_and_saveexec_b64 s[16:17], vcc")
    a("global_load_dwordx2 v[4:5], v4, s[4:5]" + SC)
    a("s_mov_b64 exec, s[16:17]")
    a("v_lshrrev_b32 v1, 7, v0")
    a("v_bfe_u32 v2, v0, 2, 5")
    a("v_lshlrev_b32 v3, 8, v1")
    a("v_add_u32 v3, v3, v2")
    a("v_add_u32 v3, s18, v3")
    a("v_lshlrev_b32 v3, 11, v3")
    a("v_and_b32 v8, 3, v0")
    a("v_lshlrev_b32 v8, 5, v8")
    a("s_lshl_b32 s19, s15, 9")
    a("s_lshl_b32 s22, s13, 7")
    a("s_add_u32 s19, s19, s22")
    a(f"s_add_u32 s19, s19, 0x{WS_APART:x}")
    a("v_add3_u32 v3, v3, v8, s19")
    a(f"global_load_dwordx4 {vr(64)}, v3, s[4:5]{SC}")
    a(f"global_load_dwordx4 {vr(68)}, v3, s[4:5] offset:16{SC}")
    a("s_lshl_b32 s22, s12, 17")
    a("s_lshl_b32 s23, s13, 15")
    a("s_add_u32 s22, s22, s23")
    a("v_lshlrev_b32 v3, 13, v7")
    a("v_lshlrev_b32 v8, 4, v6")
    a("v_add3_u32 v3, v3, v8, s22")
    for i in range(8):
        a(f"global_load_dwordx4 {vr(96 + 4 * i)}, v3, s[8:9] offset:{(i % 4) * 1024}")
        if i == 3:
            a("v_add_u32 v3, 0x1000, v3")
    a("s_waitcnt vmcnt(10)")
    make_xor_addrs(a, 6, [1, 2, 4, 8, 16], 56)
    a("v_mov_b32 v9, v4")
    bperm_reduce(a, "v_max_f32", 9, range(56, 61), 10)
    a("v_sub_f32 v10, v4, v9")
    a("v_mul_f32 v10, s21, v10")
    a("v_exp_f32 v10, v10")
    a("s_nop 1")
    a("v_mul_f32 v11, v10, v5")
    bperm_reduce(a, "v_add_f32", 11, range(56, 61), 12)
    a("v_rcp_f32 v11, v11")
    a("s_nop 1")
    a("v_mul_f32 v10, v10, v11")
    a("v_lshlrev_b32 v12, 2, v0")
    a("s_and_saveexec_b64 s[16:17], vcc")
    a("ds_write_b32 v12, v10")
    a("s_mov_b64 exec, s[16:17]")
    a("s_waitcnt lgkmcnt(0)")
    a("s_barrier")
    a("v_lshrrev_b32 v12, 2, v0")
    a("v_lshlrev_b32 v12, 2, v12")
    a("ds_read_b32 v13, v12")
    a("s_waitcnt vmcnt(8) lgkmcnt(0)")
    for r in range(8):
        a(f"v_mul_f32 v{64 + r}, v{64 + r}, v13")
    a("v_lshlrev_b32 v12, 5, v0")
    a(f"ds_write_b128 v12, {vr(64)} offset:1024")
    a(f"ds_write_b128 v12, {vr(68)} offset:1040")
    a("s_waitcnt lgkmcnt(0)")
    a("s_barrier")
    a("v_lshrrev_b32 v12, 5, v0")
    a("v_lshlrev_b32 v12, 12, v12")
    a("v_and_b32 v13, 31, v0")
    a("v_lshlrev_b32 v13, 2, v13")
    a("v_add_u32 v12, v12, v13")
    a("s_and_saveexec_b64 s[16:17], vcc")
    a("s_cbranch_execz K3A_SKIP")
    for sp in range(32):
        a(f"ds_read_b32 v{128 + sp}, v12 offset:{1024 + sp * 128}")
    a("s_waitcnt lgkmcnt(0)")
    for sp in range(1, 32):
        a(f"v_add_f32 v128, v128, v{128 + sp}")
    bf16_round_pair(a, 128, 129, 130)
    a("v_lshlrev_b32 v13, 2, v0")
    a("ds_write_b32 v13, v128 offset:16384")
    a.label("K3A_SKIP")
    a("s_mov_b64 exec, s[16:17]")
    a("s_waitcnt lgkmcnt(0)")
    a("s_barrier")
    a("v_lshlrev_b32 v12, 5, v7")
    for b in range(2):
        for k in range(2):
            a(f"ds_read_b128 {vr(32 + (b * 2 + k) * 4)}, v12 offset:{16384 + b * 128 + k * 16}")
    for r in range(16, 32):
        a(f"v_mov_b32 v{r}, 0")
    a("s_waitcnt vmcnt(0) lgkmcnt(0)")
    for i in range(8):
        fma16(a, 96 + 4 * i, 32 + i, 40 + i, 16, 48)
    a("s_barrier")
    final_out_reduce(a, 11, 16)
    a.label("K3_END")
    if FUSED:
        return
    stamp(a, 7)
    stamp_flush(a, 2)
    a.label("K3_EXIT")
    a("s_endpgm")


def gen_k4(a):
    kernel_header(a, "k4fin_kernel")
    a("s_cmp_ge_u32 s2, 16")
    a("s_cbranch_scc1 K4_EXIT2" if FUSED else "s_cbranch_scc1 K4_EXIT")
    if not FUSED:
        stamp_init(a)
        a(f"s_load_dwordx2 s[4:5], s[0:1], {KA['ws']}")
    a(f"s_load_dwordx2 s[6:7], s[0:1], {KA['out']}")
    a("s_lshr_b32 s10, s2, 3")
    a("s_bfe_u32 s11, s2, 0x10002")
    a("s_and_b32 s12, s2, 3")
    a("v_lshrrev_b32 v1, 5, v0")
    a("v_and_b32 v2, 31, v0")
    a("s_lshl_b32 s13, s10, 19")
    a("s_lshl_b32 s14, s11, 11")
    a("s_add_u32 s13, s13, s14")
    a("s_lshl_b32 s14, s12, 9")
    a("s_add_u32 s13, s13, s14")
    a(f"s_add_u32 s13, s13, 0x{WS_OUTP:x}")
    a("v_lshlrev_b32 v3, 16, v1")
    a("v_lshlrev_b32 v4, 4, v2")
    a("v_add3_u32 v3, v3, v4, s13")
    a("s_waitcnt lgkmcnt(0)")
    for i in range(16):
        a(f"global_load_dwordx4 {vr(16 + 4 * i)}, v3, s[4:5]{SC}")
        if i < 15:
            a("v_add_u32 v3, 0x1000, v3")
    a("s_waitcnt vmcnt(0)")
    for i in range(1, 16):
        for r in range(4):
            a(f"v_add_f32 v{16 + r}, v{16 + r}, v{16 + 4 * i + r}")
    a("v_lshlrev_b32 v5, 4, v0")
    a(f"ds_write_b128 v5, {vr(16)}")
    a("s_waitcnt lgkmcnt(0)")
    a("s_barrier")
    a("v_cmp_gt_u32 vcc, 32, v0")
    a("s_nop 1")
    a("s_and_saveexec_b64 s[16:17], vcc")
    a("s_cbranch_execz K4_SKIP")
    for tg in range(8):
        a(f"ds_read_b128 {vr(16 + 4 * tg)}, v5 offset:{tg * 512}")
    a("s_waitcnt lgkmcnt(0)")
    for tg in range(1, 8):
        for r in range(4):
            a(f"v_add_f32 v{16 + r}, v{16 + r}, v{16 + 4 * tg + r}")
    a("v_cvt_pk_bf16_f32 v8, v16, v17")
    a("v_cvt_pk_bf16_f32 v9, v18, v19")
    a("s_lshl_b32 s13, s11, 11")
    a("s_lshl_b32 s14, s10, 10")
    a("s_add_u32 s13, s13, s14")
    a("s_lshl_b32 s14, s12, 8")
    a("s_add_u32 s13, s13, s14")
    a("v_lshlrev_b32 v6, 3, v2")
    a("v_add_u32 v6, s13, v6")
    a("global_store_dwordx2 v6, v[8:9], s[6:7]")
    a.label("K4_SKIP")
    a("s_mov_b64 exec, s[16:17]")
    a.label("K4_END")
    a.label("K4_EXIT2")
    stamp_slot(a, 15)
    stamp_flush(a, 3)
    a.label("K4_EXIT")
    a("s_endpgm")


def grid_barrier(a, idx, target=256, drain=0):
    L = f"GB{idx}"
    a(f"s_waitcnt vmcnt({drain}) lgkmcnt(0)")
    a("s_barrier")
    a("v_cmp_eq_u32 vcc, 0, v0")
    a("v_mov_b32 v1, 1")
    a(f"v_mov_b32 v2, {idx * 64}")
    a("s_nop 1")
    a("s_and_saveexec_b64 s[16:17], vcc")
    a(f"s_cbranch_execz {L}_W")
    a("global_atomic_add v2, v1, s[30:31] sc1")
    a("s_mov_b32 s18, 0")
    a.label(f"{L}_P")
    a("global_load_dword v3, v2, s[30:31] sc1")
    a("s_waitcnt vmcnt(0)")
    a("v_readfirstlane_b32 s19, v3")
    a("s_add_u32 s18, s18, 1")
    a(f"s_cmp_ge_u32 s19, {target}")
    a(f"s_cbranch_scc1 {L}_W")
    a("s_sleep 2")
    a("s_cmp_lt_u32 s18, 0x400000")
    a(f"s_cbranch_scc1 {L}_P")
    a.label(f"{L}_W")
    a("s_mov_b64 exec, s[16:17]")
    a("s_barrier")


HEADER = open("cdna_kernels/" + NAME + ".s.ref").read().split("; @launch")[0]


def main_fused(out):
    a = Asm()
    name = NAME + "_kernel"
    a.raw(f".globl {name}")
    a.raw(".p2align 8")
    a.raw(f".type {name},@function")
    a.label(name)
    a("s_cmp_ge_u32 s2, 256")
    a("s_cbranch_scc1 K4_EXIT")
    a(f"s_load_dwordx2 s[4:5], s[0:1], {KA['ws']}")
    a(f"s_load_dwordx2 s[30:31], s[0:1], {KA['dbg']}")
    stamp_init(a)
    CUR_PHASE[0] = 1
    gen_k1(a)
    stamp_slot(a, 3)
    grid_barrier(a, 0)
    stamp_slot(a, 4)
    CUR_PHASE[0] = 2
    gen_k2(a)
    stamp_slot(a, 8)
    grid_barrier(a, 1)
    stamp_slot(a, 9)
    CUR_PHASE[0] = 3
    gen_k3(a)
    stamp_slot(a, 13)
    grid_barrier(a, 2)
    stamp_slot(a, 14)
    CUR_PHASE[0] = 4
    gen_k4(a)
    txt = HEADER
    txt += f"; @launch grid=(256,1,1) block=(256,1,1) lds={K2_LDS}\n"
    txt += '.amdgcn_target "amdgcn-amd-amdhsa--gfx950"\n.text\n'
    txt += a.text()
    txt += '.section .rodata,"a"\n.p2align 6\n'
    txt += descriptor(name, 256)
    open(out, "w").write(txt)


def main3(out):
    global FUSED
    a = Asm()
    FUSED = True
    name = "k12_kernel"
    a.raw(f".globl {name}")
    a.raw(".p2align 8")
    a.raw(f".type {name},@function")
    a.label(name)
    a("s_cmp_ge_u32 s2, 256")
    a("s_cbranch_scc1 K2_EXIT")
    a(f"s_load_dwordx2 s[4:5], s[0:1], {KA['ws']}")
    a(f"s_load_dwordx2 s[30:31], s[0:1], {KA['dbg']}")
    stamp_init(a)
    CUR_PHASE[0] = 1
    gen_k1(a)
    stamp_slot(a, 3)
    CUR_PHASE[0] = 2
    gen_k2(a)
    stamp_slot(a, 8)
    stamp_flush(a, 0)
    a.label("K2_EXIT")
    a("s_endpgm")
    FUSED = False
    gen_k3(a)
    gen_k4(a)
    txt = HEADER
    txt += f"; @launch kernel=k12_kernel grid=(256,1,1) block=(256,1,1) lds={K2_LDS}\n"
    txt += "; @launch kernel=k3prj_kernel grid=(256,1,1) block=(256,1,1) lds=36864\n"
    txt += "; @launch kernel=k4fin_kernel grid=(16,1,1) block=(256,1,1) lds=4096\n"
    txt += '.amdgcn_target "amdgcn-amd-amdhsa--gfx950"\n.text\n'
    txt += a.text()
    txt += '.section .rodata,"a"\n.p2align 6\n'
    txt += descriptor("k12_kernel", 384).replace(".amdhsa_accum_offset 384", ".amdhsa_accum_offset 256")
    txt += descriptor("k3prj_kernel", 256)
    txt += descriptor("k4fin_kernel", 256)
    open(out, "w").write(txt)


def main(out):
    return main3(out)
    if FUSED:
        return main_fused(out)
    a = Asm()
    gen_k1(a)
    gen_k2(a)
    gen_k3(a)
    gen_k4(a)
    txt = HEADER
    txt += "; @launch kernel=k1q_kernel grid=(192,1,1) block=(256,1,1) lds=20480\n"
    txt += f"; @launch kernel=k2att_kernel grid=(256,1,1) block=(256,1,1) lds={K2_LDS}\n"
    txt += "; @launch kernel=k3prj_kernel grid=(256,1,1) block=(256,1,1) lds=36864\n"
    txt += "; @launch kernel=k4fin_kernel grid=(16,1,1) block=(256,1,1) lds=4096\n"
    txt += '.amdgcn_target "amdgcn-amd-amdhsa--gfx950"\n.text\n'
    txt += a.text()
    txt += '.section .rodata,"a"\n.p2align 6\n'
    for k in ["k1q_kernel", "k2att_kernel", "k3prj_kernel", "k4fin_kernel"]:
        txt += descriptor(k, 256)
    open(out, "w").write(txt)


if __name__ == "__main__":
    if len(sys.argv) > 2 and sys.argv[2] == "stamp":
        STAMP = True
    main(sys.argv[1] if len(sys.argv) > 1 else "cdna_kernels/" + NAME + ".s")
```

```python
import sys

NAME = "concat_heads__sliding_block_cached__compressed_kv_cla__decode"

WS_QA    = 0x0
WS_QABS  = 0x10000
WS_APART = 0x100000
WS_ASTAT = 0x200000
WS_BSTAT = 0x210000
WS_BPART = 0x400000
WS_OUTP  = 0x1000000

KA = dict(A_x=0, A_k=8, A_v=16, A_wq=24, A_wo=32, B_x=40, B_ckv=48, B_wq=56, B_wuk=64,
          B_wuv=72, B_wo=80, out=88, dbg=96, ws=104)

LOG2E = 0x3fb8aa3b
SCALE = 0x3db504f3
HIMASK = 0xffff0000
STG = 288


class Asm:
    def __init__(self):
        self.lines = []

    def __call__(self, s):
        for ln in s.split("\n"):
            self.lines.append("    " + ln.strip())

    def label(self, s):
        self.lines.append(s + ":")

    def raw(self, s):
        self.lines.append(s)

    def text(self):
        return "\n".join(self.lines) + "\n"


def vr(base, n=4):
    return f"v[{base}:{base + n - 1}]"


def ar_(base, n=4):
    return f"a[{base}:{base + n - 1}]"


def unpack8(a, src, dst):
    for p in range(4):
        a(f"v_lshlrev_b32 v{dst + 2 * p}, 16, v{src + p}")
        a(f"v_and_b32 v{dst + 2 * p + 1}, 0x{HIMASK:x}, v{src + p}")


def unpack1(a, src_reg, idx, dst):
    r = src_reg + (idx >> 1)
    if idx & 1:
        a(f"v_and_b32 v{dst}, 0x{HIMASK:x}, v{r}")
    else:
        a(f"v_lshlrev_b32 v{dst}, 16, v{r}")


def bf16_round_pair(a, x0, x1, tmp):
    a(f"v_cvt_pk_bf16_f32 v{tmp}, v{x0}, v{x1}")
    a(f"v_lshlrev_b32 v{x0}, 16, v{tmp}")
    a(f"v_and_b32 v{x1}, 0x{HIMASK:x}, v{tmp}")


def bperm_reduce(a, op, val, addr_regs, tmp):
    for ar in addr_regs:
        a(f"ds_bpermute_b32 v{tmp}, v{ar}, v{val}")
        a("s_waitcnt lgkmcnt(0)")
        a(f"{op} v{val}, v{val}, v{tmp}")


def make_xor_addrs(a, lane, masks, dst0):
    for i, m in enumerate(masks):
        a(f"v_xor_b32 v{dst0 + i}, {m}, v{lane}")
        a(f"v_lshlrev_b32 v{dst0 + i}, 2, v{dst0 + i}")


STAMP = False
FUSED = True
SC = ""
SCQ = " sc1"
WS_STAMP = 0x2000000


CUR_PHASE = [0]
PH_MAP = {1: {0: 0, 1: 1, 2: 2}, 2: {1: 5, 3: 6, 5: 7}, 3: {1: 10, 3: 11, 5: 12}, 4: {}}


def stamp_init(a):
    if STAMP:
        for r in range(64, 96):
            a(f"s_mov_b32 s{r}, 0")
        stamp_slot(a, 0)


def stamp_slot(a, k):
    if STAMP:
        a(f"s_memrealtime s[{64 + 2 * k}:{65 + 2 * k}]")


def stamp(a, k):
    if STAMP:
        m = PH_MAP.get(CUR_PHASE[0], {})
        if k in m:
            stamp_slot(a, m[k])


def stamp_flush(a, kidx):
    if not STAMP:
        return
    a("s_waitcnt vmcnt(0) lgkmcnt(0)")
    a("v_lshrrev_b32 v1, 6, v0")
    a("s_nop 1")
    a("v_readfirstlane_b32 s32, v1")
    a(f"s_lshl_b32 s33, s2, 9")
    a("s_lshl_b32 s32, s32, 7")
    a("s_add_u32 s33, s33, s32")
    a(f"s_add_u32 s33, s33, 0x{WS_STAMP:x}")
    a("v_mov_b32 v2, s33")
    for k in range(32):
        a(f"v_mov_b32 v{4 + k}, s{64 + k}")
    a("s_mov_b64 s[34:35], exec")
    a("s_mov_b64 exec, 1")
    a("s_nop 3")
    for k in range(8):
        a(f"global_store_dwordx4 v2, {vr(4 + 4 * k)}, s[4:5] offset:{16 * k}")
    a("s_mov_b64 exec, s[34:35]")


def kernel_header(a, name):
    if FUSED:
        return
    a.raw(f".globl {name}")
    a.raw(".p2align 8")
    a.raw(f".type {name},@function")
    a.label(name)


def descriptor(name, vgpr, sgpr=96):
    acc = (vgpr + 3) // 4 * 4
    return f""".amdhsa_kernel {name}
  .amdhsa_next_free_vgpr {vgpr}
  .amdhsa_next_free_sgpr {sgpr}
  .amdhsa_accum_offset {acc}
  .amdhsa_group_segment_fixed_size 0
  .amdhsa_kernarg_size 112
  .amdhsa_user_sgpr_count 2
  .amdhsa_user_sgpr_kernarg_segment_ptr 1
  .amdhsa_system_sgpr_workgroup_id_x 1
.end_amdhsa_kernel
"""


def gen_k1(a):
    kernel_header(a, "k1q_kernel")
    if FUSED:
        a("s_cmp_ge_u32 s2, 192")
        a("s_cbranch_scc1 K1_END")
    else:
        a("s_cmp_ge_u32 s2, 192")
        a("s_cbranch_scc1 K1_EXIT")
        stamp_init(a)
        a(f"s_load_dwordx2 s[4:5], s[0:1], {KA['ws']}")
    a("s_cmp_ge_u32 s2, 128")
    a("s_cbranch_scc1 K1_A")
    a(f"s_load_dwordx2 s[6:7], s[0:1], {KA['B_x']}")
    a(f"s_load_dwordx2 s[8:9], s[0:1], {KA['B_wq']}")
    a(f"s_load_dwordx2 s[10:11], s[0:1], {KA['B_wuk']}")
    a("s_and_b32 s12, s2, 31")
    a("s_lshr_b32 s13, s2, 5")
    a("s_lshl_b32 s14, s12, 8")
    a("v_lshrrev_b32 v1, 4, v0")
    a("v_and_b32 v2, 15, v0")
    a("v_lshlrev_b32 v3, 18, v1")
    a("v_lshlrev_b32 v4, 4, v2")
    a("v_add3_u32 v3, v3, v4, s14")
    a("v_lshlrev_b32 v5, 6, v1")
    a("v_and_b32 v6, 63, v0")
    a("v_lshrrev_b32 v7, 6, v0")
    a("v_and_b32 v8, 15, v6")
    a("v_lshrrev_b32 v9, 4, v6")
    a("s_lshl_b32 s15, s13, 7")
    a("v_lshlrev_b32 v10, 5, v7")
    a("v_add3_u32 v10, v10, v8, s15")
    a("v_lshlrev_b32 v10, 13, v10")
    a("v_lshlrev_b32 v11, 4, v9")
    a("v_add3_u32 v10, v10, v11, s14")
    a("v_add_u32 v11, 0x20000, v10")
    a("s_waitcnt lgkmcnt(0)")
    XB = [192, 208]
    for b in range(2):
        for k in range(4):
            a(f"global_load_dwordx4 {vr(XB[b] + 4 * k)}, v5, s[6:7] offset:{b * 1024 + k * 16}")
    W0 = 64
    for i in range(32):
        a(f"global_load_dwordx4 {vr(W0 + 4 * i)}, v3, s[8:9]")
        a("v_add_u32 v3, 0x2000, v3")
    UK = 224
    for mt in range(2):
        for t in range(4):
            a(f"global_load_dwordx4 {vr(UK + (mt * 4 + t) * 4)}, v{10 + mt}, s[10:11] offset:{t * 64}")
    stamp(a, 1)
    for r in range(16, 32):
        a(f"v_mov_b32 v{r}, 0")
    for i in range(32):
        a(f"s_waitcnt vmcnt({39 - i})")
        unpack8(a, W0 + 4 * i, 32)
        unpack1(a, XB[0], i, 40)
        unpack1(a, XB[1], i, 41)
        for e in range(8):
            a(f"v_fmac_f32 v{16 + e}, v{32 + e}, v40")
            a(f"v_fmac_f32 v{24 + e}, v{32 + e}, v41")
    stamp(a, 2)
    a("v_lshlrev_b32 v12, 10, v1")
    a("v_lshlrev_b32 v13, 5, v2")
    a("v_add_u32 v12, v12, v13")
    a(f"ds_write_b128 v12, {vr(16)}")
    a(f"ds_write_b128 v12, {vr(20)} offset:16")
    a(f"ds_write_b128 v12, {vr(24)} offset:512")
    a(f"ds_write_b128 v12, {vr(28)} offset:528")
    a("s_waitcnt lgkmcnt(0)")
    a("s_barrier")
    a("v_lshlrev_b32 v12, 2, v0")
    for rg in range(16):
        a(f"ds_read_b32 v{32 + rg}, v12 offset:{rg * 1024}")
    a("s_waitcnt lgkmcnt(0)")
    for rg in range(1, 16):
        a(f"v_add_f32 v32, v32, v{32 + rg}")
    a("v_cvt_pk_bf16_f32 v33, v32, v32")
    a("v_lshlrev_b32 v13, 1, v0")
    a("ds_write_b16 v13, v33 offset:16384")
    QF = 64
    for r in range(QF, QF + 16):
        a(f"v_mov_b32 v{r}, 0")
    a("s_waitcnt lgkmcnt(0)")
    a("s_barrier")
    stamp(a, 3)
    a("v_cmp_gt_u32 vcc, 2, v8")
    a("v_lshlrev_b32 v12, 8, v8")
    a("v_lshlrev_b32 v13, 4, v9")
    a("v_add_u32 v12, v12, v13")
    a("s_nop 1")
    a("s_and_saveexec_b64 s[16:17], vcc")
    for t in range(4):
        a(f"ds_read_b128 {vr(QF + 4 * t)}, v12 offset:{16384 + t * 64}")
    a("s_mov_b64 exec, s[16:17]")
    a("s_waitcnt vmcnt(0) lgkmcnt(0)")
    D0 = 96
    for mt in range(2):
        for t in range(4):
            c = "0" if t == 0 else vr(D0 + 4 * mt)
            a(f"v_mfma_f32_16x16x32_bf16 {vr(D0 + 4 * mt)}, {vr(UK + (mt * 4 + t) * 4)}, {vr(QF + 4 * t)}, {c}")
    a("s_nop 7")
    a("s_nop 7")
    for mt in range(2):
        a(f"v_cvt_pk_bf16_f32 v{104 + 2 * mt}, v{D0 + 4 * mt}, v{D0 + 4 * mt + 1}")
        a(f"v_cvt_pk_bf16_f32 v{105 + 2 * mt}, v{D0 + 4 * mt + 2}, v{D0 + 4 * mt + 3}")
    a("v_lshlrev_b32 v12, 15, v8")
    a("v_lshlrev_b32 v13, 6, v7")
    a("v_lshlrev_b32 v14, 3, v9")
    a("v_add3_u32 v12, v12, v13, v14")
    a("s_lshl_b32 s18, s12, 10")
    a("s_lshl_b32 s19, s13, 8")
    a("s_add_u32 s18, s18, s19")
    a(f"s_add_u32 s18, s18, 0x{WS_QABS:x}")
    a("v_add_u32 v12, s18, v12")
    a("s_and_saveexec_b64 s[16:17], vcc")
    a("global_store_dwordx2 v12, v[104:105], s[4:5]" + SCQ)
    a("global_store_dwordx2 v12, v[106:107], s[4:5] offset:32" + SCQ)
    a("s_mov_b64 exec, s[16:17]")
    a("s_branch K1_END")
    a.label("K1_A")
    a(f"s_load_dwordx2 s[6:7], s[0:1], {KA['A_x']}")
    a(f"s_load_dwordx2 s[8:9], s[0:1], {KA['A_wq']}")
    a("s_sub_u32 s12, s2, 128")
    a("s_lshl_b32 s14, s12, 7")
    a("v_lshrrev_b32 v1, 3, v0")
    a("v_and_b32 v2, 7, v0")
    a("v_lshlrev_b32 v3, 17, v1")
    a("v_lshlrev_b32 v4, 4, v2")
    a("v_add3_u32 v3, v3, v4, s14")
    a("v_lshlrev_b32 v5, 5, v1")
    a("s_waitcnt lgkmcnt(0)")
    XA = [160, 168]
    for b in range(2):
        for k in range(2):
            a(f"global_load_dwordx4 {vr(XA[b] + 4 * k)}, v5, s[6:7] offset:{b * 1024 + k * 16}")
    for i in range(16):
        a(f"global_load_dwordx4 {vr(W0 + 4 * i)}, v3, s[8:9]")
        a("v_add_u32 v3, 0x2000, v3")
    for r in range(16, 32):
        a(f"v_mov_b32 v{r}, 0")
    for i in range(16):
        a(f"s_waitcnt vmcnt({15 - i})")
        unpack8(a, W0 + 4 * i, 32)
        unpack1(a, XA[0], i, 40)
        unpack1(a, XA[1], i, 41)
        for e in range(8):
            a(f"v_fmac_f32 v{16 + e}, v{32 + e}, v40")
            a(f"v_fmac_f32 v{24 + e}, v{32 + e}, v41")
    a("v_lshlrev_b32 v12, 9, v1")
    a("v_lshlrev_b32 v13, 5, v2")
    a("v_add_u32 v12, v12, v13")
    a(f"ds_write_b128 v12, {vr(16)}")
    a(f"ds_write_b128 v12, {vr(20)} offset:16")
    a(f"ds_write_b128 v12, {vr(24)} offset:256")
    a(f"ds_write_b128 v12, {vr(28)} offset:272")
    a("s_waitcnt lgkmcnt(0)")
    a("s_barrier")
    a("v_cmp_gt_u32 vcc, 128, v0")
    a("v_lshlrev_b32 v12, 2, v0")
    a("s_nop 1")
    a("s_and_saveexec_b64 s[16:17], vcc")
    a("s_cbranch_execz K1_A_SKIP")
    for rg in range(32):
        a(f"ds_read_b32 v{64 + rg}, v12 offset:{rg * 512}")
    a("s_waitcnt lgkmcnt(0)")
    for rg in range(1, 32):
        a(f"v_add_f32 v64, v64, v{64 + rg}")
    a("v_cvt_pk_bf16_f32 v65, v64, v64")
    a("v_lshrrev_b32 v13, 6, v0")
    a("v_lshlrev_b32 v13, 13, v13")
    a("v_and_b32 v14, 63, v0")
    a("v_lshlrev_b32 v14, 1, v14")
    a("v_add3_u32 v13, v13, v14, s14")
    a(f"global_store_short v13, v65, s[4:5] offset:{WS_QA}{SCQ}")
    a.label("K1_A_SKIP")
    a("s_mov_b64 exec, s[16:17]")
    a.label("K1_END")
    if FUSED:
        return
    stamp(a, 7)
    stamp_flush(a, 0)
    a.label("K1_EXIT")
    a("s_endpgm")


L_PB = 0
L_MX = L_PB + 8192
L_LB = L_MX + 2048
L_STG = L_LB + 2048
L_SX = L_STG + 4 * 9216
K2_LDS = L_SX + 65536


def score_round16(a, regs, tmp):
    for i in range(0, len(regs), 2):
        x0, x1 = regs[i], regs[i + 1]
        bf16_round_pair(a, x0, x1, tmp)
        a(f"v_mul_f32 v{x0}, s20, v{x0}")
        a(f"v_mul_f32 v{x1}, s20, v{x1}")
        bf16_round_pair(a, x0, x1, tmp)


def exp_inplace(a, regs, mreg, tmp):
    for r in regs:
        a(f"v_sub_f32 v{r}, v{r}, v{mreg}")
        a(f"v_mul_f32 v{r}, s21, v{r}")
        a(f"v_exp_f32 v{r}, v{r}")
    a("s_nop 1")


def gen_k2_a_pre(a):
    a.label("K2_APRE")
    a(f"s_load_dwordx2 s[6:7], s[0:1], {KA['A_k']}")
    a(f"s_load_dwordx2 s[8:9], s[0:1], {KA['A_v']}")
    a("s_sub_u32 s23, s2, 128")
    a("s_lshr_b32 s24, s23, 3")
    a("s_and_b32 s25, s23, 7")
    a("s_waitcnt lgkmcnt(0)")
    a("s_lshl_b32 s26, s24, 21")
    a("s_lshl_b32 s27, s25, 16")
    a("s_add_u32 s26, s26, s27")
    a("s_lshl_b32 s27, s22, 14")
    a("s_add_u32 s26, s26, s27")
    a(f"s_add_u32 s26, s26, {6144 * 256}")
    a("s_add_u32 s6, s6, s26")
    a("s_addc_u32 s7, s7, 0")
    a("s_add_u32 s8, s8, s26")
    a("s_addc_u32 s9, s9, 0")
    a("v_lshlrev_b32 v10, 8, v8")
    a("v_lshlrev_b32 v11, 4, v9")
    a("v_add_u32 v10, v10, v11")
    a("v_mov_b32 v12, v10")
    for mt in range(4):
        for t in range(4):
            a(f"global_load_dwordx4 {ar_((mt * 4 + t) * 4)}, v12, s[6:7] offset:{t * 64}")
        if mt < 3:
            a("v_add_u32 v12, 0x1000, v12")
    a("v_lshlrev_b32 v12, 4, v6")
    for i in range(16):
        if i and i % 4 == 0:
            a("v_add_u32 v12, 0x1000, v12")
        a(f"global_load_dwordx4 {ar_(64 + 4 * i)}, v12, s[8:9] offset:{(i % 4) * 1024}")


def gen_k2(a):
    kernel_header(a, "k2att_kernel")
    if not FUSED:
        a("s_cmp_ge_u32 s2, 256")
        a("s_cbranch_scc1 K2_EXIT")
        stamp_init(a)
        a(f"s_load_dwordx2 s[4:5], s[0:1], {KA['ws']}")
    if FUSED:
        grid_arrive(a, 0)
    a(f"s_mov_b32 s20, 0x{SCALE:x}")
    a(f"s_mov_b32 s21, 0x{LOG2E:x}")
    a("v_and_b32 v6, 63, v0")
    a("v_lshrrev_b32 v7, 6, v0")
    a("s_nop 0")
    a("v_readfirstlane_b32 s22, v7")
    a("v_and_b32 v8, 15, v6")
    a("v_lshrrev_b32 v9, 4, v6")
    a("s_cmp_ge_u32 s2, 128")
    a("s_cbranch_scc1 K2_APRE")
    a(f"s_load_dwordx2 s[6:7], s[0:1], {KA['B_ckv']}")
    a("s_lshr_b32 s23, s2, 6")
    a("s_and_b32 s24, s2, 63")
    a("s_waitcnt lgkmcnt(0)")
    a("s_lshl_b32 s25, s2, 17")
    a("s_lshl_b32 s26, s22, 8")
    a("s_add_u32 s25, s25, s26")
    a("s_add_u32 s6, s6, s25")
    a("s_addc_u32 s7, s7, 0")
    a("s_lshl_b32 s25, s23, 15")
    a("s_lshl_b32 s26, s22, 8")
    a("s_add_u32 s25, s25, s26")
    a(f"s_add_u32 s25, s25, 0x{WS_QABS:x}")
    a("v_lshlrev_b32 v10, 10, v8")
    a("v_lshlrev_b32 v11, 4, v9")
    a("v_add_u32 v10, v10, v11")
    a("v_add_u32 v11, s25, v10")
    a("v_add_u32 v12, 0x4000, v11")
    QB = 128 + 64
    DB = 64
    if not FUSED:
        for nt in range(2):
            for t in range(4):
                a(f"global_load_dwordx4 {vr(QB + (nt * 4 + t) * 4)}, v{11 + nt}, s[4:5] offset:{t * 64}")
    a("v_mov_b32 v13, v10")
    for mt in range(8):
        for t in range(4):
            a(f"global_load_dwordx4 {ar_(0 + (mt * 4 + t) * 4)}, v13, s[6:7] offset:{t * 64}")
        if mt < 7:
            a("v_add_u32 v13, 0x4000, v13")
    a("s_branch K2_BAR")
    gen_k2_a_pre(a)
    a.label("K2_BAR")
    if FUSED:
        grid_wait(a, 0)
    stamp(a, 0)
    a("s_cmp_ge_u32 s2, 128")
    a("s_cbranch_scc1 K2_A")
    if FUSED:
        for nt in range(2):
            for t in range(4):
                a(f"global_load_dwordx4 {vr(QB + (nt * 4 + t) * 4)}, v{11 + nt}, s[4:5] offset:{t * 64}{SCQ}")
    stamp(a, 1)
    SREG = {}
    idx = 0
    pool = list(range(224, 256, 4)) + list(range(32, 64, 4))
    for mt in range(8):
        for nt in range(2):
            SREG[(mt, nt)] = pool[idx]
            idx += 1
    a(f"s_mul_i32 s26, s22, 9216")
    a(f"s_add_u32 s26, s26, {L_STG}")
    a(f"v_mul_u32_u24 v14, {STG}, v8")
    a("v_lshlrev_b32 v15, 4, v9")
    a("v_add3_u32 v14, v14, v15, s26")
    a("v_lshrrev_b32 v15, 2, v8")
    a("v_lshl_add_u32 v15, v9, 2, v15")
    a(f"v_mul_u32_u24 v15, {STG}, v15")
    a("v_and_b32 v16, 3, v6")
    a("v_lshlrev_b32 v16, 3, v16")
    a("v_add3_u32 v15, v15, v16, s26")
    for kb in range(4):
        if kb == 0:
            a("s_waitcnt vmcnt(0)")
            stamp(a, 2)
        for t in range(4):
            for mt2 in range(2):
                mt = 2 * kb + mt2
                for nt in range(2):
                    s = SREG[(mt, nt)]
                    c = "0" if t == 0 else vr(s)
                    a(f"v_mfma_f32_16x16x32_bf16 {vr(s)}, {ar_((mt * 4 + t) * 4)}, {vr(QB + (nt * 4 + t) * 4)}, {c}")
        for mt2 in range(2):
            mt = 2 * kb + mt2
            for t in range(4):
                a(f"ds_write_b128 v14, {ar_((mt * 4 + t) * 4)} offset:{mt2 * 16 * STG + t * 64}")
        a("s_waitcnt lgkmcnt(0)")
        for ct in range(8):
            for hf in range(2):
                a(f"ds_read_b64_tr_b16 {vr(DB + kb * 32 + ct * 4 + hf * 2, 2)}, v15 offset:{hf * 16 * STG + ct * 32}")
        a("s_waitcnt lgkmcnt(0)")
    stamp(a, 3)
    a("s_lshl_b32 s26, s22, 14")
    a(f"s_add_u32 s26, s26, {L_SX}")
    a("v_lshlrev_b32 v16, 4, v6")
    a("v_add_u32 v17, s26, v16")
    for mt in range(8):
        for nt in range(2):
            a(f"ds_write_b128 v17, {vr(SREG[(mt, nt)])} offset:{(mt * 2 + nt) * 1024}")
    a("s_waitcnt lgkmcnt(0)")
    a("s_barrier")
    stamp(a, 4)
    a("s_lshl_b32 s26, s22, 12")
    a(f"s_add_u32 s26, s26, {L_SX}")
    a("v_add_u32 v17, s26, v16")
    T0 = 224
    tq = pool
    for w2 in range(4):
        for mt2 in range(2):
            for nt in range(2):
                a(f"ds_read_b128 {vr(tq[w2 * 4 + mt2 * 2 + nt])}, v17 offset:{w2 * 16384 + (mt2 * 2 + nt) * 1024}")
    a("s_waitcnt lgkmcnt(0)")
    for k in range(4):
        for r in range(4):
            for w2 in range(1, 4):
                a(f"v_add_f32 v{tq[k] + r}, v{tq[k] + r}, v{tq[w2 * 4 + k] + r}")
    allS = [tq[k] + r for k in range(4) for r in range(4)]
    score_round16(a, allS, 18)
    for nt in range(2):
        rs = [tq[nt] + r for r in range(4)] + [tq[2 + nt] + r for r in range(4)]
        a(f"v_max3_f32 v{20 + nt}, v{rs[0]}, v{rs[1]}, v{rs[2]}")
        a(f"v_max3_f32 v{20 + nt}, v{20 + nt}, v{rs[3]}, v{rs[4]}")
        a(f"v_max3_f32 v{20 + nt}, v{20 + nt}, v{rs[5]}, v{rs[6]}")
        a(f"v_max_f32 v{20 + nt}, v{20 + nt}, v{rs[7]}")
    a("v_lshlrev_b32 v18, 6, v8")
    a("v_lshlrev_b32 v19, 2, v9")
    a("s_lshl_b32 s26, s22, 4")
    a("v_add3_u32 v19, v18, v19, s26")
    a(f"ds_write_b32 v19, v20 offset:{L_MX}")
    a(f"ds_write_b32 v19, v21 offset:{L_MX + 1024}")
    a("s_waitcnt lgkmcnt(0)")
    a("s_barrier")
    for nt in range(2):
        for k in range(4):
            a(f"ds_read_b128 {vr(tq[4 + nt * 4 + k])}, v18 offset:{L_MX + nt * 1024 + k * 16}")
    a("s_waitcnt lgkmcnt(0)")
    for nt in range(2):
        rs = [tq[4 + nt * 4 + k] + r for k in range(4) for r in range(4)]
        a(f"v_max3_f32 v{20 + nt}, v{rs[0]}, v{rs[1]}, v{rs[2]}")
        for i in range(3, 15, 2):
            a(f"v_max3_f32 v{20 + nt}, v{20 + nt}, v{rs[i]}, v{rs[i + 1]}")
        a(f"v_max_f32 v{20 + nt}, v{20 + nt}, v{rs[15]}")
    for nt in range(2):
        rs = [tq[nt] + r for r in range(4)] + [tq[2 + nt] + r for r in range(4)]
        exp_inplace(a, rs, 20 + nt, 0)
        a(f"v_add_f32 v{22 + nt}, v{rs[0]}, v{rs[1]}")
        for r in rs[2:]:
            a(f"v_add_f32 v{22 + nt}, v{22 + nt}, v{r}")
    a(f"ds_write_b32 v19, v22 offset:{L_LB}")
    a(f"ds_write_b32 v19, v23 offset:{L_LB + 1024}")
    for nt in range(2):
        for mt2 in range(2):
            s = tq[mt2 * 2 + nt]
            a(f"v_cvt_pk_bf16_f32 v{24 + nt * 4 + mt2 * 2}, v{s}, v{s + 1}")
            a(f"v_cvt_pk_bf16_f32 v{25 + nt * 4 + mt2 * 2}, v{s + 2}, v{s + 3}")
    a("s_lshl_b32 s26, s22, 11")
    a("v_add_u32 v17, s26, v16")
    a(f"ds_write_b128 v17, {vr(24)} offset:{L_PB}")
    a(f"ds_write_b128 v17, {vr(28)} offset:{L_PB + 1024}")
    a("s_waitcnt lgkmcnt(0)")
    a("s_barrier")
    stamp(a, 5)
    PF = 192
    for kb in range(4):
        for nt in range(2):
            a(f"ds_read_b128 {vr(PF + (kb * 2 + nt) * 4)}, v16 offset:{L_PB + (kb * 2 + nt) * 1024}")
    a("s_cmp_lg_u32 s22, 0")
    a("s_cbranch_scc1 K2B_NOSTAT")
    a("v_cmp_gt_u32 vcc, 16, v6")
    a("s_nop 1")
    a("s_and_saveexec_b64 s[16:17], vcc")
    for nt in range(2):
        for k in range(4):
            a(f"ds_read_b128 {vr(tq[nt * 4 + k])}, v18 offset:{L_LB + nt * 1024 + k * 16}")
    a("s_waitcnt lgkmcnt(0)")
    for nt in range(2):
        rs = [tq[nt * 4 + k] + r for k in range(4) for r in range(4)]
        for r in rs[1:]:
            a(f"v_add_f32 v{rs[0]}, v{rs[0]}, v{r}")
    a(f"v_mov_b32 v26, v20")
    a(f"v_mov_b32 v27, v{tq[0]}")
    a(f"v_mov_b32 v28, v21")
    a(f"v_mov_b32 v29, v{tq[4]}")
    a("s_lshl_b32 s26, s2, 8")
    a(f"s_add_u32 s26, s26, 0x{WS_BSTAT:x}")
    a("v_lshlrev_b32 v30, 3, v8")
    a("v_add_u32 v30, s26, v30")
    a("global_store_dwordx2 v30, v[26:27], s[4:5]" + SC)
    a("global_store_dwordx2 v30, v[28:29], s[4:5] offset:128" + SC)
    a("s_mov_b64 exec, s[16:17]")
    a.label("K2B_NOSTAT")
    a("s_waitcnt lgkmcnt(0)")
    a("s_nop 1")
    for kb in range(4):
        for ct in range(8):
            for nt in range(2):
                o = pool[ct * 2 + nt]
                c = "0" if kb == 0 else vr(o)
                a(f"v_mfma_f32_16x16x32_bf16 {vr(o)}, {vr(DB + kb * 32 + ct * 4)}, {vr(PF + (kb * 2 + nt) * 4)}, {c}")
    stamp(a, 6)
    a("s_lshl_b32 s26, s2, 16")
    a("s_lshl_b32 s27, s22, 9")
    a("s_add_u32 s26, s26, s27")
    a(f"s_add_u32 s26, s26, 0x{WS_BPART:x}")
    a("s_add_u32 s28, s4, s26")
    a("s_addc_u32 s29, s5, 0")
    a("v_lshlrev_b32 v17, 11, v8")
    a("v_lshlrev_b32 v18, 4, v9")
    a("v_add_u32 v17, v17, v18")
    a("v_add_u32 v18, 0x8000, v17")
    a("s_nop 7")
    a("s_nop 7")
    for ct in range(8):
        for nt in range(2):
            a(f"global_store_dwordx4 v{17 + nt}, {vr(pool[ct * 2 + nt])}, s[28:29] offset:{ct * 64}{SC}")
    a("s_branch K2_END")
    a.label("K2_A")
    KB_ = 64
    QF = 16
    for r in range(QF, QF + 16):
        a(f"v_mov_b32 v{r}, 0")
    a("s_lshl_b32 s26, s24, 10")
    a("v_lshlrev_b32 v10, 8, v8")
    a("v_lshlrev_b32 v11, 4, v9")
    a("v_add_u32 v10, v10, v11")
    a("v_add_u32 v11, s26, v10")
    a("v_cmp_gt_u32 vcc, 4, v8")
    a("s_nop 1")
    a("s_and_saveexec_b64 s[16:17], vcc")
    for t in range(4):
        a(f"global_load_dwordx4 {vr(QF + 4 * t)}, v11, s[4:5] offset:{WS_QA + t * 64}{SCQ}")
    a("s_mov_b64 exec, s[16:17]")
    stamp(a, 1)
    a(f"s_mul_i32 s26, s22, {64 * STG}")
    a(f"s_add_u32 s26, s26, {L_STG}")
    a(f"v_mul_u32_u24 v14, {STG}, v9")
    a("v_lshlrev_b32 v15, 4, v8")
    a("v_add3_u32 v14, v14, v15, s26")
    a("v_lshrrev_b32 v15, 2, v8")
    a("v_lshl_add_u32 v15, v9, 2, v15")
    a(f"v_mul_u32_u24 v15, {STG}, v15")
    a("v_and_b32 v13, 3, v6")
    a("v_lshlrev_b32 v13, 3, v13")
    a("v_add3_u32 v15, v15, v13, s26")
    SAq = [32, 36, 40, 44]
    a("s_waitcnt vmcnt(0)")
    stamp(a, 2)
    for t in range(4):
        for mt in range(4):
            c = "0" if t == 0 else vr(SAq[mt])
            a(f"v_mfma_f32_16x16x32_bf16 {vr(SAq[mt])}, {ar_((mt * 4 + t) * 4)}, {vr(QF + 4 * t)}, {c}")
    a("s_waitcnt vmcnt(0)")
    stamp(a, 3)
    for i in range(16):
        a(f"ds_write_b128 v14, {ar_(64 + 4 * i)} offset:{i * 4 * STG}")
    a("s_nop 7")
    allS = [SAq[mt] + r for mt in range(4) for r in range(4)]
    score_round16(a, allS, 18)
    a(f"v_max3_f32 v20, v{allS[0]}, v{allS[1]}, v{allS[2]}")
    for i in range(3, 15, 2):
        a(f"v_max3_f32 v20, v20, v{allS[i]}, v{allS[i + 1]}")
    a(f"v_max_f32 v20, v20, v{allS[15]}")
    make_xor_addrs(a, 6, [16, 32], 21)
    a("s_waitcnt lgkmcnt(0)")
    bperm_reduce(a, "v_max_f32", 20, [21, 22], 23)
    exp_inplace(a, allS, 20, 0)
    a(f"v_add_f32 v24, v{allS[0]}, v{allS[1]}")
    for r in allS[2:]:
        a(f"v_add_f32 v24, v24, v{r}")
    bperm_reduce(a, "v_add_f32", 24, [21, 22], 23)
    for kb in range(2):
        for mt2 in range(2):
            s = SAq[2 * kb + mt2]
            a(f"v_cvt_pk_bf16_f32 v{48 + kb * 4 + mt2 * 2}, v{s}, v{s + 1}")
            a(f"v_cvt_pk_bf16_f32 v{49 + kb * 4 + mt2 * 2}, v{s + 2}, v{s + 3}")
    for kb in range(2):
        for ct in range(8):
            for hf in range(2):
                a(f"ds_read_b64_tr_b16 {vr(KB_ + (kb * 8 + ct) * 4 + hf * 2, 2)}, v15 offset:{(kb * 32 + hf * 16) * STG + ct * 32}")
    a("s_waitcnt lgkmcnt(0)")
    OA = 192
    for kb in range(2):
        for ct in range(8):
            c = "0" if kb == 0 else vr(OA + 4 * ct)
            a(f"v_mfma_f32_16x16x32_bf16 {vr(OA + 4 * ct)}, {vr(KB_ + (kb * 8 + ct) * 4)}, {vr(48 + kb * 4)}, {c}")
    stamp(a, 6)
    a("s_lshl_b32 s26, s24, 5")
    a("s_lshl_b32 s27, s25, 2")
    a("s_add_u32 s26, s26, s27")
    a("s_add_u32 s26, s26, s22")
    a("s_lshl_b32 s27, s26, 11")
    a(f"s_add_u32 s27, s27, 0x{WS_APART:x}")
    a("v_lshlrev_b32 v17, 9, v8")
    a("v_lshlrev_b32 v18, 4, v9")
    a("v_add3_u32 v17, v17, v18, s27")
    a("s_lshl_b32 s28, s26, 5")
    a(f"s_add_u32 s28, s28, 0x{WS_ASTAT:x}")
    a("v_lshlrev_b32 v18, 3, v8")
    a("v_add_u32 v18, s28, v18")
    a("v_mov_b32 v26, v20")
    a("v_mov_b32 v27, v24")
    a("v_cmp_gt_u32 vcc, 4, v8")
    a("v_cmp_gt_u32 s[18:19], 4, v6")
    a("s_nop 7")
    a("s_nop 7")
    a("s_and_saveexec_b64 s[16:17], vcc")
    for ct in range(8):
        a(f"global_store_dwordx4 v17, {vr(OA + 4 * ct)}, s[4:5] offset:{ct * 64}{SC}")
    a("s_mov_b64 exec, s[18:19]")
    a("global_store_dwordx2 v18, v[26:27], s[4:5]" + SC)
    a("s_mov_b64 exec, s[16:17]")
    a.label("K2_END")
    if FUSED:
        return
    stamp(a, 7)
    stamp_flush(a, 1)
    a.label("K2_EXIT")
    a("s_endpgm")


def fma16(a, wsrc, m0, m1, acc, tmp):
    unpack8(a, wsrc, tmp)
    for e in range(8):
        a(f"v_fmac_f32 v{acc + e}, v{tmp + e}, v{m0}")
        a(f"v_fmac_f32 v{acc + 8 + e}, v{tmp + e}, v{m1}")


def final_out_reduce(a, task_sreg, acc):
    a("v_lshlrev_b32 v12, 12, v7")
    a("v_lshlrev_b32 v13, 5, v6")
    a("v_add_u32 v12, v12, v13")
    a(f"ds_write_b128 v12, {vr(acc)}")
    a(f"ds_write_b128 v12, {vr(acc + 4)} offset:16")
    a(f"ds_write_b128 v12, {vr(acc + 8)} offset:2048")
    a(f"ds_write_b128 v12, {vr(acc + 12)} offset:2064")
    a("s_waitcnt lgkmcnt(0)")
    a("s_barrier")
    a("v_lshlrev_b32 v12, 4, v0")
    for w2 in range(4):
        a(f"ds_read_b128 {vr(32 + 4 * w2)}, v12 offset:{w2 * 4096}")
    a("s_waitcnt lgkmcnt(0)")
    for r in range(4):
        for w2 in range(1, 4):
            a(f"v_add_f32 v{32 + r}, v{32 + r}, v{32 + 4 * w2 + r}")
    a(f"s_lshl_b32 s26, s{task_sreg}, 12")
    a(f"s_add_u32 s26, s26, 0x{WS_OUTP:x}")
    a("v_add_u32 v12, s26, v12")
    a(f"global_store_dwordx4 v12, {vr(32)}, s[4:5]{SC}")


def gen_k3(a):
    kernel_header(a, "k3prj_kernel")
    if not FUSED:
        a("s_cmp_ge_u32 s2, 256")
        a("s_cbranch_scc1 K3_EXIT")
        stamp_init(a)
        a(f"s_load_dwordx2 s[4:5], s[0:1], {KA['ws']}")
    a(f"s_mov_b32 s21, 0x{LOG2E:x}")
    a("v_and_b32 v6, 63, v0")
    a("v_lshrrev_b32 v7, 6, v0")
    a("s_cmp_ge_u32 s2, 128")
    a("s_cbranch_scc1 K3_A")
    a(f"s_load_dwordx2 s[6:7], s[0:1], {KA['B_wuv']}")
    a(f"s_load_dwordx2 s[8:9], s[0:1], {KA['B_wo']}")
    a("s_and_b32 s12, s2, 31")
    a("s_lshr_b32 s13, s2, 5")
    a("v_lshrrev_b32 v1, 4, v0")
    a("v_and_b32 v2, 15, v0")
    a("s_lshl_b32 s14, s12, 3")
    a(f"s_add_u32 s14, s14, 0x{WS_BSTAT:x}")
    a("v_lshlrev_b32 v3, 8, v0")
    a("v_add_u32 v3, s14, v3")
    a("v_cmp_gt_u32 vcc, 128, v0")
    a("s_waitcnt lgkmcnt(0)")
    a("s_and_saveexec_b64 s[16:17], vcc")
    a("global_load_dwordx2 v[4:5], v3, s[4:5]" + SC)
    a("s_mov_b64 exec, s[16:17]")
    a("v_lshrrev_b32 v3, 5, v0")
    a("v_lshlrev_b32 v3, 20, v3")
    a("v_and_b32 v8, 31, v0")
    a("v_lshlrev_b32 v8, 4, v8")
    a("s_lshl_b32 s14, s12, 11")
    a("s_lshl_b32 s15, s13, 9")
    a("s_add_u32 s14, s14, s15")
    a("v_add3_u32 v3, v3, v8, s14")
    a(f"s_add_u32 s28, s4, 0x{WS_BPART:x}")
    a("s_addc_u32 s29, s5, 0")
    OP = 64
    for i in range(16):
        a(f"global_load_dwordx4 {vr(OP + 4 * i)}, v3, s[28:29]{SC}")
        if i < 15:
            a("v_add_u32 v3, 0x10000, v3")
    a("s_lshl_b32 s14, s13, 20")
    a("s_lshl_b32 s15, s12, 8")
    a("s_add_u32 s14, s14, s15")
    a("v_lshlrev_b32 v3, 16, v1")
    a("v_lshlrev_b32 v8, 4, v2")
    a("v_add3_u32 v3, v3, v8, s14")
    UV = 128
    for i in range(8):
        a(f"global_load_dwordx4 {vr(UV + 4 * i)}, v3, s[6:7]")
        if i < 7:
            a("v_add_u32 v3, 0x2000, v3")
    stamp(a, 1)
    a("s_waitcnt vmcnt(24)")
    make_xor_addrs(a, 6, [1, 2, 4, 8, 16, 32], 56)
    a("v_mov_b32 v9, v4")
    bperm_reduce(a, "v_max_f32", 9, range(56, 62), 10)
    a("v_sub_f32 v10, v4, v9")
    a("v_mul_f32 v10, s21, v10")
    a("v_exp_f32 v10, v10")
    a("s_nop 1")
    a("v_mul_f32 v11, v10, v5")
    bperm_reduce(a, "v_add_f32", 11, range(56, 62), 12)
    a("v_rcp_f32 v11, v11")
    a("s_nop 1")
    a("v_mul_f32 v10, v10, v11")
    a("v_lshlrev_b32 v12, 2, v0")
    a("s_and_saveexec_b64 s[16:17], vcc")
    a("ds_write_b32 v12, v10")
    a("s_mov_b64 exec, s[16:17]")
    a("s_waitcnt lgkmcnt(0)")
    a("s_barrier")
    stamp(a, 2)
    a("s_lshl_b32 s14, s12, 17")
    a("v_lshlrev_b32 v3, 15, v7")
    a("v_lshlrev_b32 v8, 4, v6")
    a("v_add3_u32 v3, v3, v8, s14")
    WO = 160
    a("v_lshrrev_b32 v12, 5, v0")
    a("v_lshlrev_b32 v12, 6, v12")
    for k in range(4):
        a(f"ds_read_b128 {vr(32 + 4 * k)}, v12 offset:{k * 16}")
    a("s_waitcnt vmcnt(8) lgkmcnt(0)")
    for i in range(16):
        for r in range(4):
            if i == 0:
                a(f"v_mul_f32 v{16 + r}, v{OP + r}, v32")
            else:
                a(f"v_fmac_f32 v{16 + r}, v{OP + 4 * i + r}, v{32 + i}")
    a("v_lshlrev_b32 v12, 4, v0")
    a(f"ds_write_b128 v12, {vr(16)} offset:1024")
    a("s_waitcnt lgkmcnt(0)")
    a("s_barrier")
    a("v_lshrrev_b32 v12, 7, v0")
    a("v_lshlrev_b32 v12, 11, v12")
    a("v_and_b32 v13, 127, v0")
    a("v_lshlrev_b32 v13, 2, v13")
    a("v_add_u32 v12, v12, v13")
    for jq in range(4):
        a(f"ds_read_b32 v{32 + jq}, v12 offset:{1024 + jq * 512}")
    a("s_waitcnt lgkmcnt(0)")
    a("v_add_f32 v32, v32, v33")
    a("v_add_f32 v34, v34, v35")
    a("v_add_f32 v32, v32, v34")
    a("v_lshlrev_b32 v12, 2, v0")
    a("ds_write_b32 v12, v32 offset:8192")
    for i in range(24):
        a(f"global_load_dwordx4 {vr(WO + 4 * i)}, v3, s[8:9]")
        a("v_add_u32 v3, 0x400, v3")
    a("s_waitcnt lgkmcnt(0)")
    a("s_barrier")
    stamp(a, 3)
    a("v_lshlrev_b32 v12, 5, v1")
    for b in range(2):
        for k in range(2):
            a(f"ds_read_b128 {vr(32 + (b * 2 + k) * 4)}, v12 offset:{8192 + b * 512 + k * 16}")
    for r in range(16, 32):
        a(f"v_mov_b32 v{r}, 0")
    a("s_waitcnt vmcnt(24) lgkmcnt(0)")
    for i in range(8):
        fma16(a, UV + 4 * i, 32 + i, 40 + i, 16, 48)
    a("v_lshlrev_b32 v12, 10, v1")
    a("v_lshlrev_b32 v13, 5, v2")
    a("v_add_u32 v12, v12, v13")
    a(f"ds_write_b128 v12, {vr(16)} offset:16384")
    a(f"ds_write_b128 v12, {vr(20)} offset:16400")
    a(f"ds_write_b128 v12, {vr(24)} offset:16896")
    a(f"ds_write_b128 v12, {vr(28)} offset:16912")
    for i in range(24, 32):
        a(f"global_load_dwordx4 {vr(64 + 4 * (i - 24))}, v3, s[8:9]")
        if i < 31:
            a("v_add_u32 v3, 0x400, v3")
    a("s_waitcnt lgkmcnt(0)")
    a("s_barrier")
    a("v_lshlrev_b32 v12, 2, v0")
    for rg in range(16):
        a(f"ds_read_b32 v{32 + rg}, v12 offset:{16384 + rg * 1024}")
    a("s_waitcnt lgkmcnt(0)")
    for rg in range(1, 16):
        a(f"v_add_f32 v32, v32, v{32 + rg}")
    a("ds_write_b32 v12, v32 offset:32768")
    a("s_waitcnt lgkmcnt(0)")
    a("s_barrier")
    stamp(a, 4)
    a("v_lshlrev_b32 v12, 7, v7")
    MUL = 96
    for b in range(2):
        for k in range(8):
            a(f"ds_read_b128 {vr(MUL + b * 32 + 4 * k)}, v12 offset:{32768 + b * 512 + k * 16}")
    for r in range(16, 32):
        a(f"v_mov_b32 v{r}, 0")
    a("s_waitcnt vmcnt(0) lgkmcnt(0)")
    for i in range(32):
        src = WO + 4 * i if i < 24 else 64 + 4 * (i - 24)
        fma16(a, src, MUL + i, MUL + 32 + i, 16, 48)
    stamp(a, 5)
    a("s_barrier")
    a("s_add_u32 s15, s2, 128")
    final_out_reduce(a, 15, 16)
    a("s_branch K3_END")
    a.label("K3_A")
    a(f"s_load_dwordx2 s[8:9], s[0:1], {KA['A_wo']}")
    a("s_sub_u32 s11, s2, 128")
    a("s_and_b32 s12, s11, 31")
    a("s_lshr_b32 s13, s11, 5")
    a("s_lshr_b32 s14, s12, 2")
    a("s_and_b32 s15, s12, 3")
    a("v_lshrrev_b32 v1, 5, v0")
    a("v_and_b32 v2, 31, v0")
    a("v_lshlrev_b32 v3, 8, v1")
    a("v_add_u32 v3, v3, v2")
    a("s_lshl_b32 s18, s14, 5")
    a("v_add_u32 v3, s18, v3")
    a("v_lshlrev_b32 v4, 5, v3")
    a("s_lshl_b32 s19, s15, 3")
    a(f"s_add_u32 s19, s19, 0x{WS_ASTAT:x}")
    a("v_add_u32 v4, s19, v4")
    a("v_cmp_gt_u32 vcc, 64, v0")
    a("s_waitcnt lgkmcnt(0)")
    a("s_and_saveexec_b64 s[16:17], vcc")
    a("global_load_dwordx2 v[4:5], v4, s[4:5]" + SC)
    a("s_mov_b64 exec, s[16:17]")
    a("v_lshrrev_b32 v1, 7, v0")
    a("v_bfe_u32 v2, v0, 2, 5")
    a("v_lshlrev_b32 v3, 8, v1")
    a("v_add_u32 v3, v3, v2")
    a("v_add_u32 v3, s18, v3")
    a("v_lshlrev_b32 v3, 11, v3")
    a("v_and_b32 v8, 3, v0")
    a("v_lshlrev_b32 v8, 5, v8")
    a("s_lshl_b32 s19, s15, 9")
    a("s_lshl_b32 s22, s13, 7")
    a("s_add_u32 s19, s19, s22")
    a(f"s_add_u32 s19, s19, 0x{WS_APART:x}")
    a("v_add3_u32 v3, v3, v8, s19")
    a(f"global_load_dwordx4 {vr(64)}, v3, s[4:5]{SC}")
    a(f"global_load_dwordx4 {vr(68)}, v3, s[4:5] offset:16{SC}")
    a("s_lshl_b32 s22, s12, 17")
    a("s_lshl_b32 s23, s13, 15")
    a("s_add_u32 s22, s22, s23")
    a("v_lshlrev_b32 v3, 13, v7")
    a("v_lshlrev_b32 v8, 4, v6")
    a("v_add3_u32 v3, v3, v8, s22")
    for i in range(8):
        a(f"global_load_dwordx4 {vr(96 + 4 * i)}, v3, s[8:9] offset:{(i % 4) * 1024}")
        if i == 3:
            a("v_add_u32 v3, 0x1000, v3")
    a("s_waitcnt vmcnt(10)")
    make_xor_addrs(a, 6, [1, 2, 4, 8, 16], 56)
    a("v_mov_b32 v9, v4")
    bperm_reduce(a, "v_max_f32", 9, range(56, 61), 10)
    a("v_sub_f32 v10, v4, v9")
    a("v_mul_f32 v10, s21, v10")
    a("v_exp_f32 v10, v10")
    a("s_nop 1")
    a("v_mul_f32 v11, v10, v5")
    bperm_reduce(a, "v_add_f32", 11, range(56, 61), 12)
    a("v_rcp_f32 v11, v11")
    a("s_nop 1")
    a("v_mul_f32 v10, v10, v11")
    a("v_lshlrev_b32 v12, 2, v0")
    a("s_and_saveexec_b64 s[16:17], vcc")
    a("ds_write_b32 v12, v10")
    a("s_mov_b64 exec, s[16:17]")
    a("s_waitcnt lgkmcnt(0)")
    a("s_barrier")
    a("v_lshrrev_b32 v12, 2, v0")
    a("v_lshlrev_b32 v12, 2, v12")
    a("ds_read_b32 v13, v12")
    a("s_waitcnt vmcnt(8) lgkmcnt(0)")
    for r in range(8):
        a(f"v_mul_f32 v{64 + r}, v{64 + r}, v13")
    a("v_lshlrev_b32 v12, 5, v0")
    a(f"ds_write_b128 v12, {vr(64)} offset:1024")
    a(f"ds_write_b128 v12, {vr(68)} offset:1040")
    a("s_waitcnt lgkmcnt(0)")
    a("s_barrier")
    a("v_lshrrev_b32 v12, 5, v0")
    a("v_lshlrev_b32 v12, 12, v12")
    a("v_and_b32 v13, 31, v0")
    a("v_lshlrev_b32 v13, 2, v13")
    a("v_add_u32 v12, v12, v13")
    a("s_and_saveexec_b64 s[16:17], vcc")
    a("s_cbranch_execz K3A_SKIP")
    for sp in range(32):
        a(f"ds_read_b32 v{128 + sp}, v12 offset:{1024 + sp * 128}")
    a("s_waitcnt lgkmcnt(0)")
    for sp in range(1, 32):
        a(f"v_add_f32 v128, v128, v{128 + sp}")
    bf16_round_pair(a, 128, 129, 130)
    a("v_lshlrev_b32 v13, 2, v0")
    a("ds_write_b32 v13, v128 offset:16384")
    a.label("K3A_SKIP")
    a("s_mov_b64 exec, s[16:17]")
    a("s_waitcnt lgkmcnt(0)")
    a("s_barrier")
    a("v_lshlrev_b32 v12, 5, v7")
    for b in range(2):
        for k in range(2):
            a(f"ds_read_b128 {vr(32 + (b * 2 + k) * 4)}, v12 offset:{16384 + b * 128 + k * 16}")
    for r in range(16, 32):
        a(f"v_mov_b32 v{r}, 0")
    a("s_waitcnt vmcnt(0) lgkmcnt(0)")
    for i in range(8):
        fma16(a, 96 + 4 * i, 32 + i, 40 + i, 16, 48)
    a("s_barrier")
    final_out_reduce(a, 11, 16)
    a.label("K3_END")
    if FUSED:
        return
    stamp(a, 7)
    stamp_flush(a, 2)
    a.label("K3_EXIT")
    a("s_endpgm")


def gen_k4(a):
    kernel_header(a, "k4fin_kernel")
    a("s_cmp_ge_u32 s2, 16")
    a("s_cbranch_scc1 K4_EXIT2" if FUSED else "s_cbranch_scc1 K4_EXIT")
    if not FUSED:
        stamp_init(a)
        a(f"s_load_dwordx2 s[4:5], s[0:1], {KA['ws']}")
    a(f"s_load_dwordx2 s[6:7], s[0:1], {KA['out']}")
    a("s_lshr_b32 s10, s2, 3")
    a("s_bfe_u32 s11, s2, 0x10002")
    a("s_and_b32 s12, s2, 3")
    a("v_lshrrev_b32 v1, 5, v0")
    a("v_and_b32 v2, 31, v0")
    a("s_lshl_b32 s13, s10, 19")
    a("s_lshl_b32 s14, s11, 11")
    a("s_add_u32 s13, s13, s14")
    a("s_lshl_b32 s14, s12, 9")
    a("s_add_u32 s13, s13, s14")
    a(f"s_add_u32 s13, s13, 0x{WS_OUTP:x}")
    a("v_lshlrev_b32 v3, 16, v1")
    a("v_lshlrev_b32 v4, 4, v2")
    a("v_add3_u32 v3, v3, v4, s13")
    a("s_waitcnt lgkmcnt(0)")
    for i in range(16):
        a(f"global_load_dwordx4 {vr(16 + 4 * i)}, v3, s[4:5]{SC}")
        if i < 15:
            a("v_add_u32 v3, 0x1000, v3")
    a("s_waitcnt vmcnt(0)")
    for i in range(1, 16):
        for r in range(4):
            a(f"v_add_f32 v{16 + r}, v{16 + r}, v{16 + 4 * i + r}")
    a("v_lshlrev_b32 v5, 4, v0")
    a(f"ds_write_b128 v5, {vr(16)}")
    a("s_waitcnt lgkmcnt(0)")
    a("s_barrier")
    a("v_cmp_gt_u32 vcc, 32, v0")
    a("s_nop 1")
    a("s_and_saveexec_b64 s[16:17], vcc")
    a("s_cbranch_execz K4_SKIP")
    for tg in range(8):
        a(f"ds_read_b128 {vr(16 + 4 * tg)}, v5 offset:{tg * 512}")
    a("s_waitcnt lgkmcnt(0)")
    for tg in range(1, 8):
        for r in range(4):
            a(f"v_add_f32 v{16 + r}, v{16 + r}, v{16 + 4 * tg + r}")
    a("v_cvt_pk_bf16_f32 v8, v16, v17")
    a("v_cvt_pk_bf16_f32 v9, v18, v19")
    a("s_lshl_b32 s13, s11, 11")
    a("s_lshl_b32 s14, s10, 10")
    a("s_add_u32 s13, s13, s14")
    a("s_lshl_b32 s14, s12, 8")
    a("s_add_u32 s13, s13, s14")
    a("v_lshlrev_b32 v6, 3, v2")
    a("v_add_u32 v6, s13, v6")
    a("global_store_dwordx2 v6, v[8:9], s[6:7]")
    a.label("K4_SKIP")
    a("s_mov_b64 exec, s[16:17]")
    a.label("K4_END")
    a.label("K4_EXIT2")
    stamp_slot(a, 15)
    stamp_flush(a, 3)
    a.label("K4_EXIT")
    a("s_endpgm")


def grid_arrive(a, idx):
    L = f"GB{idx}"
    a("s_waitcnt vmcnt(0) lgkmcnt(0)")
    a("s_barrier")
    a("v_cmp_eq_u32 vcc, 0, v0")
    a("v_mov_b32 v1, 1")
    a(f"v_mov_b32 v2, {idx * 64}")
    a("s_nop 1")
    a("s_and_saveexec_b64 s[16:17], vcc")
    a(f"s_cbranch_execz {L}_A")
    a("global_atomic_add v2, v1, s[30:31] sc1")
    a.label(f"{L}_A")
    a("s_mov_b64 exec, s[16:17]")


def grid_wait(a, idx, target=256):
    L = f"GB{idx}"
    a("v_cmp_eq_u32 vcc, 0, v0")
    a(f"v_mov_b32 v2, {idx * 64}")
    a("s_nop 1")
    a("s_and_saveexec_b64 s[16:17], vcc")
    a(f"s_cbranch_execz {L}_W")
    a("s_mov_b32 s18, 0")
    a.label(f"{L}_P")
    a("global_load_dword v3, v2, s[30:31] sc1")
    a("s_waitcnt vmcnt(0)")
    a("v_readfirstlane_b32 s19, v3")
    a("s_add_u32 s18, s18, 1")
    a(f"s_cmp_ge_u32 s19, {target}")
    a(f"s_cbranch_scc1 {L}_W")
    a("s_sleep 2")
    a("s_cmp_lt_u32 s18, 0x400000")
    a(f"s_cbranch_scc1 {L}_P")
    a.label(f"{L}_W")
    a("s_mov_b64 exec, s[16:17]")
    a("s_barrier")


def grid_barrier(a, idx, target=256, drain=0):
    grid_arrive(a, idx)
    grid_wait(a, idx, target)


HEADER = open("cdna_kernels/" + NAME + ".s.ref").read().split("; @launch")[0]


def main_fused(out):
    a = Asm()
    name = NAME + "_kernel"
    a.raw(f".globl {name}")
    a.raw(".p2align 8")
    a.raw(f".type {name},@function")
    a.label(name)
    a("s_cmp_ge_u32 s2, 256")
    a("s_cbranch_scc1 K4_EXIT")
    a(f"s_load_dwordx2 s[4:5], s[0:1], {KA['ws']}")
    a(f"s_load_dwordx2 s[30:31], s[0:1], {KA['dbg']}")
    stamp_init(a)
    CUR_PHASE[0] = 1
    gen_k1(a)
    stamp_slot(a, 3)
    grid_barrier(a, 0)
    stamp_slot(a, 4)
    CUR_PHASE[0] = 2
    gen_k2(a)
    stamp_slot(a, 8)
    grid_barrier(a, 1)
    stamp_slot(a, 9)
    CUR_PHASE[0] = 3
    gen_k3(a)
    stamp_slot(a, 13)
    grid_barrier(a, 2)
    stamp_slot(a, 14)
    CUR_PHASE[0] = 4
    gen_k4(a)
    txt = HEADER
    txt += f"; @launch grid=(256,1,1) block=(256,1,1) lds={K2_LDS}\n"
    txt += '.amdgcn_target "amdgcn-amd-amdhsa--gfx950"\n.text\n'
    txt += a.text()
    txt += '.section .rodata,"a"\n.p2align 6\n'
    txt += descriptor(name, 256)
    open(out, "w").write(txt)


def main3(out):
    global FUSED
    global STAMP
    a = Asm()
    FUSED = True
    name = "k12_kernel"
    a.raw(f".globl {name}")
    a.raw(".p2align 8")
    a.raw(f".type {name},@function")
    a.label(name)
    a("s_cmp_ge_u32 s2, 256")
    a("s_cbranch_scc1 K2_EXIT")
    a(f"s_load_dwordx2 s[4:5], s[0:1], {KA['ws']}")
    a(f"s_load_dwordx2 s[30:31], s[0:1], {KA['dbg']}")
    stamp_init(a)
    CUR_PHASE[0] = 1
    gen_k1(a)
    stamp_slot(a, 3)
    CUR_PHASE[0] = 2
    gen_k2(a)
    stamp_slot(a, 8)
    stamp_flush(a, 0)
    a.label("K2_EXIT")
    a("s_endpgm")
    FUSED = False
    _st = STAMP
    STAMP = False
    gen_k3(a)
    gen_k4(a)
    STAMP = _st
    txt = HEADER
    txt += f"; @launch kernel=k12_kernel grid=(256,1,1) block=(256,1,1) lds={K2_LDS}\n"
    txt += "; @launch kernel=k3prj_kernel grid=(256,1,1) block=(256,1,1) lds=36864\n"
    txt += "; @launch kernel=k4fin_kernel grid=(16,1,1) block=(256,1,1) lds=4096\n"
    txt += '.amdgcn_target "amdgcn-amd-amdhsa--gfx950"\n.text\n'
    txt += a.text()
    txt += '.section .rodata,"a"\n.p2align 6\n'
    txt += descriptor("k12_kernel", 384).replace(".amdhsa_accum_offset 384", ".amdhsa_accum_offset 256")
    txt += descriptor("k3prj_kernel", 256)
    txt += descriptor("k4fin_kernel", 256)
    open(out, "w").write(txt)


def main(out):
    global FUSED, SCQ
    FUSED = False
    SCQ = ""
    a = Asm()
    gen_k1(a)
    gen_k2(a)
    gen_k3(a)
    gen_k4(a)
    txt = HEADER
    txt += "; @launch kernel=k1q_kernel grid=(192,1,1) block=(256,1,1) lds=20480\n"
    txt += f"; @launch kernel=k2att_kernel grid=(256,1,1) block=(256,1,1) lds={K2_LDS}\n"
    txt += "; @launch kernel=k3prj_kernel grid=(256,1,1) block=(256,1,1) lds=36864\n"
    txt += "; @launch kernel=k4fin_kernel grid=(16,1,1) block=(256,1,1) lds=4096\n"
    txt += '.amdgcn_target "amdgcn-amd-amdhsa--gfx950"\n.text\n'
    txt += a.text()
    txt += '.section .rodata,"a"\n.p2align 6\n'
    for k in ["k1q_kernel", "k2att_kernel", "k3prj_kernel", "k4fin_kernel"]:
        if k == "k2att_kernel":
            txt += descriptor(k, 384).replace(".amdhsa_accum_offset 384", ".amdhsa_accum_offset 256")
        else:
            txt += descriptor(k, 256)
    open(out, "w").write(txt)


if __name__ == "__main__":
    if len(sys.argv) > 2 and sys.argv[2] == "stamp":
        STAMP = True
    main(sys.argv[1] if len(sys.argv) > 1 else "cdna_kernels/" + NAME + ".s")
```

```python
import sys

NAME = "concat_heads__sliding_block_cached__compressed_kv_cla__decode"

WS_QA    = 0x0
WS_QABS  = 0x10000
WS_APART = 0x100000
WS_ASTAT = 0x200000
WS_BSTAT = 0x210000
WS_BPART = 0x400000
WS_OUTP  = 0x1000000

KA = dict(A_x=0, A_k=8, A_v=16, A_wq=24, A_wo=32, B_x=40, B_ckv=48, B_wq=56, B_wuk=64,
          B_wuv=72, B_wo=80, out=88, dbg=96, ws=104)

LOG2E = 0x3fb8aa3b
SCALE = 0x3db504f3
HIMASK = 0xffff0000
STG = 288


class Asm:
    def __init__(self):
        self.lines = []

    def __call__(self, s):
        for ln in s.split("\n"):
            self.lines.append("    " + ln.strip())

    def label(self, s):
        self.lines.append(s + ":")

    def raw(self, s):
        self.lines.append(s)

    def text(self):
        return "\n".join(self.lines) + "\n"


def vr(base, n=4):
    return f"v[{base}:{base + n - 1}]"


def ar_(base, n=4):
    return f"a[{base}:{base + n - 1}]"


def unpack8(a, src, dst):
    for p in range(4):
        a(f"v_lshlrev_b32 v{dst + 2 * p}, 16, v{src + p}")
        a(f"v_and_b32 v{dst + 2 * p + 1}, 0x{HIMASK:x}, v{src + p}")


def unpack1(a, src_reg, idx, dst):
    r = src_reg + (idx >> 1)
    if idx & 1:
        a(f"v_and_b32 v{dst}, 0x{HIMASK:x}, v{r}")
    else:
        a(f"v_lshlrev_b32 v{dst}, 16, v{r}")


def bf16_round_pair(a, x0, x1, tmp):
    a(f"v_cvt_pk_bf16_f32 v{tmp}, v{x0}, v{x1}")
    a(f"v_lshlrev_b32 v{x0}, 16, v{tmp}")
    a(f"v_and_b32 v{x1}, 0x{HIMASK:x}, v{tmp}")


def bperm_reduce(a, op, val, addr_regs, tmp):
    for ar in addr_regs:
        a(f"ds_bpermute_b32 v{tmp}, v{ar}, v{val}")
        a("s_waitcnt lgkmcnt(0)")
        a(f"{op} v{val}, v{val}, v{tmp}")


def make_xor_addrs(a, lane, masks, dst0):
    for i, m in enumerate(masks):
        a(f"v_xor_b32 v{dst0 + i}, {m}, v{lane}")
        a(f"v_lshlrev_b32 v{dst0 + i}, 2, v{dst0 + i}")


STAMP = False
FUSED = True
SC = ""
SCQ = " sc1"
WS_STAMP = 0x2000000


CUR_PHASE = [0]
PH_MAP = {1: {0: 0, 1: 1, 2: 2}, 2: {1: 5, 3: 6, 5: 7}, 3: {1: 10, 3: 11, 5: 12}, 4: {}}


def stamp_init(a):
    if STAMP:
        for r in range(64, 96):
            a(f"s_mov_b32 s{r}, 0")
        stamp_slot(a, 0)


def stamp_slot(a, k):
    if STAMP:
        a(f"s_memrealtime s[{64 + 2 * k}:{65 + 2 * k}]")


def stamp(a, k):
    if STAMP:
        m = PH_MAP.get(CUR_PHASE[0], {})
        if k in m:
            stamp_slot(a, m[k])


def stamp_flush(a, kidx):
    if not STAMP:
        return
    a("s_waitcnt vmcnt(0) lgkmcnt(0)")
    a("v_lshrrev_b32 v1, 6, v0")
    a("s_nop 1")
    a("v_readfirstlane_b32 s32, v1")
    a(f"s_lshl_b32 s33, s2, 9")
    a("s_lshl_b32 s32, s32, 7")
    a("s_add_u32 s33, s33, s32")
    a(f"s_add_u32 s33, s33, 0x{WS_STAMP:x}")
    a("v_mov_b32 v2, s33")
    for k in range(32):
        a(f"v_mov_b32 v{4 + k}, s{64 + k}")
    a("s_mov_b64 s[34:35], exec")
    a("s_mov_b64 exec, 1")
    a("s_nop 3")
    for k in range(8):
        a(f"global_store_dwordx4 v2, {vr(4 + 4 * k)}, s[4:5] offset:{16 * k}")
    a("s_mov_b64 exec, s[34:35]")


def kernel_header(a, name):
    if FUSED:
        return
    a.raw(f".globl {name}")
    a.raw(".p2align 8")
    a.raw(f".type {name},@function")
    a.label(name)


def descriptor(name, vgpr, sgpr=96):
    acc = (vgpr + 3) // 4 * 4
    return f""".amdhsa_kernel {name}
  .amdhsa_next_free_vgpr {vgpr}
  .amdhsa_next_free_sgpr {sgpr}
  .amdhsa_accum_offset {acc}
  .amdhsa_group_segment_fixed_size 0
  .amdhsa_kernarg_size 112
  .amdhsa_user_sgpr_count 2
  .amdhsa_user_sgpr_kernarg_segment_ptr 1
  .amdhsa_system_sgpr_workgroup_id_x 1
.end_amdhsa_kernel
"""


def gen_k1(a):
    kernel_header(a, "k1q_kernel")
    if FUSED:
        a("s_cmp_ge_u32 s2, 192")
        a("s_cbranch_scc1 K1_END")
    else:
        a("s_cmp_ge_u32 s2, 192")
        a("s_cbranch_scc1 K1_EXIT")
        stamp_init(a)
        a(f"s_load_dwordx2 s[4:5], s[0:1], {KA['ws']}")
    a("s_cmp_ge_u32 s2, 128")
    a("s_cbranch_scc1 K1_A")
    a(f"s_load_dwordx2 s[6:7], s[0:1], {KA['B_x']}")
    a(f"s_load_dwordx2 s[8:9], s[0:1], {KA['B_wq']}")
    a(f"s_load_dwordx2 s[10:11], s[0:1], {KA['B_wuk']}")
    a("s_and_b32 s12, s2, 31")
    a("s_lshr_b32 s13, s2, 5")
    a("s_lshl_b32 s14, s12, 8")
    a("v_lshrrev_b32 v1, 4, v0")
    a("v_and_b32 v2, 15, v0")
    a("v_lshlrev_b32 v3, 18, v1")
    a("v_lshlrev_b32 v4, 4, v2")
    a("v_add3_u32 v3, v3, v4, s14")
    a("v_lshlrev_b32 v5, 6, v1")
    a("v_and_b32 v6, 63, v0")
    a("v_lshrrev_b32 v7, 6, v0")
    a("v_and_b32 v8, 15, v6")
    a("v_lshrrev_b32 v9, 4, v6")
    a("s_lshl_b32 s15, s13, 7")
    a("v_lshlrev_b32 v10, 5, v7")
    a("v_add3_u32 v10, v10, v8, s15")
    a("v_lshlrev_b32 v10, 13, v10")
    a("v_lshlrev_b32 v11, 4, v9")
    a("v_add3_u32 v10, v10, v11, s14")
    a("v_add_u32 v11, 0x20000, v10")
    a("s_waitcnt lgkmcnt(0)")
    XB = [192, 208]
    for b in range(2):
        for k in range(4):
            a(f"global_load_dwordx4 {vr(XB[b] + 4 * k)}, v5, s[6:7] offset:{b * 1024 + k * 16}")
    W0 = 64
    for i in range(32):
        a(f"global_load_dwordx4 {vr(W0 + 4 * i)}, v3, s[8:9]")
        a("v_add_u32 v3, 0x2000, v3")
    UK = 224
    for mt in range(2):
        for t in range(4):
            a(f"global_load_dwordx4 {vr(UK + (mt * 4 + t) * 4)}, v{10 + mt}, s[10:11] offset:{t * 64}")
    stamp(a, 1)
    for r in range(16, 32):
        a(f"v_mov_b32 v{r}, 0")
    for i in range(32):
        a(f"s_waitcnt vmcnt({39 - i})")
        unpack8(a, W0 + 4 * i, 32)
        unpack1(a, XB[0], i, 40)
        unpack1(a, XB[1], i, 41)
        for e in range(8):
            a(f"v_fmac_f32 v{16 + e}, v{32 + e}, v40")
            a(f"v_fmac_f32 v{24 + e}, v{32 + e}, v41")
    stamp(a, 2)
    a("v_lshlrev_b32 v12, 10, v1")
    a("v_lshlrev_b32 v13, 5, v2")
    a("v_add_u32 v12, v12, v13")
    a(f"ds_write_b128 v12, {vr(16)}")
    a(f"ds_write_b128 v12, {vr(20)} offset:16")
    a(f"ds_write_b128 v12, {vr(24)} offset:512")
    a(f"ds_write_b128 v12, {vr(28)} offset:528")
    a("s_waitcnt lgkmcnt(0)")
    a("s_barrier")
    a("v_lshlrev_b32 v12, 2, v0")
    for rg in range(16):
        a(f"ds_read_b32 v{32 + rg}, v12 offset:{rg * 1024}")
    a("s_waitcnt lgkmcnt(0)")
    for rg in range(1, 16):
        a(f"v_add_f32 v32, v32, v{32 + rg}")
    a("v_cvt_pk_bf16_f32 v33, v32, v32")
    a("v_lshlrev_b32 v13, 1, v0")
    a("ds_write_b16 v13, v33 offset:16384")
    QF = 64
    for r in range(QF, QF + 16):
        a(f"v_mov_b32 v{r}, 0")
    a("s_waitcnt lgkmcnt(0)")
    a("s_barrier")
    stamp(a, 3)
    a("v_cmp_gt_u32 vcc, 2, v8")
    a("v_lshlrev_b32 v12, 8, v8")
    a("v_lshlrev_b32 v13, 4, v9")
    a("v_add_u32 v12, v12, v13")
    a("s_nop 1")
    a("s_and_saveexec_b64 s[16:17], vcc")
    for t in range(4):
        a(f"ds_read_b128 {vr(QF + 4 * t)}, v12 offset:{16384 + t * 64}")
    a("s_mov_b64 exec, s[16:17]")
    a("s_waitcnt vmcnt(0) lgkmcnt(0)")
    D0 = 96
    for mt in range(2):
        for t in range(4):
            c = "0" if t == 0 else vr(D0 + 4 * mt)
            a(f"v_mfma_f32_16x16x32_bf16 {vr(D0 + 4 * mt)}, {vr(UK + (mt * 4 + t) * 4)}, {vr(QF + 4 * t)}, {c}")
    a("s_nop 7")
    a("s_nop 7")
    for mt in range(2):
        a(f"v_cvt_pk_bf16_f32 v{104 + 2 * mt}, v{D0 + 4 * mt}, v{D0 + 4 * mt + 1}")
        a(f"v_cvt_pk_bf16_f32 v{105 + 2 * mt}, v{D0 + 4 * mt + 2}, v{D0 + 4 * mt + 3}")
    a("v_lshlrev_b32 v12, 15, v8")
    a("v_lshlrev_b32 v13, 6, v7")
    a("v_lshlrev_b32 v14, 3, v9")
    a("v_add3_u32 v12, v12, v13, v14")
    a("s_lshl_b32 s18, s12, 10")
    a("s_lshl_b32 s19, s13, 8")
    a("s_add_u32 s18, s18, s19")
    a(f"s_add_u32 s18, s18, 0x{WS_QABS:x}")
    a("v_add_u32 v12, s18, v12")
    a("s_and_saveexec_b64 s[16:17], vcc")
    a("global_store_dwordx2 v12, v[104:105], s[4:5]" + SCQ)
    a("global_store_dwordx2 v12, v[106:107], s[4:5] offset:32" + SCQ)
    a("s_mov_b64 exec, s[16:17]")
    a("s_branch K1_END")
    a.label("K1_A")
    a(f"s_load_dwordx2 s[6:7], s[0:1], {KA['A_x']}")
    a(f"s_load_dwordx2 s[8:9], s[0:1], {KA['A_wq']}")
    a("s_sub_u32 s12, s2, 128")
    a("s_lshl_b32 s14, s12, 7")
    a("v_lshrrev_b32 v1, 3, v0")
    a("v_and_b32 v2, 7, v0")
    a("v_lshlrev_b32 v3, 17, v1")
    a("v_lshlrev_b32 v4, 4, v2")
    a("v_add3_u32 v3, v3, v4, s14")
    a("v_lshlrev_b32 v5, 5, v1")
    a("s_waitcnt lgkmcnt(0)")
    XA = [160, 168]
    for b in range(2):
        for k in range(2):
            a(f"global_load_dwordx4 {vr(XA[b] + 4 * k)}, v5, s[6:7] offset:{b * 1024 + k * 16}")
    for i in range(16):
        a(f"global_load_dwordx4 {vr(W0 + 4 * i)}, v3, s[8:9]")
        a("v_add_u32 v3, 0x2000, v3")
    for r in range(16, 32):
        a(f"v_mov_b32 v{r}, 0")
    for i in range(16):
        a(f"s_waitcnt vmcnt({15 - i})")
        unpack8(a, W0 + 4 * i, 32)
        unpack1(a, XA[0], i, 40)
        unpack1(a, XA[1], i, 41)
        for e in range(8):
            a(f"v_fmac_f32 v{16 + e}, v{32 + e}, v40")
            a(f"v_fmac_f32 v{24 + e}, v{32 + e}, v41")
    a("v_lshlrev_b32 v12, 9, v1")
    a("v_lshlrev_b32 v13, 5, v2")
    a("v_add_u32 v12, v12, v13")
    a(f"ds_write_b128 v12, {vr(16)}")
    a(f"ds_write_b128 v12, {vr(20)} offset:16")
    a(f"ds_write_b128 v12, {vr(24)} offset:256")
    a(f"ds_write_b128 v12, {vr(28)} offset:272")
    a("s_waitcnt lgkmcnt(0)")
    a("s_barrier")
    a("v_cmp_gt_u32 vcc, 128, v0")
    a("v_lshlrev_b32 v12, 2, v0")
    a("s_nop 1")
    a("s_and_saveexec_b64 s[16:17], vcc")
    a("s_cbranch_execz K1_A_SKIP")
    for rg in range(32):
        a(f"ds_read_b32 v{64 + rg}, v12 offset:{rg * 512}")
    a("s_waitcnt lgkmcnt(0)")
    for rg in range(1, 32):
        a(f"v_add_f32 v64, v64, v{64 + rg}")
    a("v_cvt_pk_bf16_f32 v65, v64, v64")
    a("v_lshrrev_b32 v13, 6, v0")
    a("v_lshlrev_b32 v13, 13, v13")
    a("v_and_b32 v14, 63, v0")
    a("v_lshlrev_b32 v14, 1, v14")
    a("v_add3_u32 v13, v13, v14, s14")
    a(f"global_store_short v13, v65, s[4:5] offset:{WS_QA}{SCQ}")
    a.label("K1_A_SKIP")
    a("s_mov_b64 exec, s[16:17]")
    a.label("K1_END")
    if FUSED:
        return
    stamp(a, 7)
    stamp_flush(a, 0)
    a.label("K1_EXIT")
    a("s_endpgm")


L_PB = 0
L_MX = L_PB + 8192
L_LB = L_MX + 2048
L_STG = L_LB + 2048
L_SX = L_STG + 4 * 9216
K2_LDS = L_SX + 65536


def score_round16(a, regs, tmp):
    for i in range(0, len(regs), 2):
        x0, x1 = regs[i], regs[i + 1]
        bf16_round_pair(a, x0, x1, tmp)
        a(f"v_mul_f32 v{x0}, s20, v{x0}")
        a(f"v_mul_f32 v{x1}, s20, v{x1}")
        bf16_round_pair(a, x0, x1, tmp)


def exp_inplace(a, regs, mreg, tmp):
    for r in regs:
        a(f"v_sub_f32 v{r}, v{r}, v{mreg}")
        a(f"v_mul_f32 v{r}, s21, v{r}")
        a(f"v_exp_f32 v{r}, v{r}")
    a("s_nop 1")


def gen_k2_a_pre(a):
    a.label("K2_APRE")
    a(f"s_load_dwordx2 s[6:7], s[0:1], {KA['A_k']}")
    a(f"s_load_dwordx2 s[8:9], s[0:1], {KA['A_v']}")
    a("s_sub_u32 s23, s2, 128")
    a("s_lshr_b32 s24, s23, 3")
    a("s_and_b32 s25, s23, 7")
    a("s_waitcnt lgkmcnt(0)")
    a("s_lshl_b32 s26, s24, 21")
    a("s_lshl_b32 s27, s25, 16")
    a("s_add_u32 s26, s26, s27")
    a("s_lshl_b32 s27, s22, 14")
    a("s_add_u32 s26, s26, s27")
    a(f"s_add_u32 s26, s26, {6144 * 256}")
    a("s_add_u32 s6, s6, s26")
    a("s_addc_u32 s7, s7, 0")
    a("s_add_u32 s8, s8, s26")
    a("s_addc_u32 s9, s9, 0")
    a("v_lshlrev_b32 v10, 8, v8")
    a("v_lshlrev_b32 v11, 4, v9")
    a("v_add_u32 v10, v10, v11")
    a("v_mov_b32 v12, v10")
    for mt in range(4):
        for t in range(4):
            a(f"global_load_dwordx4 {ar_((mt * 4 + t) * 4)}, v12, s[6:7] offset:{t * 64}")
        if mt < 3:
            a("v_add_u32 v12, 0x1000, v12")
    a("v_lshlrev_b32 v12, 4, v6")
    for i in range(16):
        if i and i % 4 == 0:
            a("v_add_u32 v12, 0x1000, v12")
        a(f"global_load_dwordx4 {ar_(64 + 4 * i)}, v12, s[8:9] offset:{(i % 4) * 1024}")


def gen_k2(a):
    kernel_header(a, "k2att_kernel")
    if not FUSED:
        a("s_cmp_ge_u32 s2, 256")
        a("s_cbranch_scc1 K2_EXIT")
        stamp_init(a)
        a(f"s_load_dwordx2 s[4:5], s[0:1], {KA['ws']}")
    if FUSED:
        grid_arrive(a, 0)
    a(f"s_mov_b32 s20, 0x{SCALE:x}")
    a(f"s_mov_b32 s21, 0x{LOG2E:x}")
    a("v_and_b32 v6, 63, v0")
    a("v_lshrrev_b32 v7, 6, v0")
    a("s_nop 0")
    a("v_readfirstlane_b32 s22, v7")
    a("v_and_b32 v8, 15, v6")
    a("v_lshrrev_b32 v9, 4, v6")
    a("s_cmp_ge_u32 s2, 128")
    a("s_cbranch_scc1 K2_APRE")
    a(f"s_load_dwordx2 s[6:7], s[0:1], {KA['B_ckv']}")
    a("s_lshr_b32 s23, s2, 6")
    a("s_and_b32 s24, s2, 63")
    a("s_waitcnt lgkmcnt(0)")
    a("s_lshl_b32 s25, s2, 17")
    a("s_lshl_b32 s26, s22, 8")
    a("s_add_u32 s25, s25, s26")
    a("s_add_u32 s6, s6, s25")
    a("s_addc_u32 s7, s7, 0")
    a("s_lshl_b32 s25, s23, 15")
    a("s_lshl_b32 s26, s22, 8")
    a("s_add_u32 s25, s25, s26")
    a(f"s_add_u32 s25, s25, 0x{WS_QABS:x}")
    a("v_lshlrev_b32 v10, 10, v8")
    a("v_lshlrev_b32 v11, 4, v9")
    a("v_add_u32 v10, v10, v11")
    a("v_add_u32 v11, s25, v10")
    a("v_add_u32 v12, 0x4000, v11")
    QB = 128 + 64
    DB = 64
    if not FUSED:
        for nt in range(2):
            for t in range(4):
                a(f"global_load_dwordx4 {vr(QB + (nt * 4 + t) * 4)}, v{11 + nt}, s[4:5] offset:{t * 64}")
    a("v_mov_b32 v13, v10")
    for mt in range(8):
        for t in range(4):
            a(f"global_load_dwordx4 {ar_(0 + (mt * 4 + t) * 4)}, v13, s[6:7] offset:{t * 64}")
        if mt < 7:
            a("v_add_u32 v13, 0x4000, v13")
    a("s_branch K2_BAR")
    gen_k2_a_pre(a)
    a.label("K2_BAR")
    if FUSED:
        grid_wait(a, 0)
    stamp(a, 0)
    a("s_cmp_ge_u32 s2, 128")
    a("s_cbranch_scc1 K2_A")
    if FUSED:
        for nt in range(2):
            for t in range(4):
                a(f"global_load_dwordx4 {vr(QB + (nt * 4 + t) * 4)}, v{11 + nt}, s[4:5] offset:{t * 64}{SCQ}")
    stamp(a, 1)
    SREG = {}
    idx = 0
    pool = list(range(224, 256, 4)) + list(range(32, 64, 4))
    for mt in range(8):
        for nt in range(2):
            SREG[(mt, nt)] = pool[idx]
            idx += 1
    a(f"s_mul_i32 s26, s22, 9216")
    a(f"s_add_u32 s26, s26, {L_STG}")
    a(f"v_mul_u32_u24 v14, {STG}, v8")
    a("v_lshlrev_b32 v15, 4, v9")
    a("v_add3_u32 v14, v14, v15, s26")
    a("v_lshrrev_b32 v15, 2, v8")
    a("v_lshl_add_u32 v15, v9, 2, v15")
    a(f"v_mul_u32_u24 v15, {STG}, v15")
    a("v_and_b32 v16, 3, v6")
    a("v_lshlrev_b32 v16, 3, v16")
    a("v_add3_u32 v15, v15, v16, s26")
    for kb in range(4):
        a(f"s_waitcnt vmcnt({0 if FUSED else 8 * (3 - kb)})")
        if kb == 0:
            stamp(a, 2)
        for t in range(4):
            for mt2 in range(2):
                mt = 2 * kb + mt2
                for nt in range(2):
                    s = SREG[(mt, nt)]
                    c = "0" if t == 0 else vr(s)
                    a(f"v_mfma_f32_16x16x32_bf16 {vr(s)}, {ar_((mt * 4 + t) * 4)}, {vr(QB + (nt * 4 + t) * 4)}, {c}")
        for mt2 in range(2):
            mt = 2 * kb + mt2
            for t in range(4):
                a(f"ds_write_b128 v14, {ar_((mt * 4 + t) * 4)} offset:{mt2 * 16 * STG + t * 64}")
        a("s_waitcnt lgkmcnt(0)")
        for ct in range(8):
            for hf in range(2):
                a(f"ds_read_b64_tr_b16 {vr(DB + kb * 32 + ct * 4 + hf * 2, 2)}, v15 offset:{hf * 16 * STG + ct * 32}")
        a("s_waitcnt lgkmcnt(0)")
    stamp(a, 3)
    a("s_lshl_b32 s26, s22, 14")
    a(f"s_add_u32 s26, s26, {L_SX}")
    a("v_lshlrev_b32 v16, 4, v6")
    a("v_add_u32 v17, s26, v16")
    for mt in range(8):
        for nt in range(2):
            a(f"ds_write_b128 v17, {vr(SREG[(mt, nt)])} offset:{(mt * 2 + nt) * 1024}")
    a("s_waitcnt lgkmcnt(0)")
    a("s_barrier")
    stamp(a, 4)
    a("s_lshl_b32 s26, s22, 12")
    a(f"s_add_u32 s26, s26, {L_SX}")
    a("v_add_u32 v17, s26, v16")
    T0 = 224
    tq = pool
    for w2 in range(4):
        for mt2 in range(2):
            for nt in range(2):
                a(f"ds_read_b128 {vr(tq[w2 * 4 + mt2 * 2 + nt])}, v17 offset:{w2 * 16384 + (mt2 * 2 + nt) * 1024}")
    a("s_waitcnt lgkmcnt(0)")
    for k in range(4):
        for r in range(4):
            for w2 in range(1, 4):
                a(f"v_add_f32 v{tq[k] + r}, v{tq[k] + r}, v{tq[w2 * 4 + k] + r}")
    allS = [tq[k] + r for k in range(4) for r in range(4)]
    score_round16(a, allS, 18)
    for nt in range(2):
        rs = [tq[nt] + r for r in range(4)] + [tq[2 + nt] + r for r in range(4)]
        a(f"v_max3_f32 v{20 + nt}, v{rs[0]}, v{rs[1]}, v{rs[2]}")
        a(f"v_max3_f32 v{20 + nt}, v{20 + nt}, v{rs[3]}, v{rs[4]}")
        a(f"v_max3_f32 v{20 + nt}, v{20 + nt}, v{rs[5]}, v{rs[6]}")
        a(f"v_max_f32 v{20 + nt}, v{20 + nt}, v{rs[7]}")
    a("v_lshlrev_b32 v18, 6, v8")
    a("v_lshlrev_b32 v19, 2, v9")
    a("s_lshl_b32 s26, s22, 4")
    a("v_add3_u32 v19, v18, v19, s26")
    a(f"ds_write_b32 v19, v20 offset:{L_MX}")
    a(f"ds_write_b32 v19, v21 offset:{L_MX + 1024}")
    a("s_waitcnt lgkmcnt(0)")
    a("s_barrier")
    for nt in range(2):
        for k in range(4):
            a(f"ds_read_b128 {vr(tq[4 + nt * 4 + k])}, v18 offset:{L_MX + nt * 1024 + k * 16}")
    a("s_waitcnt lgkmcnt(0)")
    for nt in range(2):
        rs = [tq[4 + nt * 4 + k] + r for k in range(4) for r in range(4)]
        a(f"v_max3_f32 v{20 + nt}, v{rs[0]}, v{rs[1]}, v{rs[2]}")
        for i in range(3, 15, 2):
            a(f"v_max3_f32 v{20 + nt}, v{20 + nt}, v{rs[i]}, v{rs[i + 1]}")
        a(f"v_max_f32 v{20 + nt}, v{20 + nt}, v{rs[15]}")
    for nt in range(2):
        rs = [tq[nt] + r for r in range(4)] + [tq[2 + nt] + r for r in range(4)]
        exp_inplace(a, rs, 20 + nt, 0)
        a(f"v_add_f32 v{22 + nt}, v{rs[0]}, v{rs[1]}")
        for r in rs[2:]:
            a(f"v_add_f32 v{22 + nt}, v{22 + nt}, v{r}")
    a(f"ds_write_b32 v19, v22 offset:{L_LB}")
    a(f"ds_write_b32 v19, v23 offset:{L_LB + 1024}")
    for nt in range(2):
        for mt2 in range(2):
            s = tq[mt2 * 2 + nt]
            a(f"v_cvt_pk_bf16_f32 v{24 + nt * 4 + mt2 * 2}, v{s}, v{s + 1}")
            a(f"v_cvt_pk_bf16_f32 v{25 + nt * 4 + mt2 * 2}, v{s + 2}, v{s + 3}")
    a("s_lshl_b32 s26, s22, 11")
    a("v_add_u32 v17, s26, v16")
    a(f"ds_write_b128 v17, {vr(24)} offset:{L_PB}")
    a(f"ds_write_b128 v17, {vr(28)} offset:{L_PB + 1024}")
    a("s_waitcnt lgkmcnt(0)")
    a("s_barrier")
    stamp(a, 5)
    PF = 192
    for kb in range(4):
        for nt in range(2):
            a(f"ds_read_b128 {vr(PF + (kb * 2 + nt) * 4)}, v16 offset:{L_PB + (kb * 2 + nt) * 1024}")
    a("s_cmp_lg_u32 s22, 0")
    a("s_cbranch_scc1 K2B_NOSTAT")
    a("v_cmp_gt_u32 vcc, 16, v6")
    a("s_nop 1")
    a("s_and_saveexec_b64 s[16:17], vcc")
    for nt in range(2):
        for k in range(4):
            a(f"ds_read_b128 {vr(tq[nt * 4 + k])}, v18 offset:{L_LB + nt * 1024 + k * 16}")
    a("s_waitcnt lgkmcnt(0)")
    for nt in range(2):
        rs = [tq[nt * 4 + k] + r for k in range(4) for r in range(4)]
        for r in rs[1:]:
            a(f"v_add_f32 v{rs[0]}, v{rs[0]}, v{r}")
    a(f"v_mov_b32 v26, v20")
    a(f"v_mov_b32 v27, v{tq[0]}")
    a(f"v_mov_b32 v28, v21")
    a(f"v_mov_b32 v29, v{tq[4]}")
    a("s_lshl_b32 s26, s2, 8")
    a(f"s_add_u32 s26, s26, 0x{WS_BSTAT:x}")
    a("v_lshlrev_b32 v30, 3, v8")
    a("v_add_u32 v30, s26, v30")
    a("global_store_dwordx2 v30, v[26:27], s[4:5]" + SC)
    a("global_store_dwordx2 v30, v[28:29], s[4:5] offset:128" + SC)
    a("s_mov_b64 exec, s[16:17]")
    a.label("K2B_NOSTAT")
    a("s_waitcnt lgkmcnt(0)")
    a("s_lshl_b32 s26, s2, 16")
    a("s_lshl_b32 s27, s22, 9")
    a("s_add_u32 s26, s26, s27")
    a(f"s_add_u32 s26, s26, 0x{WS_BPART:x}")
    a("s_add_u32 s28, s4, s26")
    a("s_addc_u32 s29, s5, 0")
    a("v_lshlrev_b32 v17, 11, v8")
    a("v_lshlrev_b32 v18, 4, v9")
    a("v_add_u32 v17, v17, v18")
    a("v_add_u32 v18, 0x8000, v17")
    a("s_nop 1")
    stamp(a, 6)
    for ct in range(8):
        for kb in range(4):
            for nt in range(2):
                o = pool[ct * 2 + nt]
                c = "0" if kb == 0 else vr(o)
                a(f"v_mfma_f32_16x16x32_bf16 {vr(o)}, {vr(DB + kb * 32 + ct * 4)}, {vr(PF + (kb * 2 + nt) * 4)}, {c}")
        if ct >= 1:
            for nt in range(2):
                a(f"global_store_dwordx4 v{17 + nt}, {vr(pool[(ct - 1) * 2 + nt])}, s[28:29] offset:{(ct - 1) * 64}{SC}")
    a("s_nop 7")
    a("s_nop 7")
    for nt in range(2):
        a(f"global_store_dwordx4 v{17 + nt}, {vr(pool[7 * 2 + nt])}, s[28:29] offset:{7 * 64}{SC}")
    a("s_branch K2_END")
    a.label("K2_A")
    KB_ = 64
    QF = 16
    for r in range(QF, QF + 16):
        a(f"v_mov_b32 v{r}, 0")
    a("s_lshl_b32 s26, s24, 10")
    a("v_lshlrev_b32 v10, 8, v8")
    a("v_lshlrev_b32 v11, 4, v9")
    a("v_add_u32 v10, v10, v11")
    a("v_add_u32 v11, s26, v10")
    a("v_cmp_gt_u32 vcc, 4, v8")
    a("s_nop 1")
    a("s_and_saveexec_b64 s[16:17], vcc")
    for t in range(4):
        a(f"global_load_dwordx4 {vr(QF + 4 * t)}, v11, s[4:5] offset:{WS_QA + t * 64}{SCQ}")
    a("s_mov_b64 exec, s[16:17]")
    stamp(a, 1)
    a(f"s_mul_i32 s26, s22, {64 * STG}")
    a(f"s_add_u32 s26, s26, {L_STG}")
    a(f"v_mul_u32_u24 v14, {STG}, v9")
    a("v_lshlrev_b32 v15, 4, v8")
    a("v_add3_u32 v14, v14, v15, s26")
    a("v_lshrrev_b32 v15, 2, v8")
    a("v_lshl_add_u32 v15, v9, 2, v15")
    a(f"v_mul_u32_u24 v15, {STG}, v15")
    a("v_and_b32 v13, 3, v6")
    a("v_lshlrev_b32 v13, 3, v13")
    a("v_add3_u32 v15, v15, v13, s26")
    SAq = [32, 36, 40, 44]
    a("s_waitcnt vmcnt(0)")
    stamp(a, 2)
    for t in range(4):
        for mt in range(4):
            c = "0" if t == 0 else vr(SAq[mt])
            a(f"v_mfma_f32_16x16x32_bf16 {vr(SAq[mt])}, {ar_((mt * 4 + t) * 4)}, {vr(QF + 4 * t)}, {c}")
    a("s_waitcnt vmcnt(0)")
    stamp(a, 3)
    for i in range(16):
        a(f"ds_write_b128 v14, {ar_(64 + 4 * i)} offset:{i * 4 * STG}")
    a("s_nop 7")
    allS = [SAq[mt] + r for mt in range(4) for r in range(4)]
    score_round16(a, allS, 18)
    a(f"v_max3_f32 v20, v{allS[0]}, v{allS[1]}, v{allS[2]}")
    for i in range(3, 15, 2):
        a(f"v_max3_f32 v20, v20, v{allS[i]}, v{allS[i + 1]}")
    a(f"v_max_f32 v20, v20, v{allS[15]}")
    make_xor_addrs(a, 6, [16, 32], 21)
    a("s_waitcnt lgkmcnt(0)")
    bperm_reduce(a, "v_max_f32", 20, [21, 22], 23)
    exp_inplace(a, allS, 20, 0)
    a(f"v_add_f32 v24, v{allS[0]}, v{allS[1]}")
    for r in allS[2:]:
        a(f"v_add_f32 v24, v24, v{r}")
    bperm_reduce(a, "v_add_f32", 24, [21, 22], 23)
    for kb in range(2):
        for mt2 in range(2):
            s = SAq[2 * kb + mt2]
            a(f"v_cvt_pk_bf16_f32 v{48 + kb * 4 + mt2 * 2}, v{s}, v{s + 1}")
            a(f"v_cvt_pk_bf16_f32 v{49 + kb * 4 + mt2 * 2}, v{s + 2}, v{s + 3}")
    for kb in range(2):
        for ct in range(8):
            for hf in range(2):
                a(f"ds_read_b64_tr_b16 {vr(KB_ + (kb * 8 + ct) * 4 + hf * 2, 2)}, v15 offset:{(kb * 32 + hf * 16) * STG + ct * 32}")
    a("s_waitcnt lgkmcnt(0)")
    OA = 192
    for kb in range(2):
        for ct in range(8):
            c = "0" if kb == 0 else vr(OA + 4 * ct)
            a(f"v_mfma_f32_16x16x32_bf16 {vr(OA + 4 * ct)}, {vr(KB_ + (kb * 8 + ct) * 4)}, {vr(48 + kb * 4)}, {c}")
    stamp(a, 6)
    a("s_lshl_b32 s26, s24, 5")
    a("s_lshl_b32 s27, s25, 2")
    a("s_add_u32 s26, s26, s27")
    a("s_add_u32 s26, s26, s22")
    a("s_lshl_b32 s27, s26, 11")
    a(f"s_add_u32 s27, s27, 0x{WS_APART:x}")
    a("v_lshlrev_b32 v17, 9, v8")
    a("v_lshlrev_b32 v18, 4, v9")
    a("v_add3_u32 v17, v17, v18, s27")
    a("s_lshl_b32 s28, s26, 5")
    a(f"s_add_u32 s28, s28, 0x{WS_ASTAT:x}")
    a("v_lshlrev_b32 v18, 3, v8")
    a("v_add_u32 v18, s28, v18")
    a("v_mov_b32 v26, v20")
    a("v_mov_b32 v27, v24")
    a("v_cmp_gt_u32 vcc, 4, v8")
    a("v_cmp_gt_u32 s[18:19], 4, v6")
    a("s_nop 7")
    a("s_nop 7")
    a("s_and_saveexec_b64 s[16:17], vcc")
    for ct in range(8):
        a(f"global_store_dwordx4 v17, {vr(OA + 4 * ct)}, s[4:5] offset:{ct * 64}{SC}")
    a("s_mov_b64 exec, s[18:19]")
    a("global_store_dwordx2 v18, v[26:27], s[4:5]" + SC)
    a("s_mov_b64 exec, s[16:17]")
    a.label("K2_END")
    if FUSED:
        return
    stamp(a, 7)
    stamp_flush(a, 1)
    a.label("K2_EXIT")
    a("s_endpgm")


def fma16(a, wsrc, m0, m1, acc, tmp):
    unpack8(a, wsrc, tmp)
    for e in range(8):
        a(f"v_fmac_f32 v{acc + e}, v{tmp + e}, v{m0}")
        a(f"v_fmac_f32 v{acc + 8 + e}, v{tmp + e}, v{m1}")


def final_out_reduce(a, task_sreg, acc):
    a("v_lshlrev_b32 v12, 12, v7")
    a("v_lshlrev_b32 v13, 5, v6")
    a("v_add_u32 v12, v12, v13")
    a(f"ds_write_b128 v12, {vr(acc)}")
    a(f"ds_write_b128 v12, {vr(acc + 4)} offset:16")
    a(f"ds_write_b128 v12, {vr(acc + 8)} offset:2048")
    a(f"ds_write_b128 v12, {vr(acc + 12)} offset:2064")
    a("s_waitcnt lgkmcnt(0)")
    a("s_barrier")
    a("v_lshlrev_b32 v12, 4, v0")
    for w2 in range(4):
        a(f"ds_read_b128 {vr(32 + 4 * w2)}, v12 offset:{w2 * 4096}")
    a("s_waitcnt lgkmcnt(0)")
    for r in range(4):
        for w2 in range(1, 4):
            a(f"v_add_f32 v{32 + r}, v{32 + r}, v{32 + 4 * w2 + r}")
    a(f"s_lshl_b32 s26, s{task_sreg}, 12")
    a(f"s_add_u32 s26, s26, 0x{WS_OUTP:x}")
    a("v_add_u32 v12, s26, v12")
    a(f"global_store_dwordx4 v12, {vr(32)}, s[4:5]{SC}")


def gen_k3(a):
    kernel_header(a, "k3prj_kernel")
    if not FUSED:
        a("s_cmp_ge_u32 s2, 256")
        a("s_cbranch_scc1 K3_EXIT")
        stamp_init(a)
        a(f"s_load_dwordx2 s[4:5], s[0:1], {KA['ws']}")
    a(f"s_mov_b32 s21, 0x{LOG2E:x}")
    a("v_and_b32 v6, 63, v0")
    a("v_lshrrev_b32 v7, 6, v0")
    a("s_cmp_ge_u32 s2, 128")
    a("s_cbranch_scc1 K3_A")
    a(f"s_load_dwordx2 s[6:7], s[0:1], {KA['B_wuv']}")
    a(f"s_load_dwordx2 s[8:9], s[0:1], {KA['B_wo']}")
    a("s_and_b32 s12, s2, 31")
    a("s_lshr_b32 s13, s2, 5")
    a("v_lshrrev_b32 v1, 4, v0")
    a("v_and_b32 v2, 15, v0")
    a("s_lshl_b32 s14, s12, 3")
    a(f"s_add_u32 s14, s14, 0x{WS_BSTAT:x}")
    a("v_lshlrev_b32 v3, 8, v0")
    a("v_add_u32 v3, s14, v3")
    a("v_cmp_gt_u32 vcc, 128, v0")
    a("s_waitcnt lgkmcnt(0)")
    a("s_and_saveexec_b64 s[16:17], vcc")
    a("global_load_dwordx2 v[4:5], v3, s[4:5]" + SC)
    a("s_mov_b64 exec, s[16:17]")
    a("v_lshrrev_b32 v3, 5, v0")
    a("v_lshlrev_b32 v3, 20, v3")
    a("v_and_b32 v8, 31, v0")
    a("v_lshlrev_b32 v8, 4, v8")
    a("s_lshl_b32 s14, s12, 11")
    a("s_lshl_b32 s15, s13, 9")
    a("s_add_u32 s14, s14, s15")
    a("v_add3_u32 v3, v3, v8, s14")
    a(f"s_add_u32 s28, s4, 0x{WS_BPART:x}")
    a("s_addc_u32 s29, s5, 0")
    OP = 64
    for i in range(16):
        a(f"global_load_dwordx4 {vr(OP + 4 * i)}, v3, s[28:29]{SC}")
        if i < 15:
            a("v_add_u32 v3, 0x10000, v3")
    a("s_lshl_b32 s14, s13, 20")
    a("s_lshl_b32 s15, s12, 8")
    a("s_add_u32 s14, s14, s15")
    a("v_lshlrev_b32 v3, 16, v1")
    a("v_lshlrev_b32 v8, 4, v2")
    a("v_add3_u32 v3, v3, v8, s14")
    UV = 128
    for i in range(8):
        a(f"global_load_dwordx4 {vr(UV + 4 * i)}, v3, s[6:7]")
        if i < 7:
            a("v_add_u32 v3, 0x2000, v3")
    stamp(a, 1)
    a("s_lshl_b32 s14, s12, 17")
    a("v_lshlrev_b32 v62, 15, v7")
    a("v_lshlrev_b32 v8, 4, v6")
    a("v_add3_u32 v62, v62, v8, s14")
    for i in range(24):
        a(f"global_load_dwordx4 {vr(160 + 4 * i)}, v62, s[8:9]")
        a("v_add_u32 v62, 0x400, v62")
    a("s_waitcnt vmcnt(48)")
    make_xor_addrs(a, 6, [1, 2, 4, 8, 16, 32], 56)
    a("v_mov_b32 v9, v4")
    bperm_reduce(a, "v_max_f32", 9, range(56, 62), 10)
    a("v_sub_f32 v10, v4, v9")
    a("v_mul_f32 v10, s21, v10")
    a("v_exp_f32 v10, v10")
    a("s_nop 1")
    a("v_mul_f32 v11, v10, v5")
    bperm_reduce(a, "v_add_f32", 11, range(56, 62), 12)
    a("v_rcp_f32 v11, v11")
    a("s_nop 1")
    a("v_mul_f32 v10, v10, v11")
    a("v_lshlrev_b32 v12, 2, v0")
    a("s_and_saveexec_b64 s[16:17], vcc")
    a("ds_write_b32 v12, v10")
    a("s_mov_b64 exec, s[16:17]")
    a("s_waitcnt lgkmcnt(0)")
    a("s_barrier")
    stamp(a, 2)
    WO = 160
    a("v_lshrrev_b32 v12, 5, v0")
    a("v_lshlrev_b32 v12, 6, v12")
    for k in range(4):
        a(f"ds_read_b128 {vr(32 + 4 * k)}, v12 offset:{k * 16}")
    a("s_waitcnt vmcnt(32) lgkmcnt(0)")
    for i in range(16):
        for r in range(4):
            if i == 0:
                a(f"v_mul_f32 v{16 + r}, v{OP + r}, v32")
            else:
                a(f"v_fmac_f32 v{16 + r}, v{OP + 4 * i + r}, v{32 + i}")
    a("v_lshlrev_b32 v12, 4, v0")
    a(f"ds_write_b128 v12, {vr(16)} offset:1024")
    a("s_waitcnt lgkmcnt(0)")
    a("s_barrier")
    a("v_lshrrev_b32 v12, 7, v0")
    a("v_lshlrev_b32 v12, 11, v12")
    a("v_and_b32 v13, 127, v0")
    a("v_lshlrev_b32 v13, 2, v13")
    a("v_add_u32 v12, v12, v13")
    for jq in range(4):
        a(f"ds_read_b32 v{32 + jq}, v12 offset:{1024 + jq * 512}")
    a("s_waitcnt lgkmcnt(0)")
    a("v_add_f32 v32, v32, v33")
    a("v_add_f32 v34, v34, v35")
    a("v_add_f32 v32, v32, v34")
    a("v_lshlrev_b32 v12, 2, v0")
    a("ds_write_b32 v12, v32 offset:8192")
    a("s_waitcnt lgkmcnt(0)")
    a("s_barrier")
    stamp(a, 3)
    a("v_lshlrev_b32 v12, 5, v1")
    for b in range(2):
        for k in range(2):
            a(f"ds_read_b128 {vr(32 + (b * 2 + k) * 4)}, v12 offset:{8192 + b * 512 + k * 16}")
    for r in range(16, 32):
        a(f"v_mov_b32 v{r}, 0")
    a("s_waitcnt vmcnt(24) lgkmcnt(0)")
    for i in range(8):
        fma16(a, UV + 4 * i, 32 + i, 40 + i, 16, 48)
    a("v_lshlrev_b32 v12, 10, v1")
    a("v_lshlrev_b32 v13, 5, v2")
    a("v_add_u32 v12, v12, v13")
    a(f"ds_write_b128 v12, {vr(16)} offset:16384")
    a(f"ds_write_b128 v12, {vr(20)} offset:16400")
    a(f"ds_write_b128 v12, {vr(24)} offset:16896")
    a(f"ds_write_b128 v12, {vr(28)} offset:16912")
    for i in range(24, 32):
        a(f"global_load_dwordx4 {vr(64 + 4 * (i - 24))}, v62, s[8:9]")
        if i < 31:
            a("v_add_u32 v62, 0x400, v62")
    a("s_waitcnt lgkmcnt(0)")
    a("s_barrier")
    a("v_lshlrev_b32 v12, 2, v0")
    for rg in range(16):
        a(f"ds_read_b32 v{32 + rg}, v12 offset:{16384 + rg * 1024}")
    a("s_waitcnt lgkmcnt(0)")
    for rg in range(1, 16):
        a(f"v_add_f32 v32, v32, v{32 + rg}")
    a("ds_write_b32 v12, v32 offset:32768")
    a("s_waitcnt lgkmcnt(0)")
    a("s_barrier")
    stamp(a, 4)
    a("v_lshlrev_b32 v12, 7, v7")
    MUL = 96
    for b in range(2):
        for k in range(8):
            a(f"ds_read_b128 {vr(MUL + b * 32 + 4 * k)}, v12 offset:{32768 + b * 512 + k * 16}")
    for r in range(16, 32):
        a(f"v_mov_b32 v{r}, 0")
    a("s_waitcnt vmcnt(0) lgkmcnt(0)")
    for i in range(32):
        src = WO + 4 * i if i < 24 else 64 + 4 * (i - 24)
        fma16(a, src, MUL + i, MUL + 32 + i, 16, 48)
    stamp(a, 5)
    a("s_barrier")
    a("s_add_u32 s15, s2, 128")
    final_out_reduce(a, 15, 16)
    a("s_branch K3_END")
    a.label("K3_A")
    a(f"s_load_dwordx2 s[8:9], s[0:1], {KA['A_wo']}")
    a("s_sub_u32 s11, s2, 128")
    a("s_and_b32 s12, s11, 31")
    a("s_lshr_b32 s13, s11, 5")
    a("s_lshr_b32 s14, s12, 2")
    a("s_and_b32 s15, s12, 3")
    a("v_lshrrev_b32 v1, 5, v0")
    a("v_and_b32 v2, 31, v0")
    a("v_lshlrev_b32 v3, 8, v1")
    a("v_add_u32 v3, v3, v2")
    a("s_lshl_b32 s18, s14, 5")
    a("v_add_u32 v3, s18, v3")
    a("v_lshlrev_b32 v4, 5, v3")
    a("s_lshl_b32 s19, s15, 3")
    a(f"s_add_u32 s19, s19, 0x{WS_ASTAT:x}")
    a("v_add_u32 v4, s19, v4")
    a("v_cmp_gt_u32 vcc, 64, v0")
    a("s_waitcnt lgkmcnt(0)")
    a("s_and_saveexec_b64 s[16:17], vcc")
    a("global_load_dwordx2 v[4:5], v4, s[4:5]" + SC)
    a("s_mov_b64 exec, s[16:17]")
    a("v_lshrrev_b32 v1, 7, v0")
    a("v_bfe_u32 v2, v0, 2, 5")
    a("v_lshlrev_b32 v3, 8, v1")
    a("v_add_u32 v3, v3, v2")
    a("v_add_u32 v3, s18, v3")
    a("v_lshlrev_b32 v3, 11, v3")
    a("v_and_b32 v8, 3, v0")
    a("v_lshlrev_b32 v8, 5, v8")
    a("s_lshl_b32 s19, s15, 9")
    a("s_lshl_b32 s22, s13, 7")
    a("s_add_u32 s19, s19, s22")
    a(f"s_add_u32 s19, s19, 0x{WS_APART:x}")
    a("v_add3_u32 v3, v3, v8, s19")
    a(f"global_load_dwordx4 {vr(64)}, v3, s[4:5]{SC}")
    a(f"global_load_dwordx4 {vr(68)}, v3, s[4:5] offset:16{SC}")
    a("s_lshl_b32 s22, s12, 17")
    a("s_lshl_b32 s23, s13, 15")
    a("s_add_u32 s22, s22, s23")
    a("v_lshlrev_b32 v3, 13, v7")
    a("v_lshlrev_b32 v8, 4, v6")
    a("v_add3_u32 v3, v3, v8, s22")
    for i in range(8):
        a(f"global_load_dwordx4 {vr(96 + 4 * i)}, v3, s[8:9] offset:{(i % 4) * 1024}")
        if i == 3:
            a("v_add_u32 v3, 0x1000, v3")
    a("s_waitcnt vmcnt(10)")
    make_xor_addrs(a, 6, [1, 2, 4, 8, 16], 56)
    a("v_mov_b32 v9, v4")
    bperm_reduce(a, "v_max_f32", 9, range(56, 61), 10)
    a("v_sub_f32 v10, v4, v9")
    a("v_mul_f32 v10, s21, v10")
    a("v_exp_f32 v10, v10")
    a("s_nop 1")
    a("v_mul_f32 v11, v10, v5")
    bperm_reduce(a, "v_add_f32", 11, range(56, 61), 12)
    a("v_rcp_f32 v11, v11")
    a("s_nop 1")
    a("v_mul_f32 v10, v10, v11")
    a("v_lshlrev_b32 v12, 2, v0")
    a("s_and_saveexec_b64 s[16:17], vcc")
    a("ds_write_b32 v12, v10")
    a("s_mov_b64 exec, s[16:17]")
    a("s_waitcnt lgkmcnt(0)")
    a("s_barrier")
    a("v_lshrrev_b32 v12, 2, v0")
    a("v_lshlrev_b32 v12, 2, v12")
    a("ds_read_b32 v13, v12")
    a("s_waitcnt vmcnt(8) lgkmcnt(0)")
    for r in range(8):
        a(f"v_mul_f32 v{64 + r}, v{64 + r}, v13")
    a("v_lshlrev_b32 v12, 5, v0")
    a(f"ds_write_b128 v12, {vr(64)} offset:1024")
    a(f"ds_write_b128 v12, {vr(68)} offset:1040")
    a("s_waitcnt lgkmcnt(0)")
    a("s_barrier")
    a("v_lshrrev_b32 v12, 5, v0")
    a("v_lshlrev_b32 v12, 12, v12")
    a("v_and_b32 v13, 31, v0")
    a("v_lshlrev_b32 v13, 2, v13")
    a("v_add_u32 v12, v12, v13")
    a("s_and_saveexec_b64 s[16:17], vcc")
    a("s_cbranch_execz K3A_SKIP")
    for sp in range(32):
        a(f"ds_read_b32 v{128 + sp}, v12 offset:{1024 + sp * 128}")
    a("s_waitcnt lgkmcnt(0)")
    for sp in range(1, 32):
        a(f"v_add_f32 v128, v128, v{128 + sp}")
    bf16_round_pair(a, 128, 129, 130)
    a("v_lshlrev_b32 v13, 2, v0")
    a("ds_write_b32 v13, v128 offset:16384")
    a.label("K3A_SKIP")
    a("s_mov_b64 exec, s[16:17]")
    a("s_waitcnt lgkmcnt(0)")
    a("s_barrier")
    a("v_lshlrev_b32 v12, 5, v7")
    for b in range(2):
        for k in range(2):
            a(f"ds_read_b128 {vr(32 + (b * 2 + k) * 4)}, v12 offset:{16384 + b * 128 + k * 16}")
    for r in range(16, 32):
        a(f"v_mov_b32 v{r}, 0")
    a("s_waitcnt vmcnt(0) lgkmcnt(0)")
    for i in range(8):
        fma16(a, 96 + 4 * i, 32 + i, 40 + i, 16, 48)
    a("s_barrier")
    final_out_reduce(a, 11, 16)
    a.label("K3_END")
    if FUSED:
        return
    stamp(a, 7)
    stamp_flush(a, 2)
    a.label("K3_EXIT")
    a("s_endpgm")


def gen_k4(a):
    kernel_header(a, "k4fin_kernel")
    a("s_cmp_ge_u32 s2, 16")
    a("s_cbranch_scc1 K4_EXIT2" if FUSED else "s_cbranch_scc1 K4_EXIT")
    if not FUSED:
        stamp_init(a)
        a(f"s_load_dwordx2 s[4:5], s[0:1], {KA['ws']}")
    a(f"s_load_dwordx2 s[6:7], s[0:1], {KA['out']}")
    a("s_lshr_b32 s10, s2, 3")
    a("s_bfe_u32 s11, s2, 0x10002")
    a("s_and_b32 s12, s2, 3")
    a("v_lshrrev_b32 v1, 5, v0")
    a("v_and_b32 v2, 31, v0")
    a("s_lshl_b32 s13, s10, 19")
    a("s_lshl_b32 s14, s11, 11")
    a("s_add_u32 s13, s13, s14")
    a("s_lshl_b32 s14, s12, 9")
    a("s_add_u32 s13, s13, s14")
    a(f"s_add_u32 s13, s13, 0x{WS_OUTP:x}")
    a("v_lshlrev_b32 v3, 16, v1")
    a("v_lshlrev_b32 v4, 4, v2")
    a("v_add3_u32 v3, v3, v4, s13")
    a("s_waitcnt lgkmcnt(0)")
    for i in range(16):
        a(f"global_load_dwordx4 {vr(16 + 4 * i)}, v3, s[4:5]{SC}")
        if i < 15:
            a("v_add_u32 v3, 0x1000, v3")
    a("s_waitcnt vmcnt(0)")
    for i in range(1, 16):
        for r in range(4):
            a(f"v_add_f32 v{16 + r}, v{16 + r}, v{16 + 4 * i + r}")
    a("v_lshlrev_b32 v5, 4, v0")
    a(f"ds_write_b128 v5, {vr(16)}")
    a("s_waitcnt lgkmcnt(0)")
    a("s_barrier")
    a("v_cmp_gt_u32 vcc, 32, v0")
    a("s_nop 1")
    a("s_and_saveexec_b64 s[16:17], vcc")
    a("s_cbranch_execz K4_SKIP")
    for tg in range(8):
        a(f"ds_read_b128 {vr(16 + 4 * tg)}, v5 offset:{tg * 512}")
    a("s_waitcnt lgkmcnt(0)")
    for tg in range(1, 8):
        for r in range(4):
            a(f"v_add_f32 v{16 + r}, v{16 + r}, v{16 + 4 * tg + r}")
    a("v_cvt_pk_bf16_f32 v8, v16, v17")
    a("v_cvt_pk_bf16_f32 v9, v18, v19")
    a("s_lshl_b32 s13, s11, 11")
    a("s_lshl_b32 s14, s10, 10")
    a("s_add_u32 s13, s13, s14")
    a("s_lshl_b32 s14, s12, 8")
    a("s_add_u32 s13, s13, s14")
    a("v_lshlrev_b32 v6, 3, v2")
    a("v_add_u32 v6, s13, v6")
    a("global_store_dwordx2 v6, v[8:9], s[6:7]")
    a.label("K4_SKIP")
    a("s_mov_b64 exec, s[16:17]")
    a.label("K4_END")
    a.label("K4_EXIT2")
    stamp_slot(a, 15)
    stamp_flush(a, 3)
    a.label("K4_EXIT")
    a("s_endpgm")


def grid_arrive(a, idx):
    L = f"GB{idx}"
    a("s_waitcnt vmcnt(0) lgkmcnt(0)")
    a("s_barrier")
    a("v_cmp_eq_u32 vcc, 0, v0")
    a("v_mov_b32 v1, 1")
    a(f"v_mov_b32 v2, {idx * 64}")
    a("s_nop 1")
    a("s_and_saveexec_b64 s[16:17], vcc")
    a(f"s_cbranch_execz {L}_A")
    a("global_atomic_add v2, v1, s[30:31] sc1")
    a.label(f"{L}_A")
    a("s_mov_b64 exec, s[16:17]")


def grid_wait(a, idx, target=256):
    L = f"GB{idx}"
    a("v_cmp_eq_u32 vcc, 0, v0")
    a(f"v_mov_b32 v2, {idx * 64}")
    a("s_nop 1")
    a("s_and_saveexec_b64 s[16:17], vcc")
    a(f"s_cbranch_execz {L}_W")
    a("s_mov_b32 s18, 0")
    a.label(f"{L}_P")
    a("global_load_dword v3, v2, s[30:31] sc1")
    a("s_waitcnt vmcnt(0)")
    a("v_readfirstlane_b32 s19, v3")
    a("s_add_u32 s18, s18, 1")
    a(f"s_cmp_ge_u32 s19, {target}")
    a(f"s_cbranch_scc1 {L}_W")
    a("s_sleep 2")
    a("s_cmp_lt_u32 s18, 0x400000")
    a(f"s_cbranch_scc1 {L}_P")
    a.label(f"{L}_W")
    a("s_mov_b64 exec, s[16:17]")
    a("s_barrier")


def grid_barrier(a, idx, target=256, drain=0):
    grid_arrive(a, idx)
    grid_wait(a, idx, target)


HEADER = open("cdna_kernels/" + NAME + ".s.ref").read().split("; @launch")[0]


def main_fused(out):
    a = Asm()
    name = NAME + "_kernel"
    a.raw(f".globl {name}")
    a.raw(".p2align 8")
    a.raw(f".type {name},@function")
    a.label(name)
    a("s_cmp_ge_u32 s2, 256")
    a("s_cbranch_scc1 K4_EXIT")
    a(f"s_load_dwordx2 s[4:5], s[0:1], {KA['ws']}")
    a(f"s_load_dwordx2 s[30:31], s[0:1], {KA['dbg']}")
    stamp_init(a)
    CUR_PHASE[0] = 1
    gen_k1(a)
    stamp_slot(a, 3)
    grid_barrier(a, 0)
    stamp_slot(a, 4)
    CUR_PHASE[0] = 2
    gen_k2(a)
    stamp_slot(a, 8)
    grid_barrier(a, 1)
    stamp_slot(a, 9)
    CUR_PHASE[0] = 3
    gen_k3(a)
    stamp_slot(a, 13)
    grid_barrier(a, 2)
    stamp_slot(a, 14)
    CUR_PHASE[0] = 4
    gen_k4(a)
    txt = HEADER
    txt += f"; @launch grid=(256,1,1) block=(256,1,1) lds={K2_LDS}\n"
    txt += '.amdgcn_target "amdgcn-amd-amdhsa--gfx950"\n.text\n'
    txt += a.text()
    txt += '.section .rodata,"a"\n.p2align 6\n'
    txt += descriptor(name, 256)
    open(out, "w").write(txt)


def main3(out):
    global FUSED
    global STAMP
    a = Asm()
    FUSED = True
    name = "k12_kernel"
    a.raw(f".globl {name}")
    a.raw(".p2align 8")
    a.raw(f".type {name},@function")
    a.label(name)
    a("s_cmp_ge_u32 s2, 256")
    a("s_cbranch_scc1 K2_EXIT")
    a(f"s_load_dwordx2 s[4:5], s[0:1], {KA['ws']}")
    a(f"s_load_dwordx2 s[30:31], s[0:1], {KA['dbg']}")
    stamp_init(a)
    CUR_PHASE[0] = 1
    gen_k1(a)
    stamp_slot(a, 3)
    CUR_PHASE[0] = 2
    gen_k2(a)
    stamp_slot(a, 8)
    stamp_flush(a, 0)
    a.label("K2_EXIT")
    a("s_endpgm")
    FUSED = False
    _st = STAMP
    STAMP = False
    gen_k3(a)
    gen_k4(a)
    STAMP = _st
    txt = HEADER
    txt += f"; @launch kernel=k12_kernel grid=(256,1,1) block=(256,1,1) lds={K2_LDS}\n"
    txt += "; @launch kernel=k3prj_kernel grid=(256,1,1) block=(256,1,1) lds=36864\n"
    txt += "; @launch kernel=k4fin_kernel grid=(16,1,1) block=(256,1,1) lds=4096\n"
    txt += '.amdgcn_target "amdgcn-amd-amdhsa--gfx950"\n.text\n'
    txt += a.text()
    txt += '.section .rodata,"a"\n.p2align 6\n'
    txt += descriptor("k12_kernel", 384).replace(".amdhsa_accum_offset 384", ".amdhsa_accum_offset 256")
    txt += descriptor("k3prj_kernel", 256)
    txt += descriptor("k4fin_kernel", 256)
    open(out, "w").write(txt)


def main(out):
    global FUSED, SCQ
    FUSED = False
    SCQ = ""
    a = Asm()
    gen_k1(a)
    gen_k2(a)
    gen_k3(a)
    gen_k4(a)
    txt = HEADER
    txt += "; @launch kernel=k1q_kernel grid=(192,1,1) block=(256,1,1) lds=20480\n"
    txt += f"; @launch kernel=k2att_kernel grid=(256,1,1) block=(256,1,1) lds={K2_LDS}\n"
    txt += "; @launch kernel=k3prj_kernel grid=(256,1,1) block=(256,1,1) lds=36864\n"
    txt += "; @launch kernel=k4fin_kernel grid=(16,1,1) block=(256,1,1) lds=4096\n"
    txt += '.amdgcn_target "amdgcn-amd-amdhsa--gfx950"\n.text\n'
    txt += a.text()
    txt += '.section .rodata,"a"\n.p2align 6\n'
    for k in ["k1q_kernel", "k2att_kernel", "k3prj_kernel", "k4fin_kernel"]:
        if k == "k2att_kernel":
            txt += descriptor(k, 384).replace(".amdhsa_accum_offset 384", ".amdhsa_accum_offset 256")
        else:
            txt += descriptor(k, 256)
    open(out, "w").write(txt)


if __name__ == "__main__":
    if len(sys.argv) > 2 and sys.argv[2] == "stamp":
        STAMP = True
    main(sys.argv[1] if len(sys.argv) > 1 else "cdna_kernels/" + NAME + ".s")
```

```python
import sys

NAME = "concat_heads__sliding_block_cached__compressed_kv_cla__decode"

WS_QA    = 0x0
WS_QABS  = 0x10000
WS_APART = 0x100000
WS_ASTAT = 0x200000
WS_BSTAT = 0x210000
WS_BPART = 0x400000
WS_OUTP  = 0x1000000

KA = dict(A_x=0, A_k=8, A_v=16, A_wq=24, A_wo=32, B_x=40, B_ckv=48, B_wq=56, B_wuk=64,
          B_wuv=72, B_wo=80, out=88, dbg=96, ws=104)

LOG2E = 0x3fb8aa3b
SCALE = 0x3db504f3
HIMASK = 0xffff0000
STG = 288


class Asm:
    def __init__(self):
        self.lines = []

    def __call__(self, s):
        for ln in s.split("\n"):
            self.lines.append("    " + ln.strip())

    def label(self, s):
        self.lines.append(s + ":")

    def raw(self, s):
        self.lines.append(s)

    def text(self):
        return "\n".join(self.lines) + "\n"


def vr(base, n=4):
    return f"v[{base}:{base + n - 1}]"


def ar_(base, n=4):
    return f"a[{base}:{base + n - 1}]"


def unpack8(a, src, dst):
    for p in range(4):
        a(f"v_lshlrev_b32 v{dst + 2 * p}, 16, v{src + p}")
        a(f"v_and_b32 v{dst + 2 * p + 1}, 0x{HIMASK:x}, v{src + p}")


def unpack1(a, src_reg, idx, dst):
    r = src_reg + (idx >> 1)
    if idx & 1:
        a(f"v_and_b32 v{dst}, 0x{HIMASK:x}, v{r}")
    else:
        a(f"v_lshlrev_b32 v{dst}, 16, v{r}")


def bf16_round_pair(a, x0, x1, tmp):
    a(f"v_cvt_pk_bf16_f32 v{tmp}, v{x0}, v{x1}")
    a(f"v_lshlrev_b32 v{x0}, 16, v{tmp}")
    a(f"v_and_b32 v{x1}, 0x{HIMASK:x}, v{tmp}")


def bperm_reduce(a, op, val, addr_regs, tmp):
    for ar in addr_regs:
        a(f"ds_bpermute_b32 v{tmp}, v{ar}, v{val}")
        a("s_waitcnt lgkmcnt(0)")
        a(f"{op} v{val}, v{val}, v{tmp}")


def make_xor_addrs(a, lane, masks, dst0):
    for i, m in enumerate(masks):
        a(f"v_xor_b32 v{dst0 + i}, {m}, v{lane}")
        a(f"v_lshlrev_b32 v{dst0 + i}, 2, v{dst0 + i}")


STAMP = False
FUSED = True
SC = ""
SCQ = " sc1"
WS_STAMP = 0x2000000


CUR_PHASE = [0]
PH_MAP = {1: {1: 1, 2: 2, 3: 3, 7: 7}, 2: {1: 1, 2: 2, 3: 3, 4: 4, 5: 5, 6: 6, 7: 7},
          3: {1: 1, 2: 2, 3: 3, 4: 4, 5: 5, 7: 7}, 4: {7: 7}}


def stamp_init(a):
    if STAMP:
        for r in range(64, 96):
            a(f"s_mov_b32 s{r}, 0")
        stamp_slot(a, 0)


def stamp_slot(a, k):
    if STAMP:
        a(f"s_memrealtime s[{64 + 2 * k}:{65 + 2 * k}]")


def stamp(a, k):
    if STAMP:
        m = PH_MAP.get(CUR_PHASE[0], {})
        if k in m:
            stamp_slot(a, m[k])


def stamp_flush(a, kidx):
    if not STAMP:
        return
    a("s_waitcnt vmcnt(0) lgkmcnt(0)")
    a("v_lshrrev_b32 v1, 6, v0")
    a("s_nop 1")
    a("v_readfirstlane_b32 s32, v1")
    a(f"s_lshl_b32 s33, s2, 9")
    a("s_lshl_b32 s32, s32, 7")
    a("s_add_u32 s33, s33, s32")
    a(f"s_add_u32 s33, s33, 0x{WS_STAMP + kidx * 131072:x}")
    a("v_mov_b32 v2, s33")
    for k in range(32):
        a(f"v_mov_b32 v{4 + k}, s{64 + k}")
    a("s_mov_b64 s[34:35], exec")
    a("s_mov_b64 exec, 1")
    a("s_nop 3")
    for k in range(8):
        a(f"global_store_dwordx4 v2, {vr(4 + 4 * k)}, s[4:5] offset:{16 * k}")
    a("s_mov_b64 exec, s[34:35]")


def kernel_header(a, name):
    if FUSED:
        return
    a.raw(f".globl {name}")
    a.raw(".p2align 8")
    a.raw(f".type {name},@function")
    a.label(name)


def descriptor(name, vgpr, sgpr=96):
    acc = (vgpr + 3) // 4 * 4
    return f""".amdhsa_kernel {name}
  .amdhsa_next_free_vgpr {vgpr}
  .amdhsa_next_free_sgpr {sgpr}
  .amdhsa_accum_offset {acc}
  .amdhsa_group_segment_fixed_size 0
  .amdhsa_kernarg_size 112
  .amdhsa_user_sgpr_count 2
  .amdhsa_user_sgpr_kernarg_segment_ptr 1
  .amdhsa_system_sgpr_workgroup_id_x 1
.end_amdhsa_kernel
"""


def gen_k1(a):
    kernel_header(a, "k1q_kernel")
    if FUSED:
        a("s_cmp_ge_u32 s2, 192")
        a("s_cbranch_scc1 K1_END")
    else:
        a("s_cmp_ge_u32 s2, 192")
        a("s_cbranch_scc1 K1_EXIT")
        stamp_init(a)
        a(f"s_load_dwordx2 s[4:5], s[0:1], {KA['ws']}")
    a("s_cmp_ge_u32 s2, 128")
    a("s_cbranch_scc1 K1_A")
    a(f"s_load_dwordx2 s[6:7], s[0:1], {KA['B_x']}")
    a(f"s_load_dwordx2 s[8:9], s[0:1], {KA['B_wq']}")
    a(f"s_load_dwordx2 s[10:11], s[0:1], {KA['B_wuk']}")
    a("s_and_b32 s12, s2, 31")
    a("s_lshr_b32 s13, s2, 5")
    a("s_lshl_b32 s14, s12, 8")
    a("v_lshrrev_b32 v1, 4, v0")
    a("v_and_b32 v2, 15, v0")
    a("v_lshlrev_b32 v3, 18, v1")
    a("v_lshlrev_b32 v4, 4, v2")
    a("v_add3_u32 v3, v3, v4, s14")
    a("v_lshlrev_b32 v5, 6, v1")
    a("v_and_b32 v6, 63, v0")
    a("v_lshrrev_b32 v7, 6, v0")
    a("v_and_b32 v8, 15, v6")
    a("v_lshrrev_b32 v9, 4, v6")
    a("s_lshl_b32 s15, s13, 7")
    a("v_lshlrev_b32 v10, 5, v7")
    a("v_add3_u32 v10, v10, v8, s15")
    a("v_lshlrev_b32 v10, 13, v10")
    a("v_lshlrev_b32 v11, 4, v9")
    a("v_add3_u32 v10, v10, v11, s14")
    a("v_add_u32 v11, 0x20000, v10")
    a("s_waitcnt lgkmcnt(0)")
    XB = [192, 208]
    for b in range(2):
        for k in range(4):
            a(f"global_load_dwordx4 {vr(XB[b] + 4 * k)}, v5, s[6:7] offset:{b * 1024 + k * 16}")
    W0 = 64
    for i in range(32):
        a(f"global_load_dwordx4 {vr(W0 + 4 * i)}, v3, s[8:9]")
        a("v_add_u32 v3, 0x2000, v3")
    UK = 224
    for mt in range(2):
        for t in range(4):
            a(f"global_load_dwordx4 {vr(UK + (mt * 4 + t) * 4)}, v{10 + mt}, s[10:11] offset:{t * 64}")
    stamp(a, 1)
    for r in range(16, 32):
        a(f"v_mov_b32 v{r}, 0")
    for i in range(32):
        a(f"s_waitcnt vmcnt({39 - i})")
        unpack8(a, W0 + 4 * i, 32)
        unpack1(a, XB[0], i, 40)
        unpack1(a, XB[1], i, 41)
        for e in range(8):
            a(f"v_fmac_f32 v{16 + e}, v{32 + e}, v40")
            a(f"v_fmac_f32 v{24 + e}, v{32 + e}, v41")
    stamp(a, 2)
    a("v_lshlrev_b32 v12, 10, v1")
    a("v_lshlrev_b32 v13, 5, v2")
    a("v_add_u32 v12, v12, v13")
    a(f"ds_write_b128 v12, {vr(16)}")
    a(f"ds_write_b128 v12, {vr(20)} offset:16")
    a(f"ds_write_b128 v12, {vr(24)} offset:512")
    a(f"ds_write_b128 v12, {vr(28)} offset:528")
    a("s_waitcnt lgkmcnt(0)")
    a("s_barrier")
    a("v_lshlrev_b32 v12, 2, v0")
    for rg in range(16):
        a(f"ds_read_b32 v{32 + rg}, v12 offset:{rg * 1024}")
    a("s_waitcnt lgkmcnt(0)")
    for rg in range(1, 16):
        a(f"v_add_f32 v32, v32, v{32 + rg}")
    a("v_cvt_pk_bf16_f32 v33, v32, v32")
    a("v_lshlrev_b32 v13, 1, v0")
    a("ds_write_b16 v13, v33 offset:16384")
    QF = 64
    for r in range(QF, QF + 16):
        a(f"v_mov_b32 v{r}, 0")
    a("s_waitcnt lgkmcnt(0)")
    a("s_barrier")
    stamp(a, 3)
    a("v_cmp_gt_u32 vcc, 2, v8")
    a("v_lshlrev_b32 v12, 8, v8")
    a("v_lshlrev_b32 v13, 4, v9")
    a("v_add_u32 v12, v12, v13")
    a("s_nop 1")
    a("s_and_saveexec_b64 s[16:17], vcc")
    for t in range(4):
        a(f"ds_read_b128 {vr(QF + 4 * t)}, v12 offset:{16384 + t * 64}")
    a("s_mov_b64 exec, s[16:17]")
    a("s_waitcnt vmcnt(0) lgkmcnt(0)")
    D0 = 96
    for mt in range(2):
        for t in range(4):
            c = "0" if t == 0 else vr(D0 + 4 * mt)
            a(f"v_mfma_f32_16x16x32_bf16 {vr(D0 + 4 * mt)}, {vr(UK + (mt * 4 + t) * 4)}, {vr(QF + 4 * t)}, {c}")
    a("s_nop 7")
    a("s_nop 7")
    for mt in range(2):
        a(f"v_cvt_pk_bf16_f32 v{104 + 2 * mt}, v{D0 + 4 * mt}, v{D0 + 4 * mt + 1}")
        a(f"v_cvt_pk_bf16_f32 v{105 + 2 * mt}, v{D0 + 4 * mt + 2}, v{D0 + 4 * mt + 3}")
    a("v_lshlrev_b32 v12, 15, v8")
    a("v_lshlrev_b32 v13, 6, v7")
    a("v_lshlrev_b32 v14, 3, v9")
    a("v_add3_u32 v12, v12, v13, v14")
    a("s_lshl_b32 s18, s12, 10")
    a("s_lshl_b32 s19, s13, 8")
    a("s_add_u32 s18, s18, s19")
    a(f"s_add_u32 s18, s18, 0x{WS_QABS:x}")
    a("v_add_u32 v12, s18, v12")
    a("s_and_saveexec_b64 s[16:17], vcc")
    a("global_store_dwordx2 v12, v[104:105], s[4:5]" + SCQ)
    a("global_store_dwordx2 v12, v[106:107], s[4:5] offset:32" + SCQ)
    a("s_mov_b64 exec, s[16:17]")
    a("s_branch K1_END")
    a.label("K1_A")
    a(f"s_load_dwordx2 s[6:7], s[0:1], {KA['A_x']}")
    a(f"s_load_dwordx2 s[8:9], s[0:1], {KA['A_wq']}")
    a("s_sub_u32 s12, s2, 128")
    a("s_lshl_b32 s14, s12, 7")
    a("v_lshrrev_b32 v1, 3, v0")
    a("v_and_b32 v2, 7, v0")
    a("v_lshlrev_b32 v3, 17, v1")
    a("v_lshlrev_b32 v4, 4, v2")
    a("v_add3_u32 v3, v3, v4, s14")
    a("v_lshlrev_b32 v5, 5, v1")
    a("s_waitcnt lgkmcnt(0)")
    XA = [160, 168]
    for b in range(2):
        for k in range(2):
            a(f"global_load_dwordx4 {vr(XA[b] + 4 * k)}, v5, s[6:7] offset:{b * 1024 + k * 16}")
    for i in range(16):
        a(f"global_load_dwordx4 {vr(W0 + 4 * i)}, v3, s[8:9]")
        a("v_add_u32 v3, 0x2000, v3")
    for r in range(16, 32):
        a(f"v_mov_b32 v{r}, 0")
    for i in range(16):
        a(f"s_waitcnt vmcnt({15 - i})")
        unpack8(a, W0 + 4 * i, 32)
        unpack1(a, XA[0], i, 40)
        unpack1(a, XA[1], i, 41)
        for e in range(8):
            a(f"v_fmac_f32 v{16 + e}, v{32 + e}, v40")
            a(f"v_fmac_f32 v{24 + e}, v{32 + e}, v41")
    a("v_lshlrev_b32 v12, 9, v1")
    a("v_lshlrev_b32 v13, 5, v2")
    a("v_add_u32 v12, v12, v13")
    a(f"ds_write_b128 v12, {vr(16)}")
    a(f"ds_write_b128 v12, {vr(20)} offset:16")
    a(f"ds_write_b128 v12, {vr(24)} offset:256")
    a(f"ds_write_b128 v12, {vr(28)} offset:272")
    a("s_waitcnt lgkmcnt(0)")
    a("s_barrier")
    a("v_cmp_gt_u32 vcc, 128, v0")
    a("v_lshlrev_b32 v12, 2, v0")
    a("s_nop 1")
    a("s_and_saveexec_b64 s[16:17], vcc")
    a("s_cbranch_execz K1_A_SKIP")
    for rg in range(32):
        a(f"ds_read_b32 v{64 + rg}, v12 offset:{rg * 512}")
    a("s_waitcnt lgkmcnt(0)")
    for rg in range(1, 32):
        a(f"v_add_f32 v64, v64, v{64 + rg}")
    a("v_cvt_pk_bf16_f32 v65, v64, v64")
    a("v_lshrrev_b32 v13, 6, v0")
    a("v_lshlrev_b32 v13, 13, v13")
    a("v_and_b32 v14, 63, v0")
    a("v_lshlrev_b32 v14, 1, v14")
    a("v_add3_u32 v13, v13, v14, s14")
    a(f"global_store_short v13, v65, s[4:5] offset:{WS_QA}{SCQ}")
    a.label("K1_A_SKIP")
    a("s_mov_b64 exec, s[16:17]")
    a.label("K1_END")
    if FUSED:
        return
    stamp(a, 7)
    stamp_flush(a, 0)
    a.label("K1_EXIT")
    a("s_endpgm")


L_PB = 0
L_MX = L_PB + 8192
L_LB = L_MX + 2048
L_STG = L_LB + 2048
L_SX = L_STG + 4 * 9216
K2_LDS = L_SX + 65536


def score_round16(a, regs, tmp):
    for i in range(0, len(regs), 2):
        x0, x1 = regs[i], regs[i + 1]
        bf16_round_pair(a, x0, x1, tmp)
        a(f"v_mul_f32 v{x0}, s20, v{x0}")
        a(f"v_mul_f32 v{x1}, s20, v{x1}")
        bf16_round_pair(a, x0, x1, tmp)


def exp_inplace(a, regs, mreg, tmp):
    for r in regs:
        a(f"v_sub_f32 v{r}, v{r}, v{mreg}")
        a(f"v_mul_f32 v{r}, s21, v{r}")
        a(f"v_exp_f32 v{r}, v{r}")
    a("s_nop 1")


def gen_k2_a_pre(a):
    a.label("K2_APRE")
    a(f"s_load_dwordx2 s[6:7], s[0:1], {KA['A_k']}")
    a(f"s_load_dwordx2 s[8:9], s[0:1], {KA['A_v']}")
    a("s_sub_u32 s23, s2, 128")
    a("s_lshr_b32 s24, s23, 3")
    a("s_and_b32 s25, s23, 7")
    a("s_waitcnt lgkmcnt(0)")
    a("s_lshl_b32 s26, s24, 21")
    a("s_lshl_b32 s27, s25, 16")
    a("s_add_u32 s26, s26, s27")
    a("s_lshl_b32 s27, s22, 14")
    a("s_add_u32 s26, s26, s27")
    a(f"s_add_u32 s26, s26, {6144 * 256}")
    a("s_add_u32 s6, s6, s26")
    a("s_addc_u32 s7, s7, 0")
    a("s_add_u32 s8, s8, s26")
    a("s_addc_u32 s9, s9, 0")
    a("v_lshlrev_b32 v10, 8, v8")
    a("v_lshlrev_b32 v11, 4, v9")
    a("v_add_u32 v10, v10, v11")
    a("v_mov_b32 v12, v10")
    for mt in range(4):
        for t in range(4):
            a(f"global_load_dwordx4 {ar_((mt * 4 + t) * 4)}, v12, s[6:7] offset:{t * 64}")
        if mt < 3:
            a("v_add_u32 v12, 0x1000, v12")
    a("v_lshlrev_b32 v12, 4, v6")
    for i in range(16):
        if i and i % 4 == 0:
            a("v_add_u32 v12, 0x1000, v12")
        a(f"global_load_dwordx4 {ar_(64 + 4 * i)}, v12, s[8:9] offset:{(i % 4) * 1024}")


def gen_k2(a):
    kernel_header(a, "k2att_kernel")
    if not FUSED:
        a("s_cmp_ge_u32 s2, 256")
        a("s_cbranch_scc1 K2_EXIT")
        stamp_init(a)
        a(f"s_load_dwordx2 s[4:5], s[0:1], {KA['ws']}")
    if FUSED:
        grid_arrive(a, 0)
    a(f"s_mov_b32 s20, 0x{SCALE:x}")
    a(f"s_mov_b32 s21, 0x{LOG2E:x}")
    a("v_and_b32 v6, 63, v0")
    a("v_lshrrev_b32 v7, 6, v0")
    a("s_nop 0")
    a("v_readfirstlane_b32 s22, v7")
    a("v_and_b32 v8, 15, v6")
    a("v_lshrrev_b32 v9, 4, v6")
    a("s_cmp_ge_u32 s2, 128")
    a("s_cbranch_scc1 K2_APRE")
    a(f"s_load_dwordx2 s[6:7], s[0:1], {KA['B_ckv']}")
    a("s_lshr_b32 s23, s2, 6")
    a("s_and_b32 s24, s2, 63")
    a("s_waitcnt lgkmcnt(0)")
    a("s_lshl_b32 s25, s2, 17")
    a("s_lshl_b32 s26, s22, 8")
    a("s_add_u32 s25, s25, s26")
    a("s_add_u32 s6, s6, s25")
    a("s_addc_u32 s7, s7, 0")
    a("s_lshl_b32 s25, s23, 15")
    a("s_lshl_b32 s26, s22, 8")
    a("s_add_u32 s25, s25, s26")
    a(f"s_add_u32 s25, s25, 0x{WS_QABS:x}")
    a("v_lshlrev_b32 v10, 10, v8")
    a("v_lshlrev_b32 v11, 4, v9")
    a("v_add_u32 v10, v10, v11")
    a("v_add_u32 v11, s25, v10")
    a("v_add_u32 v12, 0x4000, v11")
    QB = 128 + 64
    DB = 64
    if not FUSED:
        for nt in range(2):
            for t in range(4):
                a(f"global_load_dwordx4 {vr(QB + (nt * 4 + t) * 4)}, v{11 + nt}, s[4:5] offset:{t * 64}")
    a("v_mov_b32 v13, v10")
    for mt in range(8):
        for t in range(4):
            a(f"global_load_dwordx4 {ar_(0 + (mt * 4 + t) * 4)}, v13, s[6:7] offset:{t * 64}")
        if mt < 7:
            a("v_add_u32 v13, 0x4000, v13")
    a("s_branch K2_BAR")
    gen_k2_a_pre(a)
    a.label("K2_BAR")
    if FUSED:
        grid_wait(a, 0)
    stamp(a, 0)
    a("s_cmp_ge_u32 s2, 128")
    a("s_cbranch_scc1 K2_A")
    if FUSED:
        for nt in range(2):
            for t in range(4):
                a(f"global_load_dwordx4 {vr(QB + (nt * 4 + t) * 4)}, v{11 + nt}, s[4:5] offset:{t * 64}{SCQ}")
    stamp(a, 1)
    SREG = {}
    idx = 0
    pool = list(range(224, 256, 4)) + list(range(32, 64, 4))
    for mt in range(8):
        for nt in range(2):
            SREG[(mt, nt)] = pool[idx]
            idx += 1
    a(f"s_mul_i32 s26, s22, 9216")
    a(f"s_add_u32 s26, s26, {L_STG}")
    a(f"v_mul_u32_u24 v14, {STG}, v8")
    a("v_lshlrev_b32 v15, 4, v9")
    a("v_add3_u32 v14, v14, v15, s26")
    a("v_lshrrev_b32 v15, 2, v8")
    a("v_lshl_add_u32 v15, v9, 2, v15")
    a(f"v_mul_u32_u24 v15, {STG}, v15")
    a("v_and_b32 v16, 3, v6")
    a("v_lshlrev_b32 v16, 3, v16")
    a("v_add3_u32 v15, v15, v16, s26")
    for kb in range(4):
        a(f"s_waitcnt vmcnt({0 if FUSED else 8 * (3 - kb)})")
        if kb == 0:
            stamp(a, 2)
        for t in range(4):
            for mt2 in range(2):
                mt = 2 * kb + mt2
                for nt in range(2):
                    s = SREG[(mt, nt)]
                    c = "0" if t == 0 else vr(s)
                    a(f"v_mfma_f32_16x16x32_bf16 {vr(s)}, {ar_((mt * 4 + t) * 4)}, {vr(QB + (nt * 4 + t) * 4)}, {c}")
        for mt2 in range(2):
            mt = 2 * kb + mt2
            for t in range(4):
                a(f"ds_write_b128 v14, {ar_((mt * 4 + t) * 4)} offset:{mt2 * 16 * STG + t * 64}")
        a("s_waitcnt lgkmcnt(0)")
        for ct in range(8):
            for hf in range(2):
                a(f"ds_read_b64_tr_b16 {vr(DB + kb * 32 + ct * 4 + hf * 2, 2)}, v15 offset:{hf * 16 * STG + ct * 32}")
        a("s_waitcnt lgkmcnt(0)")
    stamp(a, 3)
    a("s_lshl_b32 s26, s22, 14")
    a(f"s_add_u32 s26, s26, {L_SX}")
    a("v_lshlrev_b32 v16, 4, v6")
    a("v_add_u32 v17, s26, v16")
    for mt in range(8):
        for nt in range(2):
            a(f"ds_write_b128 v17, {vr(SREG[(mt, nt)])} offset:{(mt * 2 + nt) * 1024}")
    a("s_waitcnt lgkmcnt(0)")
    a("s_barrier")
    stamp(a, 4)
    a("s_lshl_b32 s26, s22, 12")
    a(f"s_add_u32 s26, s26, {L_SX}")
    a("v_add_u32 v17, s26, v16")
    T0 = 224
    tq = pool
    for w2 in range(4):
        for mt2 in range(2):
            for nt in range(2):
                a(f"ds_read_b128 {vr(tq[w2 * 4 + mt2 * 2 + nt])}, v17 offset:{w2 * 16384 + (mt2 * 2 + nt) * 1024}")
    a("s_waitcnt lgkmcnt(0)")
    for k in range(4):
        for r in range(4):
            for w2 in range(1, 4):
                a(f"v_add_f32 v{tq[k] + r}, v{tq[k] + r}, v{tq[w2 * 4 + k] + r}")
    allS = [tq[k] + r for k in range(4) for r in range(4)]
    score_round16(a, allS, 18)
    for nt in range(2):
        rs = [tq[nt] + r for r in range(4)] + [tq[2 + nt] + r for r in range(4)]
        a(f"v_max3_f32 v{20 + nt}, v{rs[0]}, v{rs[1]}, v{rs[2]}")
        a(f"v_max3_f32 v{20 + nt}, v{20 + nt}, v{rs[3]}, v{rs[4]}")
        a(f"v_max3_f32 v{20 + nt}, v{20 + nt}, v{rs[5]}, v{rs[6]}")
        a(f"v_max_f32 v{20 + nt}, v{20 + nt}, v{rs[7]}")
    a("v_lshlrev_b32 v18, 6, v8")
    a("v_lshlrev_b32 v19, 2, v9")
    a("s_lshl_b32 s26, s22, 4")
    a("v_add3_u32 v19, v18, v19, s26")
    a(f"ds_write_b32 v19, v20 offset:{L_MX}")
    a(f"ds_write_b32 v19, v21 offset:{L_MX + 1024}")
    a("s_waitcnt lgkmcnt(0)")
    a("s_barrier")
    for nt in range(2):
        for k in range(4):
            a(f"ds_read_b128 {vr(tq[4 + nt * 4 + k])}, v18 offset:{L_MX + nt * 1024 + k * 16}")
    a("s_waitcnt lgkmcnt(0)")
    for nt in range(2):
        rs = [tq[4 + nt * 4 + k] + r for k in range(4) for r in range(4)]
        a(f"v_max3_f32 v{20 + nt}, v{rs[0]}, v{rs[1]}, v{rs[2]}")
        for i in range(3, 15, 2):
            a(f"v_max3_f32 v{20 + nt}, v{20 + nt}, v{rs[i]}, v{rs[i + 1]}")
        a(f"v_max_f32 v{20 + nt}, v{20 + nt}, v{rs[15]}")
    for nt in range(2):
        rs = [tq[nt] + r for r in range(4)] + [tq[2 + nt] + r for r in range(4)]
        exp_inplace(a, rs, 20 + nt, 0)
        a(f"v_add_f32 v{22 + nt}, v{rs[0]}, v{rs[1]}")
        for r in rs[2:]:
            a(f"v_add_f32 v{22 + nt}, v{22 + nt}, v{r}")
    a(f"ds_write_b32 v19, v22 offset:{L_LB}")
    a(f"ds_write_b32 v19, v23 offset:{L_LB + 1024}")
    for nt in range(2):
        for mt2 in range(2):
            s = tq[mt2 * 2 + nt]
            a(f"v_cvt_pk_bf16_f32 v{24 + nt * 4 + mt2 * 2}, v{s}, v{s + 1}")
            a(f"v_cvt_pk_bf16_f32 v{25 + nt * 4 + mt2 * 2}, v{s + 2}, v{s + 3}")
    a("s_lshl_b32 s26, s22, 11")
    a("v_add_u32 v17, s26, v16")
    a(f"ds_write_b128 v17, {vr(24)} offset:{L_PB}")
    a(f"ds_write_b128 v17, {vr(28)} offset:{L_PB + 1024}")
    a("s_waitcnt lgkmcnt(0)")
    a("s_barrier")
    stamp(a, 5)
    PF = 192
    for kb in range(4):
        for nt in range(2):
            a(f"ds_read_b128 {vr(PF + (kb * 2 + nt) * 4)}, v16 offset:{L_PB + (kb * 2 + nt) * 1024}")
    a("s_cmp_lg_u32 s22, 0")
    a("s_cbranch_scc1 K2B_NOSTAT")
    a("v_cmp_gt_u32 vcc, 16, v6")
    a("s_nop 1")
    a("s_and_saveexec_b64 s[16:17], vcc")
    for nt in range(2):
        for k in range(4):
            a(f"ds_read_b128 {vr(tq[nt * 4 + k])}, v18 offset:{L_LB + nt * 1024 + k * 16}")
    a("s_waitcnt lgkmcnt(0)")
    for nt in range(2):
        rs = [tq[nt * 4 + k] + r for k in range(4) for r in range(4)]
        for r in rs[1:]:
            a(f"v_add_f32 v{rs[0]}, v{rs[0]}, v{r}")
    a(f"v_mov_b32 v26, v20")
    a(f"v_mov_b32 v27, v{tq[0]}")
    a(f"v_mov_b32 v28, v21")
    a(f"v_mov_b32 v29, v{tq[4]}")
    a("s_lshl_b32 s26, s2, 8")
    a(f"s_add_u32 s26, s26, 0x{WS_BSTAT:x}")
    a("v_lshlrev_b32 v30, 3, v8")
    a("v_add_u32 v30, s26, v30")
    a("global_store_dwordx2 v30, v[26:27], s[4:5]" + SC)
    a("global_store_dwordx2 v30, v[28:29], s[4:5] offset:128" + SC)
    a("s_mov_b64 exec, s[16:17]")
    a.label("K2B_NOSTAT")
    a("s_waitcnt lgkmcnt(0)")
    a("s_lshl_b32 s26, s2, 15")
    a("s_lshl_b32 s27, s22, 8")
    a("s_add_u32 s26, s26, s27")
    a(f"s_add_u32 s26, s26, 0x{WS_BPART:x}")
    a("s_add_u32 s28, s4, s26")
    a("s_addc_u32 s29, s5, 0")
    a("v_lshlrev_b32 v17, 10, v8")
    a("v_lshlrev_b32 v18, 3, v9")
    a("v_add_u32 v17, v17, v18")
    a("v_add_u32 v18, 0x4000, v17")
    a("s_nop 1")
    stamp(a, 6)

    def st_tile(ct):
        for nt in range(2):
            o = pool[ct * 2 + nt]
            t0 = 24 + ((ct * 2 + nt) % 4) * 2
            a(f"v_cvt_pk_bf16_f32 v{t0}, v{o}, v{o + 1}")
            a(f"v_cvt_pk_bf16_f32 v{t0 + 1}, v{o + 2}, v{o + 3}")
            a(f"global_store_dwordx2 v{17 + nt}, v[{t0}:{t0 + 1}], s[28:29] offset:{ct * 32}{SC}")
    for ct in range(8):
        for kb in range(4):
            for nt in range(2):
                o = pool[ct * 2 + nt]
                c = "0" if kb == 0 else vr(o)
                a(f"v_mfma_f32_16x16x32_bf16 {vr(o)}, {vr(DB + kb * 32 + ct * 4)}, {vr(PF + (kb * 2 + nt) * 4)}, {c}")
        if ct >= 1:
            st_tile(ct - 1)
    a("s_nop 7")
    a("s_nop 7")
    st_tile(7)
    a("s_branch K2_END")
    a.label("K2_A")
    KB_ = 64
    QF = 16
    for r in range(QF, QF + 16):
        a(f"v_mov_b32 v{r}, 0")
    a("s_lshl_b32 s26, s24, 10")
    a("v_lshlrev_b32 v10, 8, v8")
    a("v_lshlrev_b32 v11, 4, v9")
    a("v_add_u32 v10, v10, v11")
    a("v_add_u32 v11, s26, v10")
    a("v_cmp_gt_u32 vcc, 4, v8")
    a("s_nop 1")
    a("s_and_saveexec_b64 s[16:17], vcc")
    for t in range(4):
        a(f"global_load_dwordx4 {vr(QF + 4 * t)}, v11, s[4:5] offset:{WS_QA + t * 64}{SCQ}")
    a("s_mov_b64 exec, s[16:17]")
    stamp(a, 1)
    a(f"s_mul_i32 s26, s22, {64 * STG}")
    a(f"s_add_u32 s26, s26, {L_STG}")
    a(f"v_mul_u32_u24 v14, {STG}, v9")
    a("v_lshlrev_b32 v15, 4, v8")
    a("v_add3_u32 v14, v14, v15, s26")
    a("v_lshrrev_b32 v15, 2, v8")
    a("v_lshl_add_u32 v15, v9, 2, v15")
    a(f"v_mul_u32_u24 v15, {STG}, v15")
    a("v_and_b32 v13, 3, v6")
    a("v_lshlrev_b32 v13, 3, v13")
    a("v_add3_u32 v15, v15, v13, s26")
    SAq = [32, 36, 40, 44]
    a("s_waitcnt vmcnt(0)")
    stamp(a, 2)
    for t in range(4):
        for mt in range(4):
            c = "0" if t == 0 else vr(SAq[mt])
            a(f"v_mfma_f32_16x16x32_bf16 {vr(SAq[mt])}, {ar_((mt * 4 + t) * 4)}, {vr(QF + 4 * t)}, {c}")
    a("s_waitcnt vmcnt(0)")
    stamp(a, 3)
    for i in range(16):
        a(f"ds_write_b128 v14, {ar_(64 + 4 * i)} offset:{i * 4 * STG}")
    a("s_nop 7")
    allS = [SAq[mt] + r for mt in range(4) for r in range(4)]
    score_round16(a, allS, 18)
    a(f"v_max3_f32 v20, v{allS[0]}, v{allS[1]}, v{allS[2]}")
    for i in range(3, 15, 2):
        a(f"v_max3_f32 v20, v20, v{allS[i]}, v{allS[i + 1]}")
    a(f"v_max_f32 v20, v20, v{allS[15]}")
    make_xor_addrs(a, 6, [16, 32], 21)
    a("s_waitcnt lgkmcnt(0)")
    bperm_reduce(a, "v_max_f32", 20, [21, 22], 23)
    exp_inplace(a, allS, 20, 0)
    a(f"v_add_f32 v24, v{allS[0]}, v{allS[1]}")
    for r in allS[2:]:
        a(f"v_add_f32 v24, v24, v{r}")
    bperm_reduce(a, "v_add_f32", 24, [21, 22], 23)
    for kb in range(2):
        for mt2 in range(2):
            s = SAq[2 * kb + mt2]
            a(f"v_cvt_pk_bf16_f32 v{48 + kb * 4 + mt2 * 2}, v{s}, v{s + 1}")
            a(f"v_cvt_pk_bf16_f32 v{49 + kb * 4 + mt2 * 2}, v{s + 2}, v{s + 3}")
    for kb in range(2):
        for ct in range(8):
            for hf in range(2):
                a(f"ds_read_b64_tr_b16 {vr(KB_ + (kb * 8 + ct) * 4 + hf * 2, 2)}, v15 offset:{(kb * 32 + hf * 16) * STG + ct * 32}")
    a("s_waitcnt lgkmcnt(0)")
    OA = 192
    for kb in range(2):
        for ct in range(8):
            c = "0" if kb == 0 else vr(OA + 4 * ct)
            a(f"v_mfma_f32_16x16x32_bf16 {vr(OA + 4 * ct)}, {vr(KB_ + (kb * 8 + ct) * 4)}, {vr(48 + kb * 4)}, {c}")
    stamp(a, 6)
    a("s_lshl_b32 s26, s24, 5")
    a("s_lshl_b32 s27, s25, 2")
    a("s_add_u32 s26, s26, s27")
    a("s_add_u32 s26, s26, s22")
    a("s_lshl_b32 s27, s26, 11")
    a(f"s_add_u32 s27, s27, 0x{WS_APART:x}")
    a("v_lshlrev_b32 v17, 9, v8")
    a("v_lshlrev_b32 v18, 4, v9")
    a("v_add3_u32 v17, v17, v18, s27")
    a("s_lshl_b32 s28, s26, 5")
    a(f"s_add_u32 s28, s28, 0x{WS_ASTAT:x}")
    a("v_lshlrev_b32 v18, 3, v8")
    a("v_add_u32 v18, s28, v18")
    a("v_mov_b32 v26, v20")
    a("v_mov_b32 v27, v24")
    a("v_cmp_gt_u32 vcc, 4, v8")
    a("v_cmp_gt_u32 s[18:19], 4, v6")
    a("s_nop 7")
    a("s_nop 7")
    a("s_and_saveexec_b64 s[16:17], vcc")
    for ct in range(8):
        a(f"global_store_dwordx4 v17, {vr(OA + 4 * ct)}, s[4:5] offset:{ct * 64}{SC}")
    a("s_mov_b64 exec, s[18:19]")
    a("global_store_dwordx2 v18, v[26:27], s[4:5]" + SC)
    a("s_mov_b64 exec, s[16:17]")
    a.label("K2_END")
    if FUSED:
        return
    stamp(a, 7)
    stamp_flush(a, 1)
    a.label("K2_EXIT")
    a("s_endpgm")


def fma16(a, wsrc, m0, m1, acc, tmp):
    unpack8(a, wsrc, tmp)
    for e in range(8):
        a(f"v_fmac_f32 v{acc + e}, v{tmp + e}, v{m0}")
        a(f"v_fmac_f32 v{acc + 8 + e}, v{tmp + e}, v{m1}")


def final_out_reduce(a, task_sreg, acc):
    a("v_lshlrev_b32 v12, 12, v7")
    a("v_lshlrev_b32 v13, 5, v6")
    a("v_add_u32 v12, v12, v13")
    a(f"ds_write_b128 v12, {vr(acc)}")
    a(f"ds_write_b128 v12, {vr(acc + 4)} offset:16")
    a(f"ds_write_b128 v12, {vr(acc + 8)} offset:2048")
    a(f"ds_write_b128 v12, {vr(acc + 12)} offset:2064")
    a("s_waitcnt lgkmcnt(0)")
    a("s_barrier")
    a("v_lshlrev_b32 v12, 4, v0")
    for w2 in range(4):
        a(f"ds_read_b128 {vr(32 + 4 * w2)}, v12 offset:{w2 * 4096}")
    a("s_waitcnt lgkmcnt(0)")
    for r in range(4):
        for w2 in range(1, 4):
            a(f"v_add_f32 v{32 + r}, v{32 + r}, v{32 + 4 * w2 + r}")
    a(f"s_lshl_b32 s26, s{task_sreg}, 12")
    a(f"s_add_u32 s26, s26, 0x{WS_OUTP:x}")
    a("v_add_u32 v12, s26, v12")
    a(f"global_store_dwordx4 v12, {vr(32)}, s[4:5]{SC}")


def gen_k3(a):
    kernel_header(a, "k3prj_kernel")
    if not FUSED:
        a("s_cmp_ge_u32 s2, 256")
        a("s_cbranch_scc1 K3_EXIT")
        stamp_init(a)
        a(f"s_load_dwordx2 s[4:5], s[0:1], {KA['ws']}")
    a(f"s_mov_b32 s21, 0x{LOG2E:x}")
    a("v_and_b32 v6, 63, v0")
    a("v_lshrrev_b32 v7, 6, v0")
    a("s_cmp_ge_u32 s2, 128")
    a("s_cbranch_scc1 K3_A")
    a(f"s_load_dwordx2 s[6:7], s[0:1], {KA['B_wuv']}")
    a(f"s_load_dwordx2 s[8:9], s[0:1], {KA['B_wo']}")
    a("s_and_b32 s12, s2, 31")
    a("s_lshr_b32 s13, s2, 5")
    a("v_lshrrev_b32 v1, 4, v0")
    a("v_and_b32 v2, 15, v0")
    a("s_lshl_b32 s14, s12, 3")
    a(f"s_add_u32 s14, s14, 0x{WS_BSTAT:x}")
    a("v_lshlrev_b32 v3, 8, v0")
    a("v_add_u32 v3, s14, v3")
    a("v_cmp_gt_u32 vcc, 128, v0")
    a("s_waitcnt lgkmcnt(0)")
    a("s_and_saveexec_b64 s[16:17], vcc")
    a("global_load_dwordx2 v[4:5], v3, s[4:5]" + SC)
    a("s_mov_b64 exec, s[16:17]")
    a("v_lshrrev_b32 v3, 5, v0")
    a("v_lshlrev_b32 v3, 19, v3")
    a("v_and_b32 v8, 31, v0")
    a("v_lshlrev_b32 v8, 3, v8")
    a("s_lshl_b32 s14, s12, 10")
    a("s_lshl_b32 s15, s13, 8")
    a("s_add_u32 s14, s14, s15")
    a("v_add3_u32 v3, v3, v8, s14")
    a(f"s_add_u32 s28, s4, 0x{WS_BPART:x}")
    a("s_addc_u32 s29, s5, 0")
    OP = 64
    for i in range(16):
        a(f"global_load_dwordx2 {vr(OP + 2 * i, 2)}, v3, s[28:29]{SC}")
        if i < 15:
            a("v_add_u32 v3, 0x8000, v3")
    a("s_lshl_b32 s14, s13, 20")
    a("s_lshl_b32 s15, s12, 8")
    a("s_add_u32 s14, s14, s15")
    a("v_lshlrev_b32 v3, 16, v1")
    a("v_lshlrev_b32 v8, 4, v2")
    a("v_add3_u32 v3, v3, v8, s14")
    UV = 128
    for i in range(8):
        a(f"global_load_dwordx4 {vr(UV + 4 * i)}, v3, s[6:7]")
        if i < 7:
            a("v_add_u32 v3, 0x2000, v3")
    stamp(a, 1)
    a("s_lshl_b32 s14, s12, 17")
    a("v_lshlrev_b32 v62, 15, v7")
    a("v_lshlrev_b32 v8, 4, v6")
    a("v_add3_u32 v62, v62, v8, s14")
    for i in range(24):
        a(f"global_load_dwordx4 {vr(160 + 4 * i)}, v62, s[8:9]")
        a("v_add_u32 v62, 0x400, v62")
    a("s_waitcnt vmcnt(48)")
    make_xor_addrs(a, 6, [1, 2, 4, 8, 16, 32], 56)
    a("v_mov_b32 v9, v4")
    bperm_reduce(a, "v_max_f32", 9, range(56, 62), 10)
    a("v_sub_f32 v10, v4, v9")
    a("v_mul_f32 v10, s21, v10")
    a("v_exp_f32 v10, v10")
    a("s_nop 1")
    a("v_mul_f32 v11, v10, v5")
    bperm_reduce(a, "v_add_f32", 11, range(56, 62), 12)
    a("v_rcp_f32 v11, v11")
    a("s_nop 1")
    a("v_mul_f32 v10, v10, v11")
    a("v_lshlrev_b32 v12, 2, v0")
    a("s_and_saveexec_b64 s[16:17], vcc")
    a("ds_write_b32 v12, v10")
    a("s_mov_b64 exec, s[16:17]")
    a("s_waitcnt lgkmcnt(0)")
    a("s_barrier")
    stamp(a, 2)
    WO = 160
    a("v_lshrrev_b32 v12, 5, v0")
    a("v_lshlrev_b32 v12, 6, v12")
    for k in range(4):
        a(f"ds_read_b128 {vr(32 + 4 * k)}, v12 offset:{k * 16}")
    a("s_waitcnt vmcnt(32) lgkmcnt(0)")
    for r in range(4):
        a(f"v_mov_b32 v{16 + r}, 0")
    for i in range(16):
        for pq in range(2):
            a(f"v_lshlrev_b32 v{48 + 2 * pq}, 16, v{OP + 2 * i + pq}")
            a(f"v_and_b32 v{49 + 2 * pq}, 0x{HIMASK:x}, v{OP + 2 * i + pq}")
        for r in range(4):
            a(f"v_fmac_f32 v{16 + r}, v{48 + r}, v{32 + i}")
    a("v_lshlrev_b32 v12, 4, v0")
    a(f"ds_write_b128 v12, {vr(16)} offset:1024")
    a("s_waitcnt lgkmcnt(0)")
    a("s_barrier")
    a("v_lshrrev_b32 v12, 7, v0")
    a("v_lshlrev_b32 v12, 11, v12")
    a("v_and_b32 v13, 127, v0")
    a("v_lshlrev_b32 v13, 2, v13")
    a("v_add_u32 v12, v12, v13")
    for jq in range(4):
        a(f"ds_read_b32 v{32 + jq}, v12 offset:{1024 + jq * 512}")
    a("s_waitcnt lgkmcnt(0)")
    a("v_add_f32 v32, v32, v33")
    a("v_add_f32 v34, v34, v35")
    a("v_add_f32 v32, v32, v34")
    a("v_lshlrev_b32 v12, 2, v0")
    a("ds_write_b32 v12, v32 offset:8192")
    a("s_waitcnt lgkmcnt(0)")
    a("s_barrier")
    stamp(a, 3)
    a("v_lshlrev_b32 v12, 5, v1")
    for b in range(2):
        for k in range(2):
            a(f"ds_read_b128 {vr(32 + (b * 2 + k) * 4)}, v12 offset:{8192 + b * 512 + k * 16}")
    for r in range(16, 32):
        a(f"v_mov_b32 v{r}, 0")
    a("s_waitcnt vmcnt(24) lgkmcnt(0)")
    for i in range(8):
        fma16(a, UV + 4 * i, 32 + i, 40 + i, 16, 48)
    a("v_lshlrev_b32 v12, 10, v1")
    a("v_lshlrev_b32 v13, 5, v2")
    a("v_add_u32 v12, v12, v13")
    a(f"ds_write_b128 v12, {vr(16)} offset:16384")
    a(f"ds_write_b128 v12, {vr(20)} offset:16400")
    a(f"ds_write_b128 v12, {vr(24)} offset:16896")
    a(f"ds_write_b128 v12, {vr(28)} offset:16912")
    for i in range(24, 32):
        a(f"global_load_dwordx4 {vr(64 + 4 * (i - 24))}, v62, s[8:9]")
        if i < 31:
            a("v_add_u32 v62, 0x400, v62")
    a("s_waitcnt lgkmcnt(0)")
    a("s_barrier")
    a("v_lshlrev_b32 v12, 2, v0")
    for rg in range(16):
        a(f"ds_read_b32 v{32 + rg}, v12 offset:{16384 + rg * 1024}")
    a("s_waitcnt lgkmcnt(0)")
    for rg in range(1, 16):
        a(f"v_add_f32 v32, v32, v{32 + rg}")
    a("ds_write_b32 v12, v32 offset:32768")
    a("s_waitcnt lgkmcnt(0)")
    a("s_barrier")
    stamp(a, 4)
    a("v_lshlrev_b32 v12, 7, v7")
    MUL = 96
    for b in range(2):
        for k in range(8):
            a(f"ds_read_b128 {vr(MUL + b * 32 + 4 * k)}, v12 offset:{32768 + b * 512 + k * 16}")
    for r in range(16, 32):
        a(f"v_mov_b32 v{r}, 0")
    a("s_waitcnt vmcnt(0) lgkmcnt(0)")
    for i in range(32):
        src = WO + 4 * i if i < 24 else 64 + 4 * (i - 24)
        fma16(a, src, MUL + i, MUL + 32 + i, 16, 48)
    stamp(a, 5)
    a("s_barrier")
    a("s_add_u32 s15, s2, 128")
    final_out_reduce(a, 15, 16)
    a("s_branch K3_END")
    a.label("K3_A")
    a(f"s_load_dwordx2 s[8:9], s[0:1], {KA['A_wo']}")
    a("s_sub_u32 s11, s2, 128")
    a("s_and_b32 s12, s11, 31")
    a("s_lshr_b32 s13, s11, 5")
    a("s_lshr_b32 s14, s12, 2")
    a("s_and_b32 s15, s12, 3")
    a("v_lshrrev_b32 v1, 5, v0")
    a("v_and_b32 v2, 31, v0")
    a("v_lshlrev_b32 v3, 8, v1")
    a("v_add_u32 v3, v3, v2")
    a("s_lshl_b32 s18, s14, 5")
    a("v_add_u32 v3, s18, v3")
    a("v_lshlrev_b32 v4, 5, v3")
    a("s_lshl_b32 s19, s15, 3")
    a(f"s_add_u32 s19, s19, 0x{WS_ASTAT:x}")
    a("v_add_u32 v4, s19, v4")
    a("v_cmp_gt_u32 vcc, 64, v0")
    a("s_waitcnt lgkmcnt(0)")
    a("s_and_saveexec_b64 s[16:17], vcc")
    a("global_load_dwordx2 v[4:5], v4, s[4:5]" + SC)
    a("s_mov_b64 exec, s[16:17]")
    a("v_lshrrev_b32 v1, 7, v0")
    a("v_bfe_u32 v2, v0, 2, 5")
    a("v_lshlrev_b32 v3, 8, v1")
    a("v_add_u32 v3, v3, v2")
    a("v_add_u32 v3, s18, v3")
    a("v_lshlrev_b32 v3, 11, v3")
    a("v_and_b32 v8, 3, v0")
    a("v_lshlrev_b32 v8, 5, v8")
    a("s_lshl_b32 s19, s15, 9")
    a("s_lshl_b32 s22, s13, 7")
    a("s_add_u32 s19, s19, s22")
    a(f"s_add_u32 s19, s19, 0x{WS_APART:x}")
    a("v_add3_u32 v3, v3, v8, s19")
    a(f"global_load_dwordx4 {vr(64)}, v3, s[4:5]{SC}")
    a(f"global_load_dwordx4 {vr(68)}, v3, s[4:5] offset:16{SC}")
    a("s_lshl_b32 s22, s12, 17")
    a("s_lshl_b32 s23, s13, 15")
    a("s_add_u32 s22, s22, s23")
    a("v_lshlrev_b32 v3, 13, v7")
    a("v_lshlrev_b32 v8, 4, v6")
    a("v_add3_u32 v3, v3, v8, s22")
    for i in range(8):
        a(f"global_load_dwordx4 {vr(96 + 4 * i)}, v3, s[8:9] offset:{(i % 4) * 1024}")
        if i == 3:
            a("v_add_u32 v3, 0x1000, v3")
    a("s_waitcnt vmcnt(10)")
    make_xor_addrs(a, 6, [1, 2, 4, 8, 16], 56)
    a("v_mov_b32 v9, v4")
    bperm_reduce(a, "v_max_f32", 9, range(56, 61), 10)
    a("v_sub_f32 v10, v4, v9")
    a("v_mul_f32 v10, s21, v10")
    a("v_exp_f32 v10, v10")
    a("s_nop 1")
    a("v_mul_f32 v11, v10, v5")
    bperm_reduce(a, "v_add_f32", 11, range(56, 61), 12)
    a("v_rcp_f32 v11, v11")
    a("s_nop 1")
    a("v_mul_f32 v10, v10, v11")
    a("v_lshlrev_b32 v12, 2, v0")
    a("s_and_saveexec_b64 s[16:17], vcc")
    a("ds_write_b32 v12, v10")
    a("s_mov_b64 exec, s[16:17]")
    a("s_waitcnt lgkmcnt(0)")
    a("s_barrier")
    a("v_lshrrev_b32 v12, 2, v0")
    a("v_lshlrev_b32 v12, 2, v12")
    a("ds_read_b32 v13, v12")
    a("s_waitcnt vmcnt(8) lgkmcnt(0)")
    for r in range(8):
        a(f"v_mul_f32 v{64 + r}, v{64 + r}, v13")
    a("v_lshlrev_b32 v12, 5, v0")
    a(f"ds_write_b128 v12, {vr(64)} offset:1024")
    a(f"ds_write_b128 v12, {vr(68)} offset:1040")
    a("s_waitcnt lgkmcnt(0)")
    a("s_barrier")
    a("v_lshrrev_b32 v12, 5, v0")
    a("v_lshlrev_b32 v12, 12, v12")
    a("v_and_b32 v13, 31, v0")
    a("v_lshlrev_b32 v13, 2, v13")
    a("v_add_u32 v12, v12, v13")
    a("s_and_saveexec_b64 s[16:17], vcc")
    a("s_cbranch_execz K3A_SKIP")
    for sp in range(32):
        a(f"ds_read_b32 v{128 + sp}, v12 offset:{1024 + sp * 128}")
    a("s_waitcnt lgkmcnt(0)")
    for sp in range(1, 32):
        a(f"v_add_f32 v128, v128, v{128 + sp}")
    bf16_round_pair(a, 128, 129, 130)
    a("v_lshlrev_b32 v13, 2, v0")
    a("ds_write_b32 v13, v128 offset:16384")
    a.label("K3A_SKIP")
    a("s_mov_b64 exec, s[16:17]")
    a("s_waitcnt lgkmcnt(0)")
    a("s_barrier")
    a("v_lshlrev_b32 v12, 5, v7")
    for b in range(2):
        for k in range(2):
            a(f"ds_read_b128 {vr(32 + (b * 2 + k) * 4)}, v12 offset:{16384 + b * 128 + k * 16}")
    for r in range(16, 32):
        a(f"v_mov_b32 v{r}, 0")
    a("s_waitcnt vmcnt(0) lgkmcnt(0)")
    for i in range(8):
        fma16(a, 96 + 4 * i, 32 + i, 40 + i, 16, 48)
    a("s_barrier")
    final_out_reduce(a, 11, 16)
    a.label("K3_END")
    if FUSED:
        return
    stamp(a, 7)
    stamp_flush(a, 2)
    a.label("K3_EXIT")
    a("s_endpgm")


def gen_k4(a):
    kernel_header(a, "k4fin_kernel")
    a("s_cmp_ge_u32 s2, 16")
    a("s_cbranch_scc1 K4_EXIT2" if FUSED else "s_cbranch_scc1 K4_EXIT")
    if not FUSED:
        stamp_init(a)
        a(f"s_load_dwordx2 s[4:5], s[0:1], {KA['ws']}")
    a(f"s_load_dwordx2 s[6:7], s[0:1], {KA['out']}")
    a("s_lshr_b32 s10, s2, 3")
    a("s_bfe_u32 s11, s2, 0x10002")
    a("s_and_b32 s12, s2, 3")
    a("v_lshrrev_b32 v1, 5, v0")
    a("v_and_b32 v2, 31, v0")
    a("s_lshl_b32 s13, s10, 19")
    a("s_lshl_b32 s14, s11, 11")
    a("s_add_u32 s13, s13, s14")
    a("s_lshl_b32 s14, s12, 9")
    a("s_add_u32 s13, s13, s14")
    a(f"s_add_u32 s13, s13, 0x{WS_OUTP:x}")
    a("v_lshlrev_b32 v3, 16, v1")
    a("v_lshlrev_b32 v4, 4, v2")
    a("v_add3_u32 v3, v3, v4, s13")
    a("s_waitcnt lgkmcnt(0)")
    for i in range(16):
        a(f"global_load_dwordx4 {vr(16 + 4 * i)}, v3, s[4:5]{SC}")
        if i < 15:
            a("v_add_u32 v3, 0x1000, v3")
    a("s_waitcnt vmcnt(0)")
    for i in range(1, 16):
        for r in range(4):
            a(f"v_add_f32 v{16 + r}, v{16 + r}, v{16 + 4 * i + r}")
    a("v_lshlrev_b32 v5, 4, v0")
    a(f"ds_write_b128 v5, {vr(16)}")
    a("s_waitcnt lgkmcnt(0)")
    a("s_barrier")
    a("v_cmp_gt_u32 vcc, 32, v0")
    a("s_nop 1")
    a("s_and_saveexec_b64 s[16:17], vcc")
    a("s_cbranch_execz K4_SKIP")
    for tg in range(8):
        a(f"ds_read_b128 {vr(16 + 4 * tg)}, v5 offset:{tg * 512}")
    a("s_waitcnt lgkmcnt(0)")
    for tg in range(1, 8):
        for r in range(4):
            a(f"v_add_f32 v{16 + r}, v{16 + r}, v{16 + 4 * tg + r}")
    a("v_cvt_pk_bf16_f32 v8, v16, v17")
    a("v_cvt_pk_bf16_f32 v9, v18, v19")
    a("s_lshl_b32 s13, s11, 11")
    a("s_lshl_b32 s14, s10, 10")
    a("s_add_u32 s13, s13, s14")
    a("s_lshl_b32 s14, s12, 8")
    a("s_add_u32 s13, s13, s14")
    a("v_lshlrev_b32 v6, 3, v2")
    a("v_add_u32 v6, s13, v6")
    a("global_store_dwordx2 v6, v[8:9], s[6:7]")
    a.label("K4_SKIP")
    a("s_mov_b64 exec, s[16:17]")
    a.label("K4_END")
    a.label("K4_EXIT2")
    stamp_slot(a, 7)
    stamp_flush(a, 3)
    a.label("K4_EXIT")
    a("s_endpgm")


def grid_arrive(a, idx):
    L = f"GB{idx}"
    a("s_waitcnt vmcnt(0) lgkmcnt(0)")
    a("s_barrier")
    a("v_cmp_eq_u32 vcc, 0, v0")
    a("v_mov_b32 v1, 1")
    a(f"v_mov_b32 v2, {idx * 64}")
    a("s_nop 1")
    a("s_and_saveexec_b64 s[16:17], vcc")
    a(f"s_cbranch_execz {L}_A")
    a("global_atomic_add v2, v1, s[30:31] sc1")
    a.label(f"{L}_A")
    a("s_mov_b64 exec, s[16:17]")


def grid_wait(a, idx, target=256):
    L = f"GB{idx}"
    a("v_cmp_eq_u32 vcc, 0, v0")
    a(f"v_mov_b32 v2, {idx * 64}")
    a("s_nop 1")
    a("s_and_saveexec_b64 s[16:17], vcc")
    a(f"s_cbranch_execz {L}_W")
    a("s_mov_b32 s18, 0")
    a.label(f"{L}_P")
    a("global_load_dword v3, v2, s[30:31] sc1")
    a("s_waitcnt vmcnt(0)")
    a("v_readfirstlane_b32 s19, v3")
    a("s_add_u32 s18, s18, 1")
    a(f"s_cmp_ge_u32 s19, {target}")
    a(f"s_cbranch_scc1 {L}_W")
    a("s_sleep 2")
    a("s_cmp_lt_u32 s18, 0x400000")
    a(f"s_cbranch_scc1 {L}_P")
    a.label(f"{L}_W")
    a("s_mov_b64 exec, s[16:17]")
    a("s_barrier")


def grid_barrier(a, idx, target=256, drain=0):
    grid_arrive(a, idx)
    grid_wait(a, idx, target)


HEADER = open("cdna_kernels/" + NAME + ".s.ref").read().split("; @launch")[0]


def main_fused(out):
    a = Asm()
    name = NAME + "_kernel"
    a.raw(f".globl {name}")
    a.raw(".p2align 8")
    a.raw(f".type {name},@function")
    a.label(name)
    a("s_cmp_ge_u32 s2, 256")
    a("s_cbranch_scc1 K4_EXIT")
    a(f"s_load_dwordx2 s[4:5], s[0:1], {KA['ws']}")
    a(f"s_load_dwordx2 s[30:31], s[0:1], {KA['dbg']}")
    stamp_init(a)
    CUR_PHASE[0] = 1
    gen_k1(a)
    stamp_slot(a, 3)
    grid_barrier(a, 0)
    stamp_slot(a, 4)
    CUR_PHASE[0] = 2
    gen_k2(a)
    stamp_slot(a, 8)
    grid_barrier(a, 1)
    stamp_slot(a, 9)
    CUR_PHASE[0] = 3
    gen_k3(a)
    stamp_slot(a, 13)
    grid_barrier(a, 2)
    stamp_slot(a, 14)
    CUR_PHASE[0] = 4
    gen_k4(a)
    txt = HEADER
    txt += f"; @launch grid=(256,1,1) block=(256,1,1) lds={K2_LDS}\n"
    txt += '.amdgcn_target "amdgcn-amd-amdhsa--gfx950"\n.text\n'
    txt += a.text()
    txt += '.section .rodata,"a"\n.p2align 6\n'
    txt += descriptor(name, 256)
    open(out, "w").write(txt)


def main3(out):
    global FUSED
    global STAMP
    a = Asm()
    FUSED = True
    name = "k12_kernel"
    a.raw(f".globl {name}")
    a.raw(".p2align 8")
    a.raw(f".type {name},@function")
    a.label(name)
    a("s_cmp_ge_u32 s2, 256")
    a("s_cbranch_scc1 K2_EXIT")
    a(f"s_load_dwordx2 s[4:5], s[0:1], {KA['ws']}")
    a(f"s_load_dwordx2 s[30:31], s[0:1], {KA['dbg']}")
    stamp_init(a)
    CUR_PHASE[0] = 1
    gen_k1(a)
    stamp_slot(a, 3)
    CUR_PHASE[0] = 2
    gen_k2(a)
    stamp_slot(a, 8)
    stamp_flush(a, 0)
    a.label("K2_EXIT")
    a("s_endpgm")
    FUSED = False
    _st = STAMP
    STAMP = False
    gen_k3(a)
    gen_k4(a)
    STAMP = _st
    txt = HEADER
    txt += f"; @launch kernel=k12_kernel grid=(256,1,1) block=(256,1,1) lds={K2_LDS}\n"
    txt += "; @launch kernel=k3prj_kernel grid=(256,1,1) block=(256,1,1) lds=36864\n"
    txt += "; @launch kernel=k4fin_kernel grid=(16,1,1) block=(256,1,1) lds=4096\n"
    txt += '.amdgcn_target "amdgcn-amd-amdhsa--gfx950"\n.text\n'
    txt += a.text()
    txt += '.section .rodata,"a"\n.p2align 6\n'
    txt += descriptor("k12_kernel", 384).replace(".amdhsa_accum_offset 384", ".amdhsa_accum_offset 256")
    txt += descriptor("k3prj_kernel", 256)
    txt += descriptor("k4fin_kernel", 256)
    open(out, "w").write(txt)


def main(out):
    global FUSED, SCQ
    FUSED = False
    SCQ = ""
    a = Asm()
    CUR_PHASE[0] = 1
    gen_k1(a)
    CUR_PHASE[0] = 2
    gen_k2(a)
    CUR_PHASE[0] = 3
    gen_k3(a)
    CUR_PHASE[0] = 4
    gen_k4(a)
    txt = HEADER
    txt += "; @launch kernel=k1q_kernel grid=(192,1,1) block=(256,1,1) lds=20480\n"
    txt += f"; @launch kernel=k2att_kernel grid=(256,1,1) block=(256,1,1) lds={K2_LDS}\n"
    txt += "; @launch kernel=k3prj_kernel grid=(256,1,1) block=(256,1,1) lds=36864\n"
    txt += "; @launch kernel=k4fin_kernel grid=(16,1,1) block=(256,1,1) lds=4096\n"
    txt += '.amdgcn_target "amdgcn-amd-amdhsa--gfx950"\n.text\n'
    txt += a.text()
    txt += '.section .rodata,"a"\n.p2align 6\n'
    for k in ["k1q_kernel", "k2att_kernel", "k3prj_kernel", "k4fin_kernel"]:
        if k == "k2att_kernel":
            txt += descriptor(k, 384).replace(".amdhsa_accum_offset 384", ".amdhsa_accum_offset 256")
        else:
            txt += descriptor(k, 256)
    open(out, "w").write(txt)


if __name__ == "__main__":
    if len(sys.argv) > 2 and sys.argv[2] == "stamp":
        STAMP = True
    main(sys.argv[1] if len(sys.argv) > 1 else "cdna_kernels/" + NAME + ".s")
```

```python
import sys

NAME = "concat_heads__sliding_block_cached__compressed_kv_cla__decode"

WS_QA    = 0x0
WS_QABS  = 0x10000
WS_APART = 0x100000
WS_ASTAT = 0x200000
WS_BSTAT = 0x210000
WS_BPART = 0x400000
WS_OUTP  = 0x1000000

KA = dict(A_x=0, A_k=8, A_v=16, A_wq=24, A_wo=32, B_x=40, B_ckv=48, B_wq=56, B_wuk=64,
          B_wuv=72, B_wo=80, out=88, dbg=96, ws=104)

LOG2E = 0x3fb8aa3b
SCALE = 0x3db504f3
HIMASK = 0xffff0000
STG = 288


class Asm:
    def __init__(self):
        self.lines = []

    def __call__(self, s):
        for ln in s.split("\n"):
            self.lines.append("    " + ln.strip())

    def label(self, s):
        self.lines.append(s + ":")

    def raw(self, s):
        self.lines.append(s)

    def text(self):
        return "\n".join(self.lines) + "\n"


def vr(base, n=4):
    return f"v[{base}:{base + n - 1}]"


def ar_(base, n=4):
    return f"a[{base}:{base + n - 1}]"


def unpack8(a, src, dst):
    for p in range(4):
        a(f"v_lshlrev_b32 v{dst + 2 * p}, 16, v{src + p}")
        a(f"v_and_b32 v{dst + 2 * p + 1}, 0x{HIMASK:x}, v{src + p}")


def unpack1(a, src_reg, idx, dst):
    r = src_reg + (idx >> 1)
    if idx & 1:
        a(f"v_and_b32 v{dst}, 0x{HIMASK:x}, v{r}")
    else:
        a(f"v_lshlrev_b32 v{dst}, 16, v{r}")


def bf16_round_pair(a, x0, x1, tmp):
    a(f"v_cvt_pk_bf16_f32 v{tmp}, v{x0}, v{x1}")
    a(f"v_lshlrev_b32 v{x0}, 16, v{tmp}")
    a(f"v_and_b32 v{x1}, 0x{HIMASK:x}, v{tmp}")


def bperm_reduce(a, op, val, addr_regs, tmp):
    for ar in addr_regs:
        a(f"ds_bpermute_b32 v{tmp}, v{ar}, v{val}")
        a("s_waitcnt lgkmcnt(0)")
        a(f"{op} v{val}, v{val}, v{tmp}")


def dpp_allreduce64(a, op, v, sbase):
    for n in (1, 2, 4, 8):
        a("s_nop 1")
        a(f"{op}_dpp v{v}, v{v}, v{v} row_ror:{n} row_mask:0xf bank_mask:0xf")
    a("s_nop 1")
    for i in range(4):
        a(f"v_readlane_b32 s{sbase + i}, v{v}, {16 * i}")
    a("s_nop 1")
    a(f"v_mov_b32 v{v}, s{sbase}")
    for i in range(1, 4):
        a(f"{op} v{v}, s{sbase + i}, v{v}")


def make_xor_addrs(a, lane, masks, dst0):
    for i, m in enumerate(masks):
        a(f"v_xor_b32 v{dst0 + i}, {m}, v{lane}")
        a(f"v_lshlrev_b32 v{dst0 + i}, 2, v{dst0 + i}")


STAMP = False
FUSED = True
SC = ""
SCQ = " sc1"
WS_STAMP = 0x2000000


CUR_PHASE = [0]
PH_MAP = {1: {1: 1, 2: 2, 3: 3, 7: 7}, 2: {1: 1, 2: 2, 3: 3, 4: 4, 5: 5, 6: 6, 7: 7},
          3: {1: 1, 2: 2, 3: 3, 4: 4, 5: 5, 7: 7}, 4: {7: 7}}


def stamp_init(a):
    if STAMP:
        for r in range(64, 96):
            a(f"s_mov_b32 s{r}, 0")
        stamp_slot(a, 0)


def stamp_slot(a, k):
    if STAMP:
        a(f"s_memrealtime s[{64 + 2 * k}:{65 + 2 * k}]")


def stamp(a, k):
    if STAMP:
        m = PH_MAP.get(CUR_PHASE[0], {})
        if k in m:
            stamp_slot(a, m[k])


def stamp_flush(a, kidx):
    if not STAMP:
        return
    a("s_waitcnt vmcnt(0) lgkmcnt(0)")
    a("v_lshrrev_b32 v1, 6, v0")
    a("s_nop 1")
    a("v_readfirstlane_b32 s32, v1")
    a(f"s_lshl_b32 s33, s2, 9")
    a("s_lshl_b32 s32, s32, 7")
    a("s_add_u32 s33, s33, s32")
    a(f"s_add_u32 s33, s33, 0x{WS_STAMP + kidx * 131072:x}")
    a("v_mov_b32 v2, s33")
    for k in range(32):
        a(f"v_mov_b32 v{4 + k}, s{64 + k}")
    a("s_mov_b64 s[34:35], exec")
    a("s_mov_b64 exec, 1")
    a("s_nop 3")
    for k in range(8):
        a(f"global_store_dwordx4 v2, {vr(4 + 4 * k)}, s[4:5] offset:{16 * k}")
    a("s_mov_b64 exec, s[34:35]")


def kernel_header(a, name):
    if FUSED:
        return
    a.raw(f".globl {name}")
    a.raw(".p2align 8")
    a.raw(f".type {name},@function")
    a.label(name)


def descriptor(name, vgpr, sgpr=96):
    acc = (vgpr + 3) // 4 * 4
    return f""".amdhsa_kernel {name}
  .amdhsa_next_free_vgpr {vgpr}
  .amdhsa_next_free_sgpr {sgpr}
  .amdhsa_accum_offset {acc}
  .amdhsa_group_segment_fixed_size 0
  .amdhsa_kernarg_size 112
  .amdhsa_user_sgpr_count 2
  .amdhsa_user_sgpr_kernarg_segment_ptr 1
  .amdhsa_system_sgpr_workgroup_id_x 1
.end_amdhsa_kernel
"""


def gen_k1(a):
    kernel_header(a, "k1q_kernel")
    if FUSED:
        a("s_cmp_ge_u32 s2, 192")
        a("s_cbranch_scc1 K1_END")
    else:
        a("s_cmp_ge_u32 s2, 192")
        a("s_cbranch_scc1 K1_EXIT")
        stamp_init(a)
        a(f"s_load_dwordx2 s[4:5], s[0:1], {KA['ws']}")
    a("s_cmp_ge_u32 s2, 128")
    a("s_cbranch_scc1 K1_A")
    a(f"s_load_dwordx2 s[6:7], s[0:1], {KA['B_x']}")
    a(f"s_load_dwordx2 s[8:9], s[0:1], {KA['B_wq']}")
    a(f"s_load_dwordx2 s[10:11], s[0:1], {KA['B_wuk']}")
    a("s_and_b32 s12, s2, 31")
    a("s_lshr_b32 s13, s2, 5")
    a("s_lshl_b32 s14, s12, 8")
    a("v_lshrrev_b32 v1, 4, v0")
    a("v_and_b32 v2, 15, v0")
    a("v_lshlrev_b32 v3, 18, v1")
    a("v_lshlrev_b32 v4, 4, v2")
    a("v_add3_u32 v3, v3, v4, s14")
    a("v_lshlrev_b32 v5, 6, v1")
    a("v_and_b32 v6, 63, v0")
    a("v_lshrrev_b32 v7, 6, v0")
    a("v_and_b32 v8, 15, v6")
    a("v_lshrrev_b32 v9, 4, v6")
    a("s_lshl_b32 s15, s13, 7")
    a("v_lshlrev_b32 v10, 5, v7")
    a("v_add3_u32 v10, v10, v8, s15")
    a("v_lshlrev_b32 v10, 13, v10")
    a("v_lshlrev_b32 v11, 4, v9")
    a("v_add3_u32 v10, v10, v11, s14")
    a("v_add_u32 v11, 0x20000, v10")
    a("s_waitcnt lgkmcnt(0)")
    XB = [192, 208]
    for b in range(2):
        for k in range(4):
            a(f"global_load_dwordx4 {vr(XB[b] + 4 * k)}, v5, s[6:7] offset:{b * 1024 + k * 16}")
    W0 = 64
    for i in range(32):
        a(f"global_load_dwordx4 {vr(W0 + 4 * i)}, v3, s[8:9]")
        a("v_add_u32 v3, 0x2000, v3")
    UK = 224
    for mt in range(2):
        for t in range(4):
            a(f"global_load_dwordx4 {vr(UK + (mt * 4 + t) * 4)}, v{10 + mt}, s[10:11] offset:{t * 64}")
    stamp(a, 1)
    for r in range(16, 32):
        a(f"v_mov_b32 v{r}, 0")
    for i in range(32):
        a(f"s_waitcnt vmcnt({39 - i})")
        unpack8(a, W0 + 4 * i, 32)
        unpack1(a, XB[0], i, 40)
        unpack1(a, XB[1], i, 41)
        for e in range(8):
            a(f"v_fmac_f32 v{16 + e}, v{32 + e}, v40")
            a(f"v_fmac_f32 v{24 + e}, v{32 + e}, v41")
    stamp(a, 2)
    a("v_lshlrev_b32 v12, 10, v1")
    a("v_lshlrev_b32 v13, 5, v2")
    a("v_add_u32 v12, v12, v13")
    a(f"ds_write_b128 v12, {vr(16)}")
    a(f"ds_write_b128 v12, {vr(20)} offset:16")
    a(f"ds_write_b128 v12, {vr(24)} offset:512")
    a(f"ds_write_b128 v12, {vr(28)} offset:528")
    a("s_waitcnt lgkmcnt(0)")
    a("s_barrier")
    a("v_lshlrev_b32 v12, 2, v0")
    for rg in range(16):
        a(f"ds_read_b32 v{32 + rg}, v12 offset:{rg * 1024}")
    a("s_waitcnt lgkmcnt(0)")
    for rg in range(1, 16):
        a(f"v_add_f32 v32, v32, v{32 + rg}")
    a("v_cvt_pk_bf16_f32 v33, v32, v32")
    a("v_lshlrev_b32 v13, 1, v0")
    a("ds_write_b16 v13, v33 offset:16384")
    QF = 64
    for r in range(QF, QF + 16):
        a(f"v_mov_b32 v{r}, 0")
    a("s_waitcnt lgkmcnt(0)")
    a("s_barrier")
    stamp(a, 3)
    a("v_cmp_gt_u32 vcc, 2, v8")
    a("v_lshlrev_b32 v12, 8, v8")
    a("v_lshlrev_b32 v13, 4, v9")
    a("v_add_u32 v12, v12, v13")
    a("s_nop 1")
    a("s_and_saveexec_b64 s[16:17], vcc")
    for t in range(4):
        a(f"ds_read_b128 {vr(QF + 4 * t)}, v12 offset:{16384 + t * 64}")
    a("s_mov_b64 exec, s[16:17]")
    a("s_waitcnt vmcnt(0) lgkmcnt(0)")
    D0 = 96
    for mt in range(2):
        for t in range(4):
            c = "0" if t == 0 else vr(D0 + 4 * mt)
            a(f"v_mfma_f32_16x16x32_bf16 {vr(D0 + 4 * mt)}, {vr(UK + (mt * 4 + t) * 4)}, {vr(QF + 4 * t)}, {c}")
    a("s_nop 7")
    a("s_nop 7")
    for mt in range(2):
        a(f"v_cvt_pk_bf16_f32 v{104 + 2 * mt}, v{D0 + 4 * mt}, v{D0 + 4 * mt + 1}")
        a(f"v_cvt_pk_bf16_f32 v{105 + 2 * mt}, v{D0 + 4 * mt + 2}, v{D0 + 4 * mt + 3}")
    a("v_lshlrev_b32 v12, 15, v8")
    a("v_lshlrev_b32 v13, 6, v7")
    a("v_lshlrev_b32 v14, 3, v9")
    a("v_add3_u32 v12, v12, v13, v14")
    a("s_lshl_b32 s18, s12, 10")
    a("s_lshl_b32 s19, s13, 8")
    a("s_add_u32 s18, s18, s19")
    a(f"s_add_u32 s18, s18, 0x{WS_QABS:x}")
    a("v_add_u32 v12, s18, v12")
    a("s_and_saveexec_b64 s[16:17], vcc")
    a("global_store_dwordx2 v12, v[104:105], s[4:5]" + SCQ)
    a("global_store_dwordx2 v12, v[106:107], s[4:5] offset:32" + SCQ)
    a("s_mov_b64 exec, s[16:17]")
    a("s_branch K1_END")
    a.label("K1_A")
    a(f"s_load_dwordx2 s[6:7], s[0:1], {KA['A_x']}")
    a(f"s_load_dwordx2 s[8:9], s[0:1], {KA['A_wq']}")
    a("s_sub_u32 s12, s2, 128")
    a("s_lshl_b32 s14, s12, 7")
    a("v_lshrrev_b32 v1, 3, v0")
    a("v_and_b32 v2, 7, v0")
    a("v_lshlrev_b32 v3, 17, v1")
    a("v_lshlrev_b32 v4, 4, v2")
    a("v_add3_u32 v3, v3, v4, s14")
    a("v_lshlrev_b32 v5, 5, v1")
    a("s_waitcnt lgkmcnt(0)")
    XA = [160, 168]
    for b in range(2):
        for k in range(2):
            a(f"global_load_dwordx4 {vr(XA[b] + 4 * k)}, v5, s[6:7] offset:{b * 1024 + k * 16}")
    for i in range(16):
        a(f"global_load_dwordx4 {vr(W0 + 4 * i)}, v3, s[8:9]")
        a("v_add_u32 v3, 0x2000, v3")
    for r in range(16, 32):
        a(f"v_mov_b32 v{r}, 0")
    for i in range(16):
        a(f"s_waitcnt vmcnt({15 - i})")
        unpack8(a, W0 + 4 * i, 32)
        unpack1(a, XA[0], i, 40)
        unpack1(a, XA[1], i, 41)
        for e in range(8):
            a(f"v_fmac_f32 v{16 + e}, v{32 + e}, v40")
            a(f"v_fmac_f32 v{24 + e}, v{32 + e}, v41")
    a("v_lshlrev_b32 v12, 9, v1")
    a("v_lshlrev_b32 v13, 5, v2")
    a("v_add_u32 v12, v12, v13")
    a(f"ds_write_b128 v12, {vr(16)}")
    a(f"ds_write_b128 v12, {vr(20)} offset:16")
    a(f"ds_write_b128 v12, {vr(24)} offset:256")
    a(f"ds_write_b128 v12, {vr(28)} offset:272")
    a("s_waitcnt lgkmcnt(0)")
    a("s_barrier")
    a("v_cmp_gt_u32 vcc, 128, v0")
    a("v_lshlrev_b32 v12, 2, v0")
    a("s_nop 1")
    a("s_and_saveexec_b64 s[16:17], vcc")
    a("s_cbranch_execz K1_A_SKIP")
    for rg in range(32):
        a(f"ds_read_b32 v{64 + rg}, v12 offset:{rg * 512}")
    a("s_waitcnt lgkmcnt(0)")
    for rg in range(1, 32):
        a(f"v_add_f32 v64, v64, v{64 + rg}")
    a("v_cvt_pk_bf16_f32 v65, v64, v64")
    a("v_lshrrev_b32 v13, 6, v0")
    a("v_lshlrev_b32 v13, 13, v13")
    a("v_and_b32 v14, 63, v0")
    a("v_lshlrev_b32 v14, 1, v14")
    a("v_add3_u32 v13, v13, v14, s14")
    a(f"global_store_short v13, v65, s[4:5] offset:{WS_QA}{SCQ}")
    a.label("K1_A_SKIP")
    a("s_mov_b64 exec, s[16:17]")
    a.label("K1_END")
    if FUSED:
        return
    stamp(a, 7)
    stamp_flush(a, 0)
    a.label("K1_EXIT")
    a("s_endpgm")


L_PB = 0
L_MX = L_PB + 8192
L_LB = L_MX + 2048
L_STG = L_LB + 2048
L_SX = L_STG + 4 * 9216
K2_LDS = L_SX + 65536


def score_round16(a, regs, tmp):
    for i in range(0, len(regs), 2):
        x0, x1 = regs[i], regs[i + 1]
        bf16_round_pair(a, x0, x1, tmp)
        a(f"v_mul_f32 v{x0}, s20, v{x0}")
        a(f"v_mul_f32 v{x1}, s20, v{x1}")
        bf16_round_pair(a, x0, x1, tmp)


def exp_inplace(a, regs, mreg, tmp):
    for r in regs:
        a(f"v_sub_f32 v{r}, v{r}, v{mreg}")
        a(f"v_mul_f32 v{r}, s21, v{r}")
        a(f"v_exp_f32 v{r}, v{r}")
    a("s_nop 1")


def gen_k2_a_pre(a):
    a.label("K2_APRE")
    a(f"s_load_dwordx2 s[6:7], s[0:1], {KA['A_k']}")
    a(f"s_load_dwordx2 s[8:9], s[0:1], {KA['A_v']}")
    a("s_sub_u32 s23, s2, 128")
    a("s_lshr_b32 s24, s23, 3")
    a("s_and_b32 s25, s23, 7")
    a("s_waitcnt lgkmcnt(0)")
    a("s_lshl_b32 s26, s24, 21")
    a("s_lshl_b32 s27, s25, 16")
    a("s_add_u32 s26, s26, s27")
    a("s_lshl_b32 s27, s22, 14")
    a("s_add_u32 s26, s26, s27")
    a(f"s_add_u32 s26, s26, {6144 * 256}")
    a("s_add_u32 s6, s6, s26")
    a("s_addc_u32 s7, s7, 0")
    a("s_add_u32 s8, s8, s26")
    a("s_addc_u32 s9, s9, 0")
    a("v_lshlrev_b32 v10, 8, v8")
    a("v_lshlrev_b32 v11, 4, v9")
    a("v_add_u32 v10, v10, v11")
    a("v_mov_b32 v12, v10")
    for mt in range(4):
        for t in range(4):
            a(f"global_load_dwordx4 {ar_((mt * 4 + t) * 4)}, v12, s[6:7] offset:{t * 64}")
        if mt < 3:
            a("v_add_u32 v12, 0x1000, v12")
    a("v_lshlrev_b32 v12, 4, v6")
    for i in range(16):
        if i and i % 4 == 0:
            a("v_add_u32 v12, 0x1000, v12")
        a(f"global_load_dwordx4 {ar_(64 + 4 * i)}, v12, s[8:9] offset:{(i % 4) * 1024}")


def gen_k2(a):
    kernel_header(a, "k2att_kernel")
    if not FUSED:
        a("s_cmp_ge_u32 s2, 256")
        a("s_cbranch_scc1 K2_EXIT")
        stamp_init(a)
        a(f"s_load_dwordx2 s[4:5], s[0:1], {KA['ws']}")
    if FUSED:
        grid_arrive(a, 0)
    a(f"s_mov_b32 s20, 0x{SCALE:x}")
    a(f"s_mov_b32 s21, 0x{LOG2E:x}")
    a("v_and_b32 v6, 63, v0")
    a("v_lshrrev_b32 v7, 6, v0")
    a("s_nop 0")
    a("v_readfirstlane_b32 s22, v7")
    a("v_and_b32 v8, 15, v6")
    a("v_lshrrev_b32 v9, 4, v6")
    a("s_cmp_ge_u32 s2, 128")
    a("s_cbranch_scc1 K2_APRE")
    a(f"s_load_dwordx2 s[6:7], s[0:1], {KA['B_ckv']}")
    a("s_lshr_b32 s23, s2, 6")
    a("s_and_b32 s24, s2, 63")
    a("s_waitcnt lgkmcnt(0)")
    a("s_lshl_b32 s25, s2, 17")
    a("s_lshl_b32 s26, s22, 8")
    a("s_add_u32 s25, s25, s26")
    a("s_add_u32 s6, s6, s25")
    a("s_addc_u32 s7, s7, 0")
    a("s_lshl_b32 s25, s23, 15")
    a("s_lshl_b32 s26, s22, 8")
    a("s_add_u32 s25, s25, s26")
    a(f"s_add_u32 s25, s25, 0x{WS_QABS:x}")
    a("v_lshlrev_b32 v10, 10, v8")
    a("v_lshlrev_b32 v11, 4, v9")
    a("v_add_u32 v10, v10, v11")
    a("v_add_u32 v11, s25, v10")
    a("v_add_u32 v12, 0x4000, v11")
    QB = 128 + 64
    DB = 64
    if not FUSED:
        for nt in range(2):
            for t in range(4):
                a(f"global_load_dwordx4 {vr(QB + (nt * 4 + t) * 4)}, v{11 + nt}, s[4:5] offset:{t * 64}")
    a("v_mov_b32 v13, v10")

    def ld_blk(kb):
        for mt in (2 * kb, 2 * kb + 1):
            for t in range(4):
                a(f"global_load_dwordx4 {ar_(0 + (mt * 4 + t) * 4)}, v13, s[6:7] offset:{t * 64}")
            if mt < 7:
                a("v_add_u32 v13, 0x4000, v13")
    for kb in range(4 if FUSED else 2):
        ld_blk(kb)
    a("s_branch K2_BAR")
    gen_k2_a_pre(a)
    a.label("K2_BAR")
    if FUSED:
        grid_wait(a, 0)
    stamp(a, 0)
    a("s_cmp_ge_u32 s2, 128")
    a("s_cbranch_scc1 K2_A")
    if FUSED:
        for nt in range(2):
            for t in range(4):
                a(f"global_load_dwordx4 {vr(QB + (nt * 4 + t) * 4)}, v{11 + nt}, s[4:5] offset:{t * 64}{SCQ}")
    stamp(a, 1)
    SREG = {}
    idx = 0
    pool = list(range(224, 256, 4)) + list(range(32, 64, 4))
    for mt in range(8):
        for nt in range(2):
            SREG[(mt, nt)] = pool[idx]
            idx += 1
    a(f"s_mul_i32 s26, s22, 9216")
    a(f"s_add_u32 s26, s26, {L_STG}")
    a(f"v_mul_u32_u24 v14, {STG}, v8")
    a("v_lshlrev_b32 v15, 4, v9")
    a("v_add3_u32 v14, v14, v15, s26")
    a("v_lshrrev_b32 v15, 2, v8")
    a("v_lshl_add_u32 v15, v9, 2, v15")
    a(f"v_mul_u32_u24 v15, {STG}, v15")
    a("v_and_b32 v16, 3, v6")
    a("v_lshlrev_b32 v16, 3, v16")
    a("v_add3_u32 v15, v15, v16, s26")
    for kb in range(4):
        a(f"s_waitcnt vmcnt({0 if (FUSED or kb == 3) else 8})")
        if kb == 0:
            stamp(a, 2)
        for t in range(4):
            for mt2 in range(2):
                mt = 2 * kb + mt2
                for nt in range(2):
                    s = SREG[(mt, nt)]
                    c = "0" if t == 0 else vr(s)
                    a(f"v_mfma_f32_16x16x32_bf16 {vr(s)}, {ar_((mt * 4 + t) * 4)}, {vr(QB + (nt * 4 + t) * 4)}, {c}")
        if not FUSED and kb < 2:
            ld_blk(kb + 2)
        for mt2 in range(2):
            mt = 2 * kb + mt2
            for t in range(4):
                a(f"ds_write_b128 v14, {ar_((mt * 4 + t) * 4)} offset:{mt2 * 16 * STG + t * 64}")
        a("s_waitcnt lgkmcnt(0)")
        for ct in range(8):
            for hf in range(2):
                a(f"ds_read_b64_tr_b16 {vr(DB + kb * 32 + ct * 4 + hf * 2, 2)}, v15 offset:{hf * 16 * STG + ct * 32}")
        a("s_waitcnt lgkmcnt(0)")
    stamp(a, 3)
    a("s_lshl_b32 s26, s22, 14")
    a(f"s_add_u32 s26, s26, {L_SX}")
    a("v_lshlrev_b32 v16, 4, v6")
    a("v_add_u32 v17, s26, v16")
    for mt in range(8):
        for nt in range(2):
            a(f"ds_write_b128 v17, {vr(SREG[(mt, nt)])} offset:{(mt * 2 + nt) * 1024}")
    a("s_waitcnt lgkmcnt(0)")
    a("s_barrier")
    stamp(a, 4)
    a("s_lshl_b32 s26, s22, 12")
    a(f"s_add_u32 s26, s26, {L_SX}")
    a("v_add_u32 v17, s26, v16")
    T0 = 224
    tq = pool
    for w2 in range(4):
        for mt2 in range(2):
            for nt in range(2):
                a(f"ds_read_b128 {vr(tq[w2 * 4 + mt2 * 2 + nt])}, v17 offset:{w2 * 16384 + (mt2 * 2 + nt) * 1024}")
    a("s_waitcnt lgkmcnt(0)")
    for k in range(4):
        for r in range(4):
            for w2 in range(1, 4):
                a(f"v_add_f32 v{tq[k] + r}, v{tq[k] + r}, v{tq[w2 * 4 + k] + r}")
    allS = [tq[k] + r for k in range(4) for r in range(4)]
    score_round16(a, allS, 18)
    for nt in range(2):
        rs = [tq[nt] + r for r in range(4)] + [tq[2 + nt] + r for r in range(4)]
        a(f"v_max3_f32 v{20 + nt}, v{rs[0]}, v{rs[1]}, v{rs[2]}")
        a(f"v_max3_f32 v{20 + nt}, v{20 + nt}, v{rs[3]}, v{rs[4]}")
        a(f"v_max3_f32 v{20 + nt}, v{20 + nt}, v{rs[5]}, v{rs[6]}")
        a(f"v_max_f32 v{20 + nt}, v{20 + nt}, v{rs[7]}")
    a("v_lshlrev_b32 v18, 6, v8")
    a("v_lshlrev_b32 v19, 2, v9")
    a("s_lshl_b32 s26, s22, 4")
    a("v_add3_u32 v19, v18, v19, s26")
    a(f"ds_write_b32 v19, v20 offset:{L_MX}")
    a(f"ds_write_b32 v19, v21 offset:{L_MX + 1024}")
    a("s_waitcnt lgkmcnt(0)")
    a("s_barrier")
    for nt in range(2):
        for k in range(4):
            a(f"ds_read_b128 {vr(tq[4 + nt * 4 + k])}, v18 offset:{L_MX + nt * 1024 + k * 16}")
    a("s_waitcnt lgkmcnt(0)")
    for nt in range(2):
        rs = [tq[4 + nt * 4 + k] + r for k in range(4) for r in range(4)]
        a(f"v_max3_f32 v{20 + nt}, v{rs[0]}, v{rs[1]}, v{rs[2]}")
        for i in range(3, 15, 2):
            a(f"v_max3_f32 v{20 + nt}, v{20 + nt}, v{rs[i]}, v{rs[i + 1]}")
        a(f"v_max_f32 v{20 + nt}, v{20 + nt}, v{rs[15]}")
    for nt in range(2):
        rs = [tq[nt] + r for r in range(4)] + [tq[2 + nt] + r for r in range(4)]
        exp_inplace(a, rs, 20 + nt, 0)
        a(f"v_add_f32 v{22 + nt}, v{rs[0]}, v{rs[1]}")
        for r in rs[2:]:
            a(f"v_add_f32 v{22 + nt}, v{22 + nt}, v{r}")
    a(f"ds_write_b32 v19, v22 offset:{L_LB}")
    a(f"ds_write_b32 v19, v23 offset:{L_LB + 1024}")
    for nt in range(2):
        for mt2 in range(2):
            s = tq[mt2 * 2 + nt]
            a(f"v_cvt_pk_bf16_f32 v{24 + nt * 4 + mt2 * 2}, v{s}, v{s + 1}")
            a(f"v_cvt_pk_bf16_f32 v{25 + nt * 4 + mt2 * 2}, v{s + 2}, v{s + 3}")
    a("s_lshl_b32 s26, s22, 11")
    a("v_add_u32 v17, s26, v16")
    a(f"ds_write_b128 v17, {vr(24)} offset:{L_PB}")
    a(f"ds_write_b128 v17, {vr(28)} offset:{L_PB + 1024}")
    a("s_waitcnt lgkmcnt(0)")
    a("s_barrier")
    stamp(a, 5)
    PF = 192
    for kb in range(4):
        for nt in range(2):
            a(f"ds_read_b128 {vr(PF + (kb * 2 + nt) * 4)}, v16 offset:{L_PB + (kb * 2 + nt) * 1024}")
    a("s_cmp_lg_u32 s22, 0")
    a("s_cbranch_scc1 K2B_NOSTAT")
    a("v_cmp_gt_u32 vcc, 16, v6")
    a("s_nop 1")
    a("s_and_saveexec_b64 s[16:17], vcc")
    for nt in range(2):
        for k in range(4):
            a(f"ds_read_b128 {vr(tq[nt * 4 + k])}, v18 offset:{L_LB + nt * 1024 + k * 16}")
    a("s_waitcnt lgkmcnt(0)")
    for nt in range(2):
        rs = [tq[nt * 4 + k] + r for k in range(4) for r in range(4)]
        for r in rs[1:]:
            a(f"v_add_f32 v{rs[0]}, v{rs[0]}, v{r}")
    a(f"v_mov_b32 v26, v20")
    a(f"v_mov_b32 v27, v{tq[0]}")
    a(f"v_mov_b32 v28, v21")
    a(f"v_mov_b32 v29, v{tq[4]}")
    a("s_lshl_b32 s26, s2, 8")
    a(f"s_add_u32 s26, s26, 0x{WS_BSTAT:x}")
    a("v_lshlrev_b32 v30, 3, v8")
    a("v_add_u32 v30, s26, v30")
    a("global_store_dwordx2 v30, v[26:27], s[4:5]" + SC)
    a("global_store_dwordx2 v30, v[28:29], s[4:5] offset:128" + SC)
    a("s_mov_b64 exec, s[16:17]")
    a.label("K2B_NOSTAT")
    a("s_waitcnt lgkmcnt(0)")
    a("s_lshl_b32 s26, s2, 15")
    a("s_lshl_b32 s27, s22, 8")
    a("s_add_u32 s26, s26, s27")
    a(f"s_add_u32 s26, s26, 0x{WS_BPART:x}")
    a("s_add_u32 s28, s4, s26")
    a("s_addc_u32 s29, s5, 0")
    a("v_lshlrev_b32 v17, 10, v8")
    a("v_lshlrev_b32 v18, 3, v9")
    a("v_add_u32 v17, v17, v18")
    a("v_add_u32 v18, 0x4000, v17")
    a("s_nop 1")
    stamp(a, 6)

    def st_tile(ct):
        for nt in range(2):
            o = pool[ct * 2 + nt]
            t0 = 24 + ((ct * 2 + nt) % 4) * 2
            a(f"v_cvt_pk_bf16_f32 v{t0}, v{o}, v{o + 1}")
            a(f"v_cvt_pk_bf16_f32 v{t0 + 1}, v{o + 2}, v{o + 3}")
            a(f"global_store_dwordx2 v{17 + nt}, v[{t0}:{t0 + 1}], s[28:29] offset:{ct * 32}{SC}")
    for ct in range(8):
        for kb in range(4):
            for nt in range(2):
                o = pool[ct * 2 + nt]
                c = "0" if kb == 0 else vr(o)
                a(f"v_mfma_f32_16x16x32_bf16 {vr(o)}, {vr(DB + kb * 32 + ct * 4)}, {vr(PF + (kb * 2 + nt) * 4)}, {c}")
        if ct >= 1:
            st_tile(ct - 1)
    a("s_nop 7")
    a("s_nop 7")
    st_tile(7)
    a("s_branch K2_END")
    a.label("K2_A")
    KB_ = 64
    QF = 16
    for r in range(QF, QF + 16):
        a(f"v_mov_b32 v{r}, 0")
    a("s_lshl_b32 s26, s24, 10")
    a("v_lshlrev_b32 v10, 8, v8")
    a("v_lshlrev_b32 v11, 4, v9")
    a("v_add_u32 v10, v10, v11")
    a("v_add_u32 v11, s26, v10")
    a("v_cmp_gt_u32 vcc, 4, v8")
    a("s_nop 1")
    a("s_and_saveexec_b64 s[16:17], vcc")
    for t in range(4):
        a(f"global_load_dwordx4 {vr(QF + 4 * t)}, v11, s[4:5] offset:{WS_QA + t * 64}{SCQ}")
    a("s_mov_b64 exec, s[16:17]")
    stamp(a, 1)
    a(f"s_mul_i32 s26, s22, {64 * STG}")
    a(f"s_add_u32 s26, s26, {L_STG}")
    a(f"v_mul_u32_u24 v14, {STG}, v9")
    a("v_lshlrev_b32 v15, 4, v8")
    a("v_add3_u32 v14, v14, v15, s26")
    a("v_lshrrev_b32 v15, 2, v8")
    a("v_lshl_add_u32 v15, v9, 2, v15")
    a(f"v_mul_u32_u24 v15, {STG}, v15")
    a("v_and_b32 v13, 3, v6")
    a("v_lshlrev_b32 v13, 3, v13")
    a("v_add3_u32 v15, v15, v13, s26")
    SAq = [32, 36, 40, 44]
    a("s_waitcnt vmcnt(0)")
    stamp(a, 2)
    for t in range(4):
        for mt in range(4):
            c = "0" if t == 0 else vr(SAq[mt])
            a(f"v_mfma_f32_16x16x32_bf16 {vr(SAq[mt])}, {ar_((mt * 4 + t) * 4)}, {vr(QF + 4 * t)}, {c}")
    a("s_waitcnt vmcnt(0)")
    stamp(a, 3)
    for i in range(16):
        a(f"ds_write_b128 v14, {ar_(64 + 4 * i)} offset:{i * 4 * STG}")
    a("s_nop 7")
    allS = [SAq[mt] + r for mt in range(4) for r in range(4)]
    score_round16(a, allS, 18)
    a(f"v_max3_f32 v20, v{allS[0]}, v{allS[1]}, v{allS[2]}")
    for i in range(3, 15, 2):
        a(f"v_max3_f32 v20, v20, v{allS[i]}, v{allS[i + 1]}")
    a(f"v_max_f32 v20, v20, v{allS[15]}")
    make_xor_addrs(a, 6, [16, 32], 21)
    a("s_waitcnt lgkmcnt(0)")
    bperm_reduce(a, "v_max_f32", 20, [21, 22], 23)
    exp_inplace(a, allS, 20, 0)
    a(f"v_add_f32 v24, v{allS[0]}, v{allS[1]}")
    for r in allS[2:]:
        a(f"v_add_f32 v24, v24, v{r}")
    bperm_reduce(a, "v_add_f32", 24, [21, 22], 23)
    for kb in range(2):
        for mt2 in range(2):
            s = SAq[2 * kb + mt2]
            a(f"v_cvt_pk_bf16_f32 v{48 + kb * 4 + mt2 * 2}, v{s}, v{s + 1}")
            a(f"v_cvt_pk_bf16_f32 v{49 + kb * 4 + mt2 * 2}, v{s + 2}, v{s + 3}")
    for kb in range(2):
        for ct in range(8):
            for hf in range(2):
                a(f"ds_read_b64_tr_b16 {vr(KB_ + (kb * 8 + ct) * 4 + hf * 2, 2)}, v15 offset:{(kb * 32 + hf * 16) * STG + ct * 32}")
    a("s_waitcnt lgkmcnt(0)")
    OA = 192
    for kb in range(2):
        for ct in range(8):
            c = "0" if kb == 0 else vr(OA + 4 * ct)
            a(f"v_mfma_f32_16x16x32_bf16 {vr(OA + 4 * ct)}, {vr(KB_ + (kb * 8 + ct) * 4)}, {vr(48 + kb * 4)}, {c}")
    stamp(a, 6)
    a("s_lshl_b32 s26, s24, 5")
    a("s_lshl_b32 s27, s25, 2")
    a("s_add_u32 s26, s26, s27")
    a("s_add_u32 s26, s26, s22")
    a("s_lshl_b32 s27, s26, 11")
    a(f"s_add_u32 s27, s27, 0x{WS_APART:x}")
    a("v_lshlrev_b32 v17, 9, v8")
    a("v_lshlrev_b32 v18, 4, v9")
    a("v_add3_u32 v17, v17, v18, s27")
    a("s_lshl_b32 s28, s26, 5")
    a(f"s_add_u32 s28, s28, 0x{WS_ASTAT:x}")
    a("v_lshlrev_b32 v18, 3, v8")
    a("v_add_u32 v18, s28, v18")
    a("v_mov_b32 v26, v20")
    a("v_mov_b32 v27, v24")
    a("v_cmp_gt_u32 vcc, 4, v8")
    a("v_cmp_gt_u32 s[18:19], 4, v6")
    a("s_nop 7")
    a("s_nop 7")
    a("s_and_saveexec_b64 s[16:17], vcc")
    for ct in range(8):
        a(f"global_store_dwordx4 v17, {vr(OA + 4 * ct)}, s[4:5] offset:{ct * 64}{SC}")
    a("s_mov_b64 exec, s[18:19]")
    a("global_store_dwordx2 v18, v[26:27], s[4:5]" + SC)
    a("s_mov_b64 exec, s[16:17]")
    a.label("K2_END")
    if FUSED:
        return
    stamp(a, 7)
    stamp_flush(a, 1)
    a.label("K2_EXIT")
    a("s_endpgm")


def fma16(a, wsrc, m0, m1, acc, tmp):
    unpack8(a, wsrc, tmp)
    for e in range(8):
        a(f"v_fmac_f32 v{acc + e}, v{tmp + e}, v{m0}")
        a(f"v_fmac_f32 v{acc + 8 + e}, v{tmp + e}, v{m1}")


def final_out_reduce(a, task_sreg, acc):
    a("v_lshlrev_b32 v12, 12, v7")
    a("v_lshlrev_b32 v13, 5, v6")
    a("v_add_u32 v12, v12, v13")
    a(f"ds_write_b128 v12, {vr(acc)}")
    a(f"ds_write_b128 v12, {vr(acc + 4)} offset:16")
    a(f"ds_write_b128 v12, {vr(acc + 8)} offset:2048")
    a(f"ds_write_b128 v12, {vr(acc + 12)} offset:2064")
    a("s_waitcnt lgkmcnt(0)")
    a("s_barrier")
    a("v_lshlrev_b32 v12, 4, v0")
    for w2 in range(4):
        a(f"ds_read_b128 {vr(32 + 4 * w2)}, v12 offset:{w2 * 4096}")
    a("s_waitcnt lgkmcnt(0)")
    for r in range(4):
        for w2 in range(1, 4):
            a(f"v_add_f32 v{32 + r}, v{32 + r}, v{32 + 4 * w2 + r}")
    a(f"s_lshl_b32 s26, s{task_sreg}, 12")
    a(f"s_add_u32 s26, s26, 0x{WS_OUTP:x}")
    a("v_add_u32 v12, s26, v12")
    a(f"global_store_dwordx4 v12, {vr(32)}, s[4:5]{SC}")


def gen_k3(a):
    kernel_header(a, "k3prj_kernel")
    if not FUSED:
        a("s_cmp_ge_u32 s2, 256")
        a("s_cbranch_scc1 K3_EXIT")
        stamp_init(a)
        a(f"s_load_dwordx2 s[4:5], s[0:1], {KA['ws']}")
    a(f"s_mov_b32 s21, 0x{LOG2E:x}")
    a("v_and_b32 v6, 63, v0")
    a("v_lshrrev_b32 v7, 6, v0")
    a("s_cmp_ge_u32 s2, 128")
    a("s_cbranch_scc1 K3_A")
    a(f"s_load_dwordx2 s[6:7], s[0:1], {KA['B_wuv']}")
    a(f"s_load_dwordx2 s[8:9], s[0:1], {KA['B_wo']}")
    a("s_and_b32 s12, s2, 31")
    a("s_lshr_b32 s13, s2, 5")
    a("v_lshrrev_b32 v1, 4, v0")
    a("v_and_b32 v2, 15, v0")
    a("s_lshl_b32 s14, s12, 3")
    a(f"s_add_u32 s14, s14, 0x{WS_BSTAT:x}")
    a("v_lshlrev_b32 v3, 8, v0")
    a("v_add_u32 v3, s14, v3")
    a("v_cmp_gt_u32 vcc, 128, v0")
    a("s_waitcnt lgkmcnt(0)")
    a("s_and_saveexec_b64 s[16:17], vcc")
    a("global_load_dwordx2 v[4:5], v3, s[4:5]" + SC)
    a("s_mov_b64 exec, s[16:17]")
    a("v_lshrrev_b32 v3, 5, v0")
    a("v_lshlrev_b32 v3, 19, v3")
    a("v_and_b32 v8, 31, v0")
    a("v_lshlrev_b32 v8, 3, v8")
    a("s_lshl_b32 s14, s12, 10")
    a("s_lshl_b32 s15, s13, 8")
    a("s_add_u32 s14, s14, s15")
    a("v_add3_u32 v3, v3, v8, s14")
    a(f"s_add_u32 s28, s4, 0x{WS_BPART:x}")
    a("s_addc_u32 s29, s5, 0")
    OP = 64
    for i in range(16):
        a(f"global_load_dwordx2 {vr(OP + 2 * i, 2)}, v3, s[28:29]{SC}")
        if i < 15:
            a("v_add_u32 v3, 0x8000, v3")
    a("s_lshl_b32 s14, s13, 20")
    a("s_lshl_b32 s15, s12, 8")
    a("s_add_u32 s14, s14, s15")
    a("v_lshlrev_b32 v3, 16, v1")
    a("v_lshlrev_b32 v8, 4, v2")
    a("v_add3_u32 v3, v3, v8, s14")
    UV = 128
    for i in range(8):
        a(f"global_load_dwordx4 {vr(UV + 4 * i)}, v3, s[6:7]")
        if i < 7:
            a("v_add_u32 v3, 0x2000, v3")
    stamp(a, 1)
    a("s_lshl_b32 s14, s12, 17")
    a("v_lshlrev_b32 v62, 15, v7")
    a("v_lshlrev_b32 v8, 4, v6")
    a("v_add3_u32 v62, v62, v8, s14")
    for i in range(24):
        a(f"global_load_dwordx4 {vr(160 + 4 * i)}, v62, s[8:9]")
        a("v_add_u32 v62, 0x400, v62")
    a("s_waitcnt vmcnt(48)")
    a("v_mov_b32 v9, v4")
    dpp_allreduce64(a, "v_max_f32", 9, 36)
    a("v_sub_f32 v10, v4, v9")
    a("v_mul_f32 v10, s21, v10")
    a("v_exp_f32 v10, v10")
    a("s_nop 1")
    a("v_mul_f32 v11, v10, v5")
    dpp_allreduce64(a, "v_add_f32", 11, 36)
    a("v_rcp_f32 v11, v11")
    a("s_nop 1")
    a("v_mul_f32 v10, v10, v11")
    a("v_lshlrev_b32 v12, 2, v0")
    a("s_and_saveexec_b64 s[16:17], vcc")
    a("ds_write_b32 v12, v10")
    a("s_mov_b64 exec, s[16:17]")
    a("s_waitcnt lgkmcnt(0)")
    a("s_barrier")
    stamp(a, 2)
    WO = 160
    a("v_lshrrev_b32 v12, 5, v0")
    a("v_lshlrev_b32 v12, 6, v12")
    for k in range(4):
        a(f"ds_read_b128 {vr(32 + 4 * k)}, v12 offset:{k * 16}")
    a("s_waitcnt vmcnt(32) lgkmcnt(0)")
    for r in range(4):
        a(f"v_mov_b32 v{16 + r}, 0")
    for i in range(16):
        for pq in range(2):
            a(f"v_lshlrev_b32 v{48 + 2 * pq}, 16, v{OP + 2 * i + pq}")
            a(f"v_and_b32 v{49 + 2 * pq}, 0x{HIMASK:x}, v{OP + 2 * i + pq}")
        for r in range(4):
            a(f"v_fmac_f32 v{16 + r}, v{48 + r}, v{32 + i}")
    a("v_lshlrev_b32 v12, 4, v0")
    a(f"ds_write_b128 v12, {vr(16)} offset:1024")
    a("s_waitcnt lgkmcnt(0)")
    a("s_barrier")
    a("v_lshrrev_b32 v12, 7, v0")
    a("v_lshlrev_b32 v12, 11, v12")
    a("v_and_b32 v13, 127, v0")
    a("v_lshlrev_b32 v13, 2, v13")
    a("v_add_u32 v12, v12, v13")
    for jq in range(4):
        a(f"ds_read_b32 v{32 + jq}, v12 offset:{1024 + jq * 512}")
    a("s_waitcnt lgkmcnt(0)")
    a("v_add_f32 v32, v32, v33")
    a("v_add_f32 v34, v34, v35")
    a("v_add_f32 v32, v32, v34")
    a("v_lshlrev_b32 v12, 2, v0")
    a("ds_write_b32 v12, v32 offset:8192")
    a("s_waitcnt lgkmcnt(0)")
    a("s_barrier")
    stamp(a, 3)
    a("v_lshlrev_b32 v12, 5, v1")
    for b in range(2):
        for k in range(2):
            a(f"ds_read_b128 {vr(32 + (b * 2 + k) * 4)}, v12 offset:{8192 + b * 512 + k * 16}")
    for r in range(16, 32):
        a(f"v_mov_b32 v{r}, 0")
    a("s_waitcnt vmcnt(24) lgkmcnt(0)")
    for i in range(8):
        fma16(a, UV + 4 * i, 32 + i, 40 + i, 16, 48)
    a("v_lshlrev_b32 v12, 10, v1")
    a("v_lshlrev_b32 v13, 5, v2")
    a("v_add_u32 v12, v12, v13")
    a(f"ds_write_b128 v12, {vr(16)} offset:16384")
    a(f"ds_write_b128 v12, {vr(20)} offset:16400")
    a(f"ds_write_b128 v12, {vr(24)} offset:16896")
    a(f"ds_write_b128 v12, {vr(28)} offset:16912")
    for i in range(24, 32):
        a(f"global_load_dwordx4 {vr(64 + 4 * (i - 24))}, v62, s[8:9]")
        if i < 31:
            a("v_add_u32 v62, 0x400, v62")
    a("s_waitcnt lgkmcnt(0)")
    a("s_barrier")
    a("v_lshlrev_b32 v12, 2, v0")
    for rg in range(16):
        a(f"ds_read_b32 v{32 + rg}, v12 offset:{16384 + rg * 1024}")
    a("s_waitcnt lgkmcnt(0)")
    for rg in range(1, 16):
        a(f"v_add_f32 v32, v32, v{32 + rg}")
    a("ds_write_b32 v12, v32 offset:32768")
    a("s_waitcnt lgkmcnt(0)")
    a("s_barrier")
    stamp(a, 4)
    a("v_lshlrev_b32 v12, 7, v7")
    MUL = 96
    for b in range(2):
        for k in range(8):
            a(f"ds_read_b128 {vr(MUL + b * 32 + 4 * k)}, v12 offset:{32768 + b * 512 + k * 16}")
    for r in range(16, 32):
        a(f"v_mov_b32 v{r}, 0")
    a("s_waitcnt vmcnt(0) lgkmcnt(0)")
    for i in range(32):
        src = WO + 4 * i if i < 24 else 64 + 4 * (i - 24)
        fma16(a, src, MUL + i, MUL + 32 + i, 16, 48)
    stamp(a, 5)
    a("s_barrier")
    a("s_add_u32 s15, s2, 128")
    final_out_reduce(a, 15, 16)
    a("s_branch K3_END")
    a.label("K3_A")
    a(f"s_load_dwordx2 s[8:9], s[0:1], {KA['A_wo']}")
    a("s_sub_u32 s11, s2, 128")
    a("s_and_b32 s12, s11, 31")
    a("s_lshr_b32 s13, s11, 5")
    a("s_lshr_b32 s14, s12, 2")
    a("s_and_b32 s15, s12, 3")
    a("v_lshrrev_b32 v1, 5, v0")
    a("v_and_b32 v2, 31, v0")
    a("v_lshlrev_b32 v3, 8, v1")
    a("v_add_u32 v3, v3, v2")
    a("s_lshl_b32 s18, s14, 5")
    a("v_add_u32 v3, s18, v3")
    a("v_lshlrev_b32 v4, 5, v3")
    a("s_lshl_b32 s19, s15, 3")
    a(f"s_add_u32 s19, s19, 0x{WS_ASTAT:x}")
    a("v_add_u32 v4, s19, v4")
    a("v_cmp_gt_u32 vcc, 64, v0")
    a("s_waitcnt lgkmcnt(0)")
    a("s_and_saveexec_b64 s[16:17], vcc")
    a("global_load_dwordx2 v[4:5], v4, s[4:5]" + SC)
    a("s_mov_b64 exec, s[16:17]")
    a("v_lshrrev_b32 v1, 7, v0")
    a("v_bfe_u32 v2, v0, 2, 5")
    a("v_lshlrev_b32 v3, 8, v1")
    a("v_add_u32 v3, v3, v2")
    a("v_add_u32 v3, s18, v3")
    a("v_lshlrev_b32 v3, 11, v3")
    a("v_and_b32 v8, 3, v0")
    a("v_lshlrev_b32 v8, 5, v8")
    a("s_lshl_b32 s19, s15, 9")
    a("s_lshl_b32 s22, s13, 7")
    a("s_add_u32 s19, s19, s22")
    a(f"s_add_u32 s19, s19, 0x{WS_APART:x}")
    a("v_add3_u32 v3, v3, v8, s19")
    a(f"global_load_dwordx4 {vr(64)}, v3, s[4:5]{SC}")
    a(f"global_load_dwordx4 {vr(68)}, v3, s[4:5] offset:16{SC}")
    a("s_lshl_b32 s22, s12, 17")
    a("s_lshl_b32 s23, s13, 15")
    a("s_add_u32 s22, s22, s23")
    a("v_lshlrev_b32 v3, 13, v7")
    a("v_lshlrev_b32 v8, 4, v6")
    a("v_add3_u32 v3, v3, v8, s22")
    for i in range(8):
        a(f"global_load_dwordx4 {vr(96 + 4 * i)}, v3, s[8:9] offset:{(i % 4) * 1024}")
        if i == 3:
            a("v_add_u32 v3, 0x1000, v3")
    a("s_waitcnt vmcnt(10)")
    make_xor_addrs(a, 6, [1, 2, 4, 8, 16], 56)
    a("v_mov_b32 v9, v4")
    bperm_reduce(a, "v_max_f32", 9, range(56, 61), 10)
    a("v_sub_f32 v10, v4, v9")
    a("v_mul_f32 v10, s21, v10")
    a("v_exp_f32 v10, v10")
    a("s_nop 1")
    a("v_mul_f32 v11, v10, v5")
    bperm_reduce(a, "v_add_f32", 11, range(56, 61), 12)
    a("v_rcp_f32 v11, v11")
    a("s_nop 1")
    a("v_mul_f32 v10, v10, v11")
    a("v_lshlrev_b32 v12, 2, v0")
    a("s_and_saveexec_b64 s[16:17], vcc")
    a("ds_write_b32 v12, v10")
    a("s_mov_b64 exec, s[16:17]")
    a("s_waitcnt lgkmcnt(0)")
    a("s_barrier")
    a("v_lshrrev_b32 v12, 2, v0")
    a("v_lshlrev_b32 v12, 2, v12")
    a("ds_read_b32 v13, v12")
    a("s_waitcnt vmcnt(8) lgkmcnt(0)")
    for r in range(8):
        a(f"v_mul_f32 v{64 + r}, v{64 + r}, v13")
    a("v_lshlrev_b32 v12, 5, v0")
    a(f"ds_write_b128 v12, {vr(64)} offset:1024")
    a(f"ds_write_b128 v12, {vr(68)} offset:1040")
    a("s_waitcnt lgkmcnt(0)")
    a("s_barrier")
    a("v_lshrrev_b32 v12, 5, v0")
    a("v_lshlrev_b32 v12, 12, v12")
    a("v_and_b32 v13, 31, v0")
    a("v_lshlrev_b32 v13, 2, v13")
    a("v_add_u32 v12, v12, v13")
    a("s_and_saveexec_b64 s[16:17], vcc")
    a("s_cbranch_execz K3A_SKIP")
    for sp in range(32):
        a(f"ds_read_b32 v{128 + sp}, v12 offset:{1024 + sp * 128}")
    a("s_waitcnt lgkmcnt(0)")
    for sp in range(1, 32):
        a(f"v_add_f32 v128, v128, v{128 + sp}")
    bf16_round_pair(a, 128, 129, 130)
    a("v_lshlrev_b32 v13, 2, v0")
    a("ds_write_b32 v13, v128 offset:16384")
    a.label("K3A_SKIP")
    a("s_mov_b64 exec, s[16:17]")
    a("s_waitcnt lgkmcnt(0)")
    a("s_barrier")
    a("v_lshlrev_b32 v12, 5, v7")
    for b in range(2):
        for k in range(2):
            a(f"ds_read_b128 {vr(32 + (b * 2 + k) * 4)}, v12 offset:{16384 + b * 128 + k * 16}")
    for r in range(16, 32):
        a(f"v_mov_b32 v{r}, 0")
    a("s_waitcnt vmcnt(0) lgkmcnt(0)")
    for i in range(8):
        fma16(a, 96 + 4 * i, 32 + i, 40 + i, 16, 48)
    a("s_barrier")
    final_out_reduce(a, 11, 16)
    a.label("K3_END")
    if FUSED:
        return
    stamp(a, 7)
    stamp_flush(a, 2)
    a.label("K3_EXIT")
    a("s_endpgm")


def gen_k4(a):
    kernel_header(a, "k4fin_kernel")
    a("s_cmp_ge_u32 s2, 16")
    a("s_cbranch_scc1 K4_EXIT2" if FUSED else "s_cbranch_scc1 K4_EXIT")
    if not FUSED:
        stamp_init(a)
        a(f"s_load_dwordx2 s[4:5], s[0:1], {KA['ws']}")
    a(f"s_load_dwordx2 s[6:7], s[0:1], {KA['out']}")
    a("s_lshr_b32 s10, s2, 3")
    a("s_bfe_u32 s11, s2, 0x10002")
    a("s_and_b32 s12, s2, 3")
    a("v_lshrrev_b32 v1, 5, v0")
    a("v_and_b32 v2, 31, v0")
    a("s_lshl_b32 s13, s10, 19")
    a("s_lshl_b32 s14, s11, 11")
    a("s_add_u32 s13, s13, s14")
    a("s_lshl_b32 s14, s12, 9")
    a("s_add_u32 s13, s13, s14")
    a(f"s_add_u32 s13, s13, 0x{WS_OUTP:x}")
    a("v_lshlrev_b32 v3, 16, v1")
    a("v_lshlrev_b32 v4, 4, v2")
    a("v_add3_u32 v3, v3, v4, s13")
    a("s_waitcnt lgkmcnt(0)")
    for i in range(16):
        a(f"global_load_dwordx4 {vr(16 + 4 * i)}, v3, s[4:5]{SC}")
        if i < 15:
            a("v_add_u32 v3, 0x1000, v3")
    a("s_waitcnt vmcnt(0)")
    for i in range(1, 16):
        for r in range(4):
            a(f"v_add_f32 v{16 + r}, v{16 + r}, v{16 + 4 * i + r}")
    a("v_lshlrev_b32 v5, 4, v0")
    a(f"ds_write_b128 v5, {vr(16)}")
    a("s_waitcnt lgkmcnt(0)")
    a("s_barrier")
    a("v_cmp_gt_u32 vcc, 32, v0")
    a("s_nop 1")
    a("s_and_saveexec_b64 s[16:17], vcc")
    a("s_cbranch_execz K4_SKIP")
    for tg in range(8):
        a(f"ds_read_b128 {vr(16 + 4 * tg)}, v5 offset:{tg * 512}")
    a("s_waitcnt lgkmcnt(0)")
    for tg in range(1, 8):
        for r in range(4):
            a(f"v_add_f32 v{16 + r}, v{16 + r}, v{16 + 4 * tg + r}")
    a("v_cvt_pk_bf16_f32 v8, v16, v17")
    a("v_cvt_pk_bf16_f32 v9, v18, v19")
    a("s_lshl_b32 s13, s11, 11")
    a("s_lshl_b32 s14, s10, 10")
    a("s_add_u32 s13, s13, s14")
    a("s_lshl_b32 s14, s12, 8")
    a("s_add_u32 s13, s13, s14")
    a("v_lshlrev_b32 v6, 3, v2")
    a("v_add_u32 v6, s13, v6")
    a("global_store_dwordx2 v6, v[8:9], s[6:7]")
    a.label("K4_SKIP")
    a("s_mov_b64 exec, s[16:17]")
    a.label("K4_END")
    a.label("K4_EXIT2")
    stamp_slot(a, 7)
    stamp_flush(a, 3)
    a.label("K4_EXIT")
    a("s_endpgm")


def grid_arrive(a, idx):
    L = f"GB{idx}"
    a("s_waitcnt vmcnt(0) lgkmcnt(0)")
    a("s_barrier")
    a("v_cmp_eq_u32 vcc, 0, v0")
    a("v_mov_b32 v1, 1")
    a(f"v_mov_b32 v2, {idx * 64}")
    a("s_nop 1")
    a("s_and_saveexec_b64 s[16:17], vcc")
    a(f"s_cbranch_execz {L}_A")
    a("global_atomic_add v2, v1, s[30:31] sc1")
    a.label(f"{L}_A")
    a("s_mov_b64 exec, s[16:17]")


def grid_wait(a, idx, target=256):
    L = f"GB{idx}"
    a("v_cmp_eq_u32 vcc, 0, v0")
    a(f"v_mov_b32 v2, {idx * 64}")
    a("s_nop 1")
    a("s_and_saveexec_b64 s[16:17], vcc")
    a(f"s_cbranch_execz {L}_W")
    a("s_mov_b32 s18, 0")
    a.label(f"{L}_P")
    a("global_load_dword v3, v2, s[30:31] sc1")
    a("s_waitcnt vmcnt(0)")
    a("v_readfirstlane_b32 s19, v3")
    a("s_add_u32 s18, s18, 1")
    a(f"s_cmp_ge_u32 s19, {target}")
    a(f"s_cbranch_scc1 {L}_W")
    a("s_sleep 2")
    a("s_cmp_lt_u32 s18, 0x400000")
    a(f"s_cbranch_scc1 {L}_P")
    a.label(f"{L}_W")
    a("s_mov_b64 exec, s[16:17]")
    a("s_barrier")


def grid_barrier(a, idx, target=256, drain=0):
    grid_arrive(a, idx)
    grid_wait(a, idx, target)


HEADER = open("cdna_kernels/" + NAME + ".s.ref").read().split("; @launch")[0]


def main_fused(out):
    a = Asm()
    name = NAME + "_kernel"
    a.raw(f".globl {name}")
    a.raw(".p2align 8")
    a.raw(f".type {name},@function")
    a.label(name)
    a("s_cmp_ge_u32 s2, 256")
    a("s_cbranch_scc1 K4_EXIT")
    a(f"s_load_dwordx2 s[4:5], s[0:1], {KA['ws']}")
    a(f"s_load_dwordx2 s[30:31], s[0:1], {KA['dbg']}")
    stamp_init(a)
    CUR_PHASE[0] = 1
    gen_k1(a)
    stamp_slot(a, 3)
    grid_barrier(a, 0)
    stamp_slot(a, 4)
    CUR_PHASE[0] = 2
    gen_k2(a)
    stamp_slot(a, 8)
    grid_barrier(a, 1)
    stamp_slot(a, 9)
    CUR_PHASE[0] = 3
    gen_k3(a)
    stamp_slot(a, 13)
    grid_barrier(a, 2)
    stamp_slot(a, 14)
    CUR_PHASE[0] = 4
    gen_k4(a)
    txt = HEADER
    txt += f"; @launch grid=(256,1,1) block=(256,1,1) lds={K2_LDS}\n"
    txt += '.amdgcn_target "amdgcn-amd-amdhsa--gfx950"\n.text\n'
    txt += a.text()
    txt += '.section .rodata,"a"\n.p2align 6\n'
    txt += descriptor(name, 256)
    open(out, "w").write(txt)


def main3(out):
    global FUSED
    global STAMP
    a = Asm()
    FUSED = True
    name = "k12_kernel"
    a.raw(f".globl {name}")
    a.raw(".p2align 8")
    a.raw(f".type {name},@function")
    a.label(name)
    a("s_cmp_ge_u32 s2, 256")
    a("s_cbranch_scc1 K2_EXIT")
    a(f"s_load_dwordx2 s[4:5], s[0:1], {KA['ws']}")
    a(f"s_load_dwordx2 s[30:31], s[0:1], {KA['dbg']}")
    stamp_init(a)
    CUR_PHASE[0] = 1
    gen_k1(a)
    stamp_slot(a, 3)
    CUR_PHASE[0] = 2
    gen_k2(a)
    stamp_slot(a, 8)
    stamp_flush(a, 0)
    a.label("K2_EXIT")
    a("s_endpgm")
    FUSED = False
    _st = STAMP
    STAMP = False
    gen_k3(a)
    gen_k4(a)
    STAMP = _st
    txt = HEADER
    txt += f"; @launch kernel=k12_kernel grid=(256,1,1) block=(256,1,1) lds={K2_LDS}\n"
    txt += "; @launch kernel=k3prj_kernel grid=(256,1,1) block=(256,1,1) lds=36864\n"
    txt += "; @launch kernel=k4fin_kernel grid=(16,1,1) block=(256,1,1) lds=4096\n"
    txt += '.amdgcn_target "amdgcn-amd-amdhsa--gfx950"\n.text\n'
    txt += a.text()
    txt += '.section .rodata,"a"\n.p2align 6\n'
    txt += descriptor("k12_kernel", 384).replace(".amdhsa_accum_offset 384", ".amdhsa_accum_offset 256")
    txt += descriptor("k3prj_kernel", 256)
    txt += descriptor("k4fin_kernel", 256)
    open(out, "w").write(txt)


def main(out):
    global FUSED, SCQ
    FUSED = False
    SCQ = ""
    a = Asm()
    CUR_PHASE[0] = 1
    gen_k1(a)
    CUR_PHASE[0] = 2
    gen_k2(a)
    CUR_PHASE[0] = 3
    gen_k3(a)
    CUR_PHASE[0] = 4
    gen_k4(a)
    txt = HEADER
    txt += "; @launch kernel=k1q_kernel grid=(192,1,1) block=(256,1,1) lds=20480\n"
    txt += f"; @launch kernel=k2att_kernel grid=(256,1,1) block=(256,1,1) lds={K2_LDS}\n"
    txt += "; @launch kernel=k3prj_kernel grid=(256,1,1) block=(256,1,1) lds=36864\n"
    txt += "; @launch kernel=k4fin_kernel grid=(16,1,1) block=(256,1,1) lds=4096\n"
    txt += '.amdgcn_target "amdgcn-amd-amdhsa--gfx950"\n.text\n'
    txt += a.text()
    txt += '.section .rodata,"a"\n.p2align 6\n'
    for k in ["k1q_kernel", "k2att_kernel", "k3prj_kernel", "k4fin_kernel"]:
        if k == "k2att_kernel":
            txt += descriptor(k, 384).replace(".amdhsa_accum_offset 384", ".amdhsa_accum_offset 256")
        else:
            txt += descriptor(k, 256)
    open(out, "w").write(txt)


if __name__ == "__main__":
    if len(sys.argv) > 2 and sys.argv[2] == "stamp":
        STAMP = True
    main(sys.argv[1] if len(sys.argv) > 1 else "cdna_kernels/" + NAME + ".s")
```

```python
import sys

NAME = "concat_heads__sliding_block_cached__compressed_kv_cla__decode"

WS_QA    = 0x0
WS_QABS  = 0x10000
WS_APART = 0x100000
WS_ASTAT = 0x200000
WS_BSTAT = 0x210000
WS_BPART = 0x400000
WS_OUTP  = 0x1000000

KA = dict(A_x=0, A_k=8, A_v=16, A_wq=24, A_wo=32, B_x=40, B_ckv=48, B_wq=56, B_wuk=64,
          B_wuv=72, B_wo=80, out=88, dbg=96, ws=104)

LOG2E = 0x3fb8aa3b
SCALE = 0x3db504f3
HIMASK = 0xffff0000
STG = 288


class Asm:
    def __init__(self):
        self.lines = []

    def __call__(self, s):
        for ln in s.split("\n"):
            self.lines.append("    " + ln.strip())

    def label(self, s):
        self.lines.append(s + ":")

    def raw(self, s):
        self.lines.append(s)

    def text(self):
        return "\n".join(self.lines) + "\n"


def vr(base, n=4):
    return f"v[{base}:{base + n - 1}]"


def ar_(base, n=4):
    return f"a[{base}:{base + n - 1}]"


def unpack8(a, src, dst):
    for p in range(4):
        a(f"v_lshlrev_b32 v{dst + 2 * p}, 16, v{src + p}")
        a(f"v_and_b32 v{dst + 2 * p + 1}, 0x{HIMASK:x}, v{src + p}")


def unpack1(a, src_reg, idx, dst):
    r = src_reg + (idx >> 1)
    if idx & 1:
        a(f"v_and_b32 v{dst}, 0x{HIMASK:x}, v{r}")
    else:
        a(f"v_lshlrev_b32 v{dst}, 16, v{r}")


def bf16_round_pair(a, x0, x1, tmp):
    a(f"v_cvt_pk_bf16_f32 v{tmp}, v{x0}, v{x1}")
    a(f"v_lshlrev_b32 v{x0}, 16, v{tmp}")
    a(f"v_and_b32 v{x1}, 0x{HIMASK:x}, v{tmp}")


def bperm_reduce(a, op, val, addr_regs, tmp):
    for ar in addr_regs:
        a(f"ds_bpermute_b32 v{tmp}, v{ar}, v{val}")
        a("s_waitcnt lgkmcnt(0)")
        a(f"{op} v{val}, v{val}, v{tmp}")


def dpp_allreduce64(a, op, v, sbase):
    for n in (1, 2, 4, 8):
        a("s_nop 1")
        a(f"{op}_dpp v{v}, v{v}, v{v} row_ror:{n} row_mask:0xf bank_mask:0xf")
    a("s_nop 1")
    for i in range(4):
        a(f"v_readlane_b32 s{sbase + i}, v{v}, {16 * i}")
    a("s_nop 1")
    a(f"v_mov_b32 v{v}, s{sbase}")
    for i in range(1, 4):
        a(f"{op} v{v}, s{sbase + i}, v{v}")


def make_xor_addrs(a, lane, masks, dst0):
    for i, m in enumerate(masks):
        a(f"v_xor_b32 v{dst0 + i}, {m}, v{lane}")
        a(f"v_lshlrev_b32 v{dst0 + i}, 2, v{dst0 + i}")


STAMP = False
FUSED = True
SC = ""
SCQ = " sc1"
WS_STAMP = 0x2000000


CUR_PHASE = [0]
PH_MAP = {1: {1: 1, 2: 2, 3: 3, 7: 7}, 2: {1: 1, 2: 2, 3: 3, 4: 4, 5: 5, 6: 6, 7: 7},
          3: {1: 1, 2: 2, 3: 3, 4: 4, 5: 5, 7: 7}, 4: {7: 7}}


def stamp_init(a):
    if STAMP:
        for r in range(64, 96):
            a(f"s_mov_b32 s{r}, 0")
        stamp_slot(a, 0)


def stamp_slot(a, k):
    if STAMP:
        a(f"s_memrealtime s[{64 + 2 * k}:{65 + 2 * k}]")


def stamp(a, k):
    if STAMP:
        m = PH_MAP.get(CUR_PHASE[0], {})
        if k in m:
            stamp_slot(a, m[k])


def stamp_flush(a, kidx):
    if not STAMP:
        return
    a("s_waitcnt vmcnt(0) lgkmcnt(0)")
    a("v_lshrrev_b32 v1, 6, v0")
    a("s_nop 1")
    a("v_readfirstlane_b32 s32, v1")
    a(f"s_lshl_b32 s33, s2, 9")
    a("s_lshl_b32 s32, s32, 7")
    a("s_add_u32 s33, s33, s32")
    a(f"s_add_u32 s33, s33, 0x{WS_STAMP + kidx * 131072:x}")
    a("v_mov_b32 v2, s33")
    for k in range(32):
        a(f"v_mov_b32 v{4 + k}, s{64 + k}")
    a("s_mov_b64 s[34:35], exec")
    a("s_mov_b64 exec, 1")
    a("s_nop 3")
    for k in range(8):
        a(f"global_store_dwordx4 v2, {vr(4 + 4 * k)}, s[4:5] offset:{16 * k}")
    a("s_mov_b64 exec, s[34:35]")


def kernel_header(a, name):
    if FUSED:
        return
    a.raw(f".globl {name}")
    a.raw(".p2align 8")
    a.raw(f".type {name},@function")
    a.label(name)


def descriptor(name, vgpr, sgpr=96):
    acc = (vgpr + 3) // 4 * 4
    return f""".amdhsa_kernel {name}
  .amdhsa_next_free_vgpr {vgpr}
  .amdhsa_next_free_sgpr {sgpr}
  .amdhsa_accum_offset {acc}
  .amdhsa_group_segment_fixed_size 0
  .amdhsa_kernarg_size 112
  .amdhsa_user_sgpr_count 2
  .amdhsa_user_sgpr_kernarg_segment_ptr 1
  .amdhsa_system_sgpr_workgroup_id_x 1
.end_amdhsa_kernel
"""


def gen_k1(a):
    kernel_header(a, "k1q_kernel")
    if FUSED:
        a("s_cmp_ge_u32 s2, 192")
        a("s_cbranch_scc1 K1_END")
    else:
        a("s_cmp_ge_u32 s2, 192")
        a("s_cbranch_scc1 K1_EXIT")
        stamp_init(a)
        a(f"s_load_dwordx2 s[4:5], s[0:1], {KA['ws']}")
    a("s_cmp_ge_u32 s2, 128")
    a("s_cbranch_scc1 K1_A")
    a(f"s_load_dwordx2 s[6:7], s[0:1], {KA['B_x']}")
    a(f"s_load_dwordx2 s[8:9], s[0:1], {KA['B_wq']}")
    a(f"s_load_dwordx2 s[10:11], s[0:1], {KA['B_wuk']}")
    a("s_and_b32 s12, s2, 31")
    a("s_lshr_b32 s13, s2, 5")
    a("s_lshl_b32 s14, s12, 8")
    a("v_lshrrev_b32 v1, 4, v0")
    a("v_and_b32 v2, 15, v0")
    a("v_lshlrev_b32 v3, 18, v1")
    a("v_lshlrev_b32 v4, 4, v2")
    a("v_add3_u32 v3, v3, v4, s14")
    a("v_lshlrev_b32 v5, 6, v1")
    a("v_and_b32 v6, 63, v0")
    a("v_lshrrev_b32 v7, 6, v0")
    a("v_and_b32 v8, 15, v6")
    a("v_lshrrev_b32 v9, 4, v6")
    a("s_lshl_b32 s15, s13, 7")
    a("v_lshlrev_b32 v10, 5, v7")
    a("v_add3_u32 v10, v10, v8, s15")
    a("v_lshlrev_b32 v10, 13, v10")
    a("v_lshlrev_b32 v11, 4, v9")
    a("v_add3_u32 v10, v10, v11, s14")
    a("v_add_u32 v11, 0x20000, v10")
    a("s_waitcnt lgkmcnt(0)")
    XB = [192, 208]
    for b in range(2):
        for k in range(4):
            a(f"global_load_dwordx4 {vr(XB[b] + 4 * k)}, v5, s[6:7] offset:{b * 1024 + k * 16}")
    W0 = 64
    for i in range(32):
        a(f"global_load_dwordx4 {vr(W0 + 4 * i)}, v3, s[8:9]")
        a("v_add_u32 v3, 0x2000, v3")
    UK = 224
    for mt in range(2):
        for t in range(4):
            a(f"global_load_dwordx4 {vr(UK + (mt * 4 + t) * 4)}, v{10 + mt}, s[10:11] offset:{t * 64}")
    stamp(a, 1)
    for r in range(16, 32):
        a(f"v_mov_b32 v{r}, 0")
    for i in range(32):
        a(f"s_waitcnt vmcnt({39 - i})")
        unpack8(a, W0 + 4 * i, 32)
        unpack1(a, XB[0], i, 40)
        unpack1(a, XB[1], i, 41)
        for e in range(8):
            a(f"v_fmac_f32 v{16 + e}, v{32 + e}, v40")
            a(f"v_fmac_f32 v{24 + e}, v{32 + e}, v41")
    stamp(a, 2)
    a("v_lshlrev_b32 v12, 10, v1")
    a("v_lshlrev_b32 v13, 5, v2")
    a("v_add_u32 v12, v12, v13")
    a(f"ds_write_b128 v12, {vr(16)}")
    a(f"ds_write_b128 v12, {vr(20)} offset:16")
    a(f"ds_write_b128 v12, {vr(24)} offset:512")
    a(f"ds_write_b128 v12, {vr(28)} offset:528")
    a("s_waitcnt lgkmcnt(0)")
    a("s_barrier")
    a("v_lshlrev_b32 v12, 2, v0")
    for rg in range(16):
        a(f"ds_read_b32 v{32 + rg}, v12 offset:{rg * 1024}")
    a("s_waitcnt lgkmcnt(0)")
    for rg in range(1, 16):
        a(f"v_add_f32 v32, v32, v{32 + rg}")
    a("v_cvt_pk_bf16_f32 v33, v32, v32")
    a("v_lshlrev_b32 v13, 1, v0")
    a("ds_write_b16 v13, v33 offset:16384")
    QF = 64
    for r in range(QF, QF + 16):
        a(f"v_mov_b32 v{r}, 0")
    a("s_waitcnt lgkmcnt(0)")
    a("s_barrier")
    stamp(a, 3)
    a("v_cmp_gt_u32 vcc, 2, v8")
    a("v_lshlrev_b32 v12, 8, v8")
    a("v_lshlrev_b32 v13, 4, v9")
    a("v_add_u32 v12, v12, v13")
    a("s_nop 1")
    a("s_and_saveexec_b64 s[16:17], vcc")
    for t in range(4):
        a(f"ds_read_b128 {vr(QF + 4 * t)}, v12 offset:{16384 + t * 64}")
    a("s_mov_b64 exec, s[16:17]")
    a("s_waitcnt vmcnt(0) lgkmcnt(0)")
    D0 = 96
    for mt in range(2):
        for t in range(4):
            c = "0" if t == 0 else vr(D0 + 4 * mt)
            a(f"v_mfma_f32_16x16x32_bf16 {vr(D0 + 4 * mt)}, {vr(UK + (mt * 4 + t) * 4)}, {vr(QF + 4 * t)}, {c}")
    a("s_nop 7")
    a("s_nop 7")
    for mt in range(2):
        a(f"v_cvt_pk_bf16_f32 v{104 + 2 * mt}, v{D0 + 4 * mt}, v{D0 + 4 * mt + 1}")
        a(f"v_cvt_pk_bf16_f32 v{105 + 2 * mt}, v{D0 + 4 * mt + 2}, v{D0 + 4 * mt + 3}")
    a("v_lshlrev_b32 v12, 15, v8")
    a("v_lshlrev_b32 v13, 6, v7")
    a("v_lshlrev_b32 v14, 3, v9")
    a("v_add3_u32 v12, v12, v13, v14")
    a("s_lshl_b32 s18, s12, 10")
    a("s_lshl_b32 s19, s13, 8")
    a("s_add_u32 s18, s18, s19")
    a(f"s_add_u32 s18, s18, 0x{WS_QABS:x}")
    a("v_add_u32 v12, s18, v12")
    a("s_and_saveexec_b64 s[16:17], vcc")
    a("global_store_dwordx2 v12, v[104:105], s[4:5]" + SCQ)
    a("global_store_dwordx2 v12, v[106:107], s[4:5] offset:32" + SCQ)
    a("s_mov_b64 exec, s[16:17]")
    a("s_branch K1_END")
    a.label("K1_A")
    a(f"s_load_dwordx2 s[6:7], s[0:1], {KA['A_x']}")
    a(f"s_load_dwordx2 s[8:9], s[0:1], {KA['A_wq']}")
    a("s_sub_u32 s12, s2, 128")
    a("s_lshl_b32 s14, s12, 7")
    a("v_lshrrev_b32 v1, 3, v0")
    a("v_and_b32 v2, 7, v0")
    a("v_lshlrev_b32 v3, 17, v1")
    a("v_lshlrev_b32 v4, 4, v2")
    a("v_add3_u32 v3, v3, v4, s14")
    a("v_lshlrev_b32 v5, 5, v1")
    a("s_waitcnt lgkmcnt(0)")
    XA = [160, 168]
    for b in range(2):
        for k in range(2):
            a(f"global_load_dwordx4 {vr(XA[b] + 4 * k)}, v5, s[6:7] offset:{b * 1024 + k * 16}")
    for i in range(16):
        a(f"global_load_dwordx4 {vr(W0 + 4 * i)}, v3, s[8:9]")
        a("v_add_u32 v3, 0x2000, v3")
    for r in range(16, 32):
        a(f"v_mov_b32 v{r}, 0")
    for i in range(16):
        a(f"s_waitcnt vmcnt({15 - i})")
        unpack8(a, W0 + 4 * i, 32)
        unpack1(a, XA[0], i, 40)
        unpack1(a, XA[1], i, 41)
        for e in range(8):
            a(f"v_fmac_f32 v{16 + e}, v{32 + e}, v40")
            a(f"v_fmac_f32 v{24 + e}, v{32 + e}, v41")
    a("v_lshlrev_b32 v12, 9, v1")
    a("v_lshlrev_b32 v13, 5, v2")
    a("v_add_u32 v12, v12, v13")
    a(f"ds_write_b128 v12, {vr(16)}")
    a(f"ds_write_b128 v12, {vr(20)} offset:16")
    a(f"ds_write_b128 v12, {vr(24)} offset:256")
    a(f"ds_write_b128 v12, {vr(28)} offset:272")
    a("s_waitcnt lgkmcnt(0)")
    a("s_barrier")
    a("v_cmp_gt_u32 vcc, 128, v0")
    a("v_lshlrev_b32 v12, 2, v0")
    a("s_nop 1")
    a("s_and_saveexec_b64 s[16:17], vcc")
    a("s_cbranch_execz K1_A_SKIP")
    for rg in range(32):
        a(f"ds_read_b32 v{64 + rg}, v12 offset:{rg * 512}")
    a("s_waitcnt lgkmcnt(0)")
    for rg in range(1, 32):
        a(f"v_add_f32 v64, v64, v{64 + rg}")
    a("v_cvt_pk_bf16_f32 v65, v64, v64")
    a("v_lshrrev_b32 v13, 6, v0")
    a("v_lshlrev_b32 v13, 13, v13")
    a("v_and_b32 v14, 63, v0")
    a("v_lshlrev_b32 v14, 1, v14")
    a("v_add3_u32 v13, v13, v14, s14")
    a(f"global_store_short v13, v65, s[4:5] offset:{WS_QA}{SCQ}")
    a.label("K1_A_SKIP")
    a("s_mov_b64 exec, s[16:17]")
    a.label("K1_END")
    if FUSED:
        return
    stamp(a, 7)
    stamp_flush(a, 0)
    a.label("K1_EXIT")
    a("s_endpgm")


L_PB = 0
L_MX = L_PB + 8192
L_LB = L_MX + 2048
L_STG = L_LB + 2048
L_SX = L_STG + 4 * 9216
K2_LDS = L_SX + 65536


def score_round16(a, regs, tmp):
    for i in range(0, len(regs), 2):
        x0, x1 = regs[i], regs[i + 1]
        bf16_round_pair(a, x0, x1, tmp)
        a(f"v_mul_f32 v{x0}, s20, v{x0}")
        a(f"v_mul_f32 v{x1}, s20, v{x1}")
        bf16_round_pair(a, x0, x1, tmp)


def exp_inplace(a, regs, mreg, tmp):
    for r in regs:
        a(f"v_sub_f32 v{r}, v{r}, v{mreg}")
        a(f"v_mul_f32 v{r}, s21, v{r}")
        a(f"v_exp_f32 v{r}, v{r}")
    a("s_nop 1")


def gen_k2_a_pre(a):
    a.label("K2_APRE")
    a(f"s_load_dwordx2 s[6:7], s[0:1], {KA['A_k']}")
    a(f"s_load_dwordx2 s[8:9], s[0:1], {KA['A_v']}")
    a("s_sub_u32 s23, s2, 128")
    a("s_lshr_b32 s24, s23, 3")
    a("s_and_b32 s25, s23, 7")
    a("s_waitcnt lgkmcnt(0)")
    a("s_lshl_b32 s26, s24, 21")
    a("s_lshl_b32 s27, s25, 16")
    a("s_add_u32 s26, s26, s27")
    a("s_lshl_b32 s27, s22, 14")
    a("s_add_u32 s26, s26, s27")
    a(f"s_add_u32 s26, s26, {6144 * 256}")
    a("s_add_u32 s6, s6, s26")
    a("s_addc_u32 s7, s7, 0")
    a("s_add_u32 s8, s8, s26")
    a("s_addc_u32 s9, s9, 0")
    a("v_lshlrev_b32 v10, 8, v8")
    a("v_lshlrev_b32 v11, 4, v9")
    a("v_add_u32 v10, v10, v11")
    a("v_mov_b32 v13, v10")
    a("v_mov_b32 v12, v10")
    for mt in range(4):
        for t in range(4):
            a(f"global_load_dwordx4 {ar_((mt * 4 + t) * 4)}, v12, s[6:7] offset:{t * 64}")
        if mt < 3:
            a("v_add_u32 v12, 0x1000, v12")
    a("v_lshlrev_b32 v12, 4, v6")
    for i in range(16):
        if i and i % 4 == 0:
            a("v_add_u32 v12, 0x1000, v12")
        a(f"global_load_dwordx4 {ar_(64 + 4 * i)}, v12, s[8:9] offset:{(i % 4) * 1024}")


def gen_k2(a):
    kernel_header(a, "k2att_kernel")
    if not FUSED:
        a("s_cmp_ge_u32 s2, 256")
        a("s_cbranch_scc1 K2_EXIT")
        stamp_init(a)
        a(f"s_load_dwordx2 s[4:5], s[0:1], {KA['ws']}")
    if FUSED:
        grid_arrive(a, 0)
    a(f"s_mov_b32 s20, 0x{SCALE:x}")
    a(f"s_mov_b32 s21, 0x{LOG2E:x}")
    a("v_and_b32 v6, 63, v0")
    a("v_lshrrev_b32 v7, 6, v0")
    a("s_nop 0")
    a("v_readfirstlane_b32 s22, v7")
    a("v_and_b32 v8, 15, v6")
    a("v_lshrrev_b32 v9, 4, v6")
    a("s_cmp_ge_u32 s2, 128")
    a("s_cbranch_scc1 K2_APRE")
    a(f"s_load_dwordx2 s[6:7], s[0:1], {KA['B_ckv']}")
    a("s_lshr_b32 s23, s2, 6")
    a("s_and_b32 s24, s2, 63")
    a("s_waitcnt lgkmcnt(0)")
    a("s_lshl_b32 s25, s2, 17")
    a("s_lshl_b32 s26, s22, 8")
    a("s_add_u32 s25, s25, s26")
    a("s_add_u32 s6, s6, s25")
    a("s_addc_u32 s7, s7, 0")
    a("s_lshl_b32 s25, s23, 15")
    a("s_lshl_b32 s26, s22, 8")
    a("s_add_u32 s25, s25, s26")
    a(f"s_add_u32 s25, s25, 0x{WS_QABS:x}")
    a("v_lshlrev_b32 v10, 10, v8")
    a("v_lshlrev_b32 v11, 4, v9")
    a("v_add_u32 v10, v10, v11")
    a("v_add_u32 v11, s25, v10")
    a("v_add_u32 v12, 0x4000, v11")
    QB = 128 + 64
    DB = 64
    if not FUSED:
        for nt in range(2):
            for t in range(4):
                a(f"global_load_dwordx4 {vr(QB + (nt * 4 + t) * 4)}, v{11 + nt}, s[4:5] offset:{t * 64}")
    a("v_mov_b32 v13, v10")

    def ld_blk(kb):
        for mt in (2 * kb, 2 * kb + 1):
            for t in range(4):
                a(f"global_load_dwordx4 {ar_(0 + (mt * 4 + t) * 4)}, v13, s[6:7] offset:{t * 64}")
            if mt < 7:
                a("v_add_u32 v13, 0x4000, v13")
    for kb in range(4 if FUSED else 2):
        ld_blk(kb)
    a("s_branch K2_BAR")
    gen_k2_a_pre(a)
    a.label("K2_BAR")
    if FUSED:
        grid_wait(a, 0)
    stamp(a, 0)
    a("s_cmp_ge_u32 s2, 128")
    a("s_cbranch_scc1 K2_A")
    if FUSED:
        for nt in range(2):
            for t in range(4):
                a(f"global_load_dwordx4 {vr(QB + (nt * 4 + t) * 4)}, v{11 + nt}, s[4:5] offset:{t * 64}{SCQ}")
    stamp(a, 1)
    SREG = {}
    idx = 0
    pool = list(range(224, 256, 4)) + list(range(32, 64, 4))
    for mt in range(8):
        for nt in range(2):
            SREG[(mt, nt)] = pool[idx]
            idx += 1
    a(f"s_mul_i32 s26, s22, 9216")
    a(f"s_add_u32 s26, s26, {L_STG}")
    a(f"v_mul_u32_u24 v14, {STG}, v8")
    a("v_lshlrev_b32 v15, 4, v9")
    a("v_add3_u32 v14, v14, v15, s26")
    a("v_lshrrev_b32 v15, 2, v8")
    a("v_lshl_add_u32 v15, v9, 2, v15")
    a(f"v_mul_u32_u24 v15, {STG}, v15")
    a("v_and_b32 v16, 3, v6")
    a("v_lshlrev_b32 v16, 3, v16")
    a("v_add3_u32 v15, v15, v16, s26")
    for kb in range(4):
        a(f"s_waitcnt vmcnt({0 if (FUSED or kb == 3) else 8})")
        if kb == 0:
            stamp(a, 2)
        for t in range(4):
            for mt2 in range(2):
                mt = 2 * kb + mt2
                for nt in range(2):
                    s = SREG[(mt, nt)]
                    c = "0" if t == 0 else vr(s)
                    a(f"v_mfma_f32_16x16x32_bf16 {vr(s)}, {ar_((mt * 4 + t) * 4)}, {vr(QB + (nt * 4 + t) * 4)}, {c}")
        if not FUSED and kb < 2:
            ld_blk(kb + 2)
        for mt2 in range(2):
            mt = 2 * kb + mt2
            for t in range(4):
                a(f"ds_write_b128 v14, {ar_((mt * 4 + t) * 4)} offset:{mt2 * 16 * STG + t * 64}")
        a("s_waitcnt lgkmcnt(0)")
        for ct in range(8):
            for hf in range(2):
                a(f"ds_read_b64_tr_b16 {vr(DB + kb * 32 + ct * 4 + hf * 2, 2)}, v15 offset:{hf * 16 * STG + ct * 32}")
        a("s_waitcnt lgkmcnt(0)")
    stamp(a, 3)
    a("s_lshl_b32 s26, s22, 14")
    a(f"s_add_u32 s26, s26, {L_SX}")
    a("v_lshlrev_b32 v16, 4, v6")
    a("v_add_u32 v17, s26, v16")
    for mt in range(8):
        for nt in range(2):
            a(f"ds_write_b128 v17, {vr(SREG[(mt, nt)])} offset:{(mt * 2 + nt) * 1024}")
    a("s_waitcnt lgkmcnt(0)")
    a("s_barrier")
    stamp(a, 4)
    a("s_lshl_b32 s26, s22, 12")
    a(f"s_add_u32 s26, s26, {L_SX}")
    a("v_add_u32 v17, s26, v16")
    T0 = 224
    tq = pool
    for w2 in range(4):
        for mt2 in range(2):
            for nt in range(2):
                a(f"ds_read_b128 {vr(tq[w2 * 4 + mt2 * 2 + nt])}, v17 offset:{w2 * 16384 + (mt2 * 2 + nt) * 1024}")
    a("s_waitcnt lgkmcnt(0)")
    for k in range(4):
        for r in range(4):
            for w2 in range(1, 4):
                a(f"v_add_f32 v{tq[k] + r}, v{tq[k] + r}, v{tq[w2 * 4 + k] + r}")
    allS = [tq[k] + r for k in range(4) for r in range(4)]
    score_round16(a, allS, 18)
    for nt in range(2):
        rs = [tq[nt] + r for r in range(4)] + [tq[2 + nt] + r for r in range(4)]
        a(f"v_max3_f32 v{20 + nt}, v{rs[0]}, v{rs[1]}, v{rs[2]}")
        a(f"v_max3_f32 v{20 + nt}, v{20 + nt}, v{rs[3]}, v{rs[4]}")
        a(f"v_max3_f32 v{20 + nt}, v{20 + nt}, v{rs[5]}, v{rs[6]}")
        a(f"v_max_f32 v{20 + nt}, v{20 + nt}, v{rs[7]}")
    a("v_lshlrev_b32 v18, 6, v8")
    a("v_lshlrev_b32 v19, 2, v9")
    a("s_lshl_b32 s26, s22, 4")
    a("v_add3_u32 v19, v18, v19, s26")
    a(f"ds_write_b32 v19, v20 offset:{L_MX}")
    a(f"ds_write_b32 v19, v21 offset:{L_MX + 1024}")
    a("s_waitcnt lgkmcnt(0)")
    a("s_barrier")
    for nt in range(2):
        for k in range(4):
            a(f"ds_read_b128 {vr(tq[4 + nt * 4 + k])}, v18 offset:{L_MX + nt * 1024 + k * 16}")
    a("s_waitcnt lgkmcnt(0)")
    for nt in range(2):
        rs = [tq[4 + nt * 4 + k] + r for k in range(4) for r in range(4)]
        a(f"v_max3_f32 v{20 + nt}, v{rs[0]}, v{rs[1]}, v{rs[2]}")
        for i in range(3, 15, 2):
            a(f"v_max3_f32 v{20 + nt}, v{20 + nt}, v{rs[i]}, v{rs[i + 1]}")
        a(f"v_max_f32 v{20 + nt}, v{20 + nt}, v{rs[15]}")
    for nt in range(2):
        rs = [tq[nt] + r for r in range(4)] + [tq[2 + nt] + r for r in range(4)]
        exp_inplace(a, rs, 20 + nt, 0)
        a(f"v_add_f32 v{22 + nt}, v{rs[0]}, v{rs[1]}")
        for r in rs[2:]:
            a(f"v_add_f32 v{22 + nt}, v{22 + nt}, v{r}")
    a(f"ds_write_b32 v19, v22 offset:{L_LB}")
    a(f"ds_write_b32 v19, v23 offset:{L_LB + 1024}")
    for nt in range(2):
        for mt2 in range(2):
            s = tq[mt2 * 2 + nt]
            a(f"v_cvt_pk_bf16_f32 v{24 + nt * 4 + mt2 * 2}, v{s}, v{s + 1}")
            a(f"v_cvt_pk_bf16_f32 v{25 + nt * 4 + mt2 * 2}, v{s + 2}, v{s + 3}")
    a("s_lshl_b32 s26, s22, 11")
    a("v_add_u32 v17, s26, v16")
    a(f"ds_write_b128 v17, {vr(24)} offset:{L_PB}")
    a(f"ds_write_b128 v17, {vr(28)} offset:{L_PB + 1024}")
    a("s_waitcnt lgkmcnt(0)")
    a("s_barrier")
    stamp(a, 5)
    PF = 192
    for kb in range(4):
        for nt in range(2):
            a(f"ds_read_b128 {vr(PF + (kb * 2 + nt) * 4)}, v16 offset:{L_PB + (kb * 2 + nt) * 1024}")
    a("s_cmp_lg_u32 s22, 0")
    a("s_cbranch_scc1 K2B_NOSTAT")
    a("v_cmp_gt_u32 vcc, 16, v6")
    a("s_nop 1")
    a("s_and_saveexec_b64 s[16:17], vcc")
    for nt in range(2):
        for k in range(4):
            a(f"ds_read_b128 {vr(tq[nt * 4 + k])}, v18 offset:{L_LB + nt * 1024 + k * 16}")
    a("s_waitcnt lgkmcnt(0)")
    for nt in range(2):
        rs = [tq[nt * 4 + k] + r for k in range(4) for r in range(4)]
        for r in rs[1:]:
            a(f"v_add_f32 v{rs[0]}, v{rs[0]}, v{r}")
    a(f"v_mov_b32 v26, v20")
    a(f"v_mov_b32 v27, v{tq[0]}")
    a(f"v_mov_b32 v28, v21")
    a(f"v_mov_b32 v29, v{tq[4]}")
    a("s_lshl_b32 s26, s2, 8")
    a(f"s_add_u32 s26, s26, 0x{WS_BSTAT:x}")
    a("v_lshlrev_b32 v30, 3, v8")
    a("v_add_u32 v30, s26, v30")
    a("global_store_dwordx2 v30, v[26:27], s[4:5]" + SC)
    a("global_store_dwordx2 v30, v[28:29], s[4:5] offset:128" + SC)
    a("s_mov_b64 exec, s[16:17]")
    a.label("K2B_NOSTAT")
    a("s_waitcnt lgkmcnt(0)")
    a("s_lshl_b32 s26, s2, 15")
    a("s_lshl_b32 s27, s22, 8")
    a("s_add_u32 s26, s26, s27")
    a(f"s_add_u32 s26, s26, 0x{WS_BPART:x}")
    a("s_add_u32 s28, s4, s26")
    a("s_addc_u32 s29, s5, 0")
    a("v_lshlrev_b32 v17, 10, v8")
    a("v_lshlrev_b32 v18, 3, v9")
    a("v_add_u32 v17, v17, v18")
    a("v_add_u32 v18, 0x4000, v17")
    a("s_nop 1")
    stamp(a, 6)

    def st_tile(ct):
        for nt in range(2):
            o = pool[ct * 2 + nt]
            t0 = 24 + ((ct * 2 + nt) % 4) * 2
            a(f"v_cvt_pk_bf16_f32 v{t0}, v{o}, v{o + 1}")
            a(f"v_cvt_pk_bf16_f32 v{t0 + 1}, v{o + 2}, v{o + 3}")
            a(f"global_store_dwordx2 v{17 + nt}, v[{t0}:{t0 + 1}], s[28:29] offset:{ct * 32}{SC}")
    for ct in range(8):
        for kb in range(4):
            for nt in range(2):
                o = pool[ct * 2 + nt]
                c = "0" if kb == 0 else vr(o)
                a(f"v_mfma_f32_16x16x32_bf16 {vr(o)}, {vr(DB + kb * 32 + ct * 4)}, {vr(PF + (kb * 2 + nt) * 4)}, {c}")
        if ct >= 1:
            st_tile(ct - 1)
    a("s_nop 7")
    a("s_nop 7")
    st_tile(7)
    a("s_branch K2_END")
    a.label("K2_A")
    KB_ = 64
    QF = 16
    for r in range(QF, QF + 16):
        a(f"v_mov_b32 v{r}, 0")
    a("s_lshl_b32 s26, s24, 10")
    a("v_lshlrev_b32 v10, 8, v8")
    a("v_lshlrev_b32 v11, 4, v9")
    a("v_add_u32 v10, v10, v11")
    a("v_add_u32 v11, s26, v10")
    a("v_cmp_gt_u32 vcc, 4, v8")
    a("s_nop 1")
    a("s_and_saveexec_b64 s[16:17], vcc")
    for t in range(4):
        a(f"global_load_dwordx4 {vr(QF + 4 * t)}, v11, s[4:5] offset:{WS_QA + t * 64}{SCQ}")
    a("s_mov_b64 exec, s[16:17]")
    stamp(a, 1)
    a(f"s_mul_i32 s26, s22, {64 * STG}")
    a(f"s_add_u32 s26, s26, {L_STG}")
    a(f"v_mul_u32_u24 v14, {STG}, v9")
    a("v_lshlrev_b32 v15, 4, v8")
    a("v_add3_u32 v14, v14, v15, s26")
    a("v_lshrrev_b32 v15, 2, v8")
    a("v_lshl_add_u32 v15, v9, 2, v15")
    a(f"v_mul_u32_u24 v15, {STG}, v15")
    a("v_and_b32 v13, 3, v6")
    a("v_lshlrev_b32 v13, 3, v13")
    a("v_add3_u32 v15, v15, v13, s26")
    SAq = [32, 36, 40, 44]
    a("s_waitcnt vmcnt(0)")
    stamp(a, 2)
    for t in range(4):
        for mt in range(4):
            c = "0" if t == 0 else vr(SAq[mt])
            a(f"v_mfma_f32_16x16x32_bf16 {vr(SAq[mt])}, {ar_((mt * 4 + t) * 4)}, {vr(QF + 4 * t)}, {c}")
    a("s_waitcnt vmcnt(0)")
    stamp(a, 3)
    for i in range(16):
        a(f"ds_write_b128 v14, {ar_(64 + 4 * i)} offset:{i * 4 * STG}")
    a("s_nop 7")
    allS = [SAq[mt] + r for mt in range(4) for r in range(4)]
    score_round16(a, allS, 18)
    a(f"v_max3_f32 v20, v{allS[0]}, v{allS[1]}, v{allS[2]}")
    for i in range(3, 15, 2):
        a(f"v_max3_f32 v20, v20, v{allS[i]}, v{allS[i + 1]}")
    a(f"v_max_f32 v20, v20, v{allS[15]}")
    make_xor_addrs(a, 6, [16, 32], 21)
    a("s_waitcnt lgkmcnt(0)")
    bperm_reduce(a, "v_max_f32", 20, [21, 22], 23)
    exp_inplace(a, allS, 20, 0)
    a(f"v_add_f32 v24, v{allS[0]}, v{allS[1]}")
    for r in allS[2:]:
        a(f"v_add_f32 v24, v24, v{r}")
    bperm_reduce(a, "v_add_f32", 24, [21, 22], 23)
    for kb in range(2):
        for mt2 in range(2):
            s = SAq[2 * kb + mt2]
            a(f"v_cvt_pk_bf16_f32 v{48 + kb * 4 + mt2 * 2}, v{s}, v{s + 1}")
            a(f"v_cvt_pk_bf16_f32 v{49 + kb * 4 + mt2 * 2}, v{s + 2}, v{s + 3}")
    for kb in range(2):
        for ct in range(8):
            for hf in range(2):
                a(f"ds_read_b64_tr_b16 {vr(KB_ + (kb * 8 + ct) * 4 + hf * 2, 2)}, v15 offset:{(kb * 32 + hf * 16) * STG + ct * 32}")
    a("s_waitcnt lgkmcnt(0)")
    OA = 192
    for kb in range(2):
        for ct in range(8):
            c = "0" if kb == 0 else vr(OA + 4 * ct)
            a(f"v_mfma_f32_16x16x32_bf16 {vr(OA + 4 * ct)}, {vr(KB_ + (kb * 8 + ct) * 4)}, {vr(48 + kb * 4)}, {c}")
    stamp(a, 6)
    a("s_lshl_b32 s26, s24, 5")
    a("s_lshl_b32 s27, s25, 2")
    a("s_add_u32 s26, s26, s27")
    a("s_add_u32 s26, s26, s22")
    a("s_lshl_b32 s27, s26, 11")
    a(f"s_add_u32 s27, s27, 0x{WS_APART:x}")
    a("v_lshlrev_b32 v17, 9, v8")
    a("v_lshlrev_b32 v18, 4, v9")
    a("v_add3_u32 v17, v17, v18, s27")
    a("s_lshl_b32 s28, s26, 5")
    a(f"s_add_u32 s28, s28, 0x{WS_ASTAT:x}")
    a("v_lshlrev_b32 v18, 3, v8")
    a("v_add_u32 v18, s28, v18")
    a("v_mov_b32 v26, v20")
    a("v_mov_b32 v27, v24")
    a("v_cmp_gt_u32 vcc, 4, v8")
    a("v_cmp_gt_u32 s[18:19], 4, v6")
    a("s_nop 7")
    a("s_nop 7")
    a("s_and_saveexec_b64 s[16:17], vcc")
    for ct in range(8):
        a(f"global_store_dwordx4 v17, {vr(OA + 4 * ct)}, s[4:5] offset:{ct * 64}{SC}")
    a("s_mov_b64 exec, s[18:19]")
    a("global_store_dwordx2 v18, v[26:27], s[4:5]" + SC)
    a("s_mov_b64 exec, s[16:17]")
    a.label("K2_END")
    if FUSED:
        return
    stamp(a, 7)
    stamp_flush(a, 1)
    a.label("K2_EXIT")
    a("s_endpgm")


def fma16(a, wsrc, m0, m1, acc, tmp):
    unpack8(a, wsrc, tmp)
    for e in range(8):
        a(f"v_fmac_f32 v{acc + e}, v{tmp + e}, v{m0}")
        a(f"v_fmac_f32 v{acc + 8 + e}, v{tmp + e}, v{m1}")


def final_out_reduce(a, task_sreg, acc):
    a("v_lshlrev_b32 v12, 12, v7")
    a("v_lshlrev_b32 v13, 5, v6")
    a("v_add_u32 v12, v12, v13")
    a(f"ds_write_b128 v12, {vr(acc)}")
    a(f"ds_write_b128 v12, {vr(acc + 4)} offset:16")
    a(f"ds_write_b128 v12, {vr(acc + 8)} offset:2048")
    a(f"ds_write_b128 v12, {vr(acc + 12)} offset:2064")
    a("s_waitcnt lgkmcnt(0)")
    a("s_barrier")
    a("v_lshlrev_b32 v12, 4, v0")
    for w2 in range(4):
        a(f"ds_read_b128 {vr(32 + 4 * w2)}, v12 offset:{w2 * 4096}")
    a("s_waitcnt lgkmcnt(0)")
    for r in range(4):
        for w2 in range(1, 4):
            a(f"v_add_f32 v{32 + r}, v{32 + r}, v{32 + 4 * w2 + r}")
    a(f"s_lshl_b32 s26, s{task_sreg}, 12")
    a(f"s_add_u32 s26, s26, 0x{WS_OUTP:x}")
    a("v_add_u32 v12, s26, v12")
    a(f"global_store_dwordx4 v12, {vr(32)}, s[4:5]{SC}")


def gen_k3(a):
    kernel_header(a, "k3prj_kernel")
    if not FUSED:
        a("s_cmp_ge_u32 s2, 256")
        a("s_cbranch_scc1 K3_EXIT")
        stamp_init(a)
        a(f"s_load_dwordx2 s[4:5], s[0:1], {KA['ws']}")
    a(f"s_mov_b32 s21, 0x{LOG2E:x}")
    a("v_and_b32 v6, 63, v0")
    a("v_lshrrev_b32 v7, 6, v0")
    a("s_cmp_ge_u32 s2, 128")
    a("s_cbranch_scc1 K3_A")
    a(f"s_load_dwordx2 s[6:7], s[0:1], {KA['B_wuv']}")
    a(f"s_load_dwordx2 s[8:9], s[0:1], {KA['B_wo']}")
    a("s_and_b32 s12, s2, 31")
    a("s_lshr_b32 s13, s2, 5")
    a("v_lshrrev_b32 v1, 4, v0")
    a("v_and_b32 v2, 15, v0")
    a("s_lshl_b32 s14, s12, 3")
    a(f"s_add_u32 s14, s14, 0x{WS_BSTAT:x}")
    a("v_lshlrev_b32 v3, 8, v0")
    a("v_add_u32 v3, s14, v3")
    a("v_cmp_gt_u32 vcc, 128, v0")
    a("s_waitcnt lgkmcnt(0)")
    a("s_and_saveexec_b64 s[16:17], vcc")
    a("global_load_dwordx2 v[4:5], v3, s[4:5]" + SC)
    a("s_mov_b64 exec, s[16:17]")
    a("v_lshrrev_b32 v3, 5, v0")
    a("v_lshlrev_b32 v3, 19, v3")
    a("v_and_b32 v8, 31, v0")
    a("v_lshlrev_b32 v8, 3, v8")
    a("s_lshl_b32 s14, s12, 10")
    a("s_lshl_b32 s15, s13, 8")
    a("s_add_u32 s14, s14, s15")
    a("v_add3_u32 v3, v3, v8, s14")
    a(f"s_add_u32 s28, s4, 0x{WS_BPART:x}")
    a("s_addc_u32 s29, s5, 0")
    OP = 64
    for i in range(16):
        a(f"global_load_dwordx2 {vr(OP + 2 * i, 2)}, v3, s[28:29]{SC}")
        if i < 15:
            a("v_add_u32 v3, 0x8000, v3")
    a("s_waitcnt vmcnt(16)")
    a("v_mov_b32 v9, v4")
    dpp_allreduce64(a, "v_max_f32", 9, 36)
    a("v_sub_f32 v10, v4, v9")
    a("v_mul_f32 v10, s21, v10")
    a("v_exp_f32 v10, v10")
    a("s_nop 1")
    a("v_mul_f32 v11, v10, v5")
    dpp_allreduce64(a, "v_add_f32", 11, 36)
    a("v_rcp_f32 v11, v11")
    a("s_nop 1")
    a("v_mul_f32 v10, v10, v11")
    a("s_lshl_b32 s14, s13, 20")
    a("s_lshl_b32 s15, s12, 8")
    a("s_add_u32 s14, s14, s15")
    a("v_lshlrev_b32 v3, 16, v1")
    a("v_lshlrev_b32 v8, 4, v2")
    a("v_add3_u32 v3, v3, v8, s14")
    UV = 128
    for i in range(8):
        a(f"global_load_dwordx4 {vr(UV + 4 * i)}, v3, s[6:7]")
        if i < 7:
            a("v_add_u32 v3, 0x2000, v3")
    stamp(a, 1)
    a("s_lshl_b32 s14, s12, 17")
    a("v_lshlrev_b32 v62, 15, v7")
    a("v_lshlrev_b32 v8, 4, v6")
    a("v_add3_u32 v62, v62, v8, s14")
    for i in range(24):
        a(f"global_load_dwordx4 {vr(160 + 4 * i)}, v62, s[8:9]")
        a("v_add_u32 v62, 0x400, v62")
    a("v_lshlrev_b32 v12, 2, v0")
    a("s_and_saveexec_b64 s[16:17], vcc")
    a("ds_write_b32 v12, v10")
    a("s_mov_b64 exec, s[16:17]")
    a("s_waitcnt lgkmcnt(0)")
    a("s_barrier")
    stamp(a, 2)
    WO = 160
    a("v_lshrrev_b32 v12, 5, v0")
    a("v_lshlrev_b32 v12, 6, v12")
    for k in range(4):
        a(f"ds_read_b128 {vr(32 + 4 * k)}, v12 offset:{k * 16}")
    a("s_waitcnt vmcnt(32) lgkmcnt(0)")
    for r in range(4):
        a(f"v_mov_b32 v{16 + r}, 0")
    for i in range(16):
        for pq in range(2):
            a(f"v_lshlrev_b32 v{48 + 2 * pq}, 16, v{OP + 2 * i + pq}")
            a(f"v_and_b32 v{49 + 2 * pq}, 0x{HIMASK:x}, v{OP + 2 * i + pq}")
        for r in range(4):
            a(f"v_fmac_f32 v{16 + r}, v{48 + r}, v{32 + i}")
    a("v_lshlrev_b32 v12, 4, v0")
    a(f"ds_write_b128 v12, {vr(16)} offset:1024")
    a("s_waitcnt lgkmcnt(0)")
    a("s_barrier")
    a("v_lshrrev_b32 v12, 7, v0")
    a("v_lshlrev_b32 v12, 11, v12")
    a("v_and_b32 v13, 127, v0")
    a("v_lshlrev_b32 v13, 2, v13")
    a("v_add_u32 v12, v12, v13")
    for jq in range(4):
        a(f"ds_read_b32 v{32 + jq}, v12 offset:{1024 + jq * 512}")
    a("s_waitcnt lgkmcnt(0)")
    a("v_add_f32 v32, v32, v33")
    a("v_add_f32 v34, v34, v35")
    a("v_add_f32 v32, v32, v34")
    a("v_lshlrev_b32 v12, 2, v0")
    a("ds_write_b32 v12, v32 offset:8192")
    a("s_waitcnt lgkmcnt(0)")
    a("s_barrier")
    stamp(a, 3)
    a("v_lshlrev_b32 v12, 5, v1")
    for b in range(2):
        for k in range(2):
            a(f"ds_read_b128 {vr(32 + (b * 2 + k) * 4)}, v12 offset:{8192 + b * 512 + k * 16}")
    for r in range(16, 32):
        a(f"v_mov_b32 v{r}, 0")
    a("s_waitcnt vmcnt(24) lgkmcnt(0)")
    for i in range(8):
        fma16(a, UV + 4 * i, 32 + i, 40 + i, 16, 48)
    a("v_lshlrev_b32 v12, 10, v1")
    a("v_lshlrev_b32 v13, 5, v2")
    a("v_add_u32 v12, v12, v13")
    a(f"ds_write_b128 v12, {vr(16)} offset:16384")
    a(f"ds_write_b128 v12, {vr(20)} offset:16400")
    a(f"ds_write_b128 v12, {vr(24)} offset:16896")
    a(f"ds_write_b128 v12, {vr(28)} offset:16912")
    for i in range(24, 32):
        a(f"global_load_dwordx4 {vr(64 + 4 * (i - 24))}, v62, s[8:9]")
        if i < 31:
            a("v_add_u32 v62, 0x400, v62")
    a("s_waitcnt lgkmcnt(0)")
    a("s_barrier")
    a("v_lshlrev_b32 v12, 2, v0")
    for rg in range(16):
        a(f"ds_read_b32 v{32 + rg}, v12 offset:{16384 + rg * 1024}")
    a("s_waitcnt lgkmcnt(0)")
    for rg in range(1, 16):
        a(f"v_add_f32 v32, v32, v{32 + rg}")
    a("ds_write_b32 v12, v32 offset:32768")
    a("s_waitcnt lgkmcnt(0)")
    a("s_barrier")
    stamp(a, 4)
    a("v_lshlrev_b32 v12, 7, v7")
    MUL = 96
    for b in range(2):
        for k in range(8):
            a(f"ds_read_b128 {vr(MUL + b * 32 + 4 * k)}, v12 offset:{32768 + b * 512 + k * 16}")
    for r in range(16, 32):
        a(f"v_mov_b32 v{r}, 0")
    a("s_waitcnt vmcnt(0) lgkmcnt(0)")
    for i in range(32):
        src = WO + 4 * i if i < 24 else 64 + 4 * (i - 24)
        fma16(a, src, MUL + i, MUL + 32 + i, 16, 48)
    stamp(a, 5)
    a("s_barrier")
    a("s_add_u32 s15, s2, 128")
    final_out_reduce(a, 15, 16)
    a("s_branch K3_END")
    a.label("K3_A")
    a(f"s_load_dwordx2 s[8:9], s[0:1], {KA['A_wo']}")
    a("s_sub_u32 s11, s2, 128")
    a("s_and_b32 s12, s11, 31")
    a("s_lshr_b32 s13, s11, 5")
    a("s_lshr_b32 s14, s12, 2")
    a("s_and_b32 s15, s12, 3")
    a("v_lshrrev_b32 v1, 5, v0")
    a("v_and_b32 v2, 31, v0")
    a("v_lshlrev_b32 v3, 8, v1")
    a("v_add_u32 v3, v3, v2")
    a("s_lshl_b32 s18, s14, 5")
    a("v_add_u32 v3, s18, v3")
    a("v_lshlrev_b32 v4, 5, v3")
    a("s_lshl_b32 s19, s15, 3")
    a(f"s_add_u32 s19, s19, 0x{WS_ASTAT:x}")
    a("v_add_u32 v4, s19, v4")
    a("v_cmp_gt_u32 vcc, 64, v0")
    a("s_waitcnt lgkmcnt(0)")
    a("s_and_saveexec_b64 s[16:17], vcc")
    a("global_load_dwordx2 v[4:5], v4, s[4:5]" + SC)
    a("s_mov_b64 exec, s[16:17]")
    a("v_lshrrev_b32 v1, 7, v0")
    a("v_bfe_u32 v2, v0, 2, 5")
    a("v_lshlrev_b32 v3, 8, v1")
    a("v_add_u32 v3, v3, v2")
    a("v_add_u32 v3, s18, v3")
    a("v_lshlrev_b32 v3, 11, v3")
    a("v_and_b32 v8, 3, v0")
    a("v_lshlrev_b32 v8, 5, v8")
    a("s_lshl_b32 s19, s15, 9")
    a("s_lshl_b32 s22, s13, 7")
    a("s_add_u32 s19, s19, s22")
    a(f"s_add_u32 s19, s19, 0x{WS_APART:x}")
    a("v_add3_u32 v3, v3, v8, s19")
    a(f"global_load_dwordx4 {vr(64)}, v3, s[4:5]{SC}")
    a(f"global_load_dwordx4 {vr(68)}, v3, s[4:5] offset:16{SC}")
    a("s_lshl_b32 s22, s12, 17")
    a("s_lshl_b32 s23, s13, 15")
    a("s_add_u32 s22, s22, s23")
    a("v_lshlrev_b32 v3, 13, v7")
    a("v_lshlrev_b32 v8, 4, v6")
    a("v_add3_u32 v3, v3, v8, s22")
    for i in range(8):
        a(f"global_load_dwordx4 {vr(96 + 4 * i)}, v3, s[8:9] offset:{(i % 4) * 1024}")
        if i == 3:
            a("v_add_u32 v3, 0x1000, v3")
    a("s_waitcnt vmcnt(10)")
    make_xor_addrs(a, 6, [1, 2, 4, 8, 16], 56)
    a("v_mov_b32 v9, v4")
    bperm_reduce(a, "v_max_f32", 9, range(56, 61), 10)
    a("v_sub_f32 v10, v4, v9")
    a("v_mul_f32 v10, s21, v10")
    a("v_exp_f32 v10, v10")
    a("s_nop 1")
    a("v_mul_f32 v11, v10, v5")
    bperm_reduce(a, "v_add_f32", 11, range(56, 61), 12)
    a("v_rcp_f32 v11, v11")
    a("s_nop 1")
    a("v_mul_f32 v10, v10, v11")
    a("v_lshlrev_b32 v12, 2, v0")
    a("s_and_saveexec_b64 s[16:17], vcc")
    a("ds_write_b32 v12, v10")
    a("s_mov_b64 exec, s[16:17]")
    a("s_waitcnt lgkmcnt(0)")
    a("s_barrier")
    a("v_lshrrev_b32 v12, 2, v0")
    a("v_lshlrev_b32 v12, 2, v12")
    a("ds_read_b32 v13, v12")
    a("s_waitcnt vmcnt(8) lgkmcnt(0)")
    for r in range(8):
        a(f"v_mul_f32 v{64 + r}, v{64 + r}, v13")
    a("v_lshlrev_b32 v12, 5, v0")
    a(f"ds_write_b128 v12, {vr(64)} offset:1024")
    a(f"ds_write_b128 v12, {vr(68)} offset:1040")
    a("s_waitcnt lgkmcnt(0)")
    a("s_barrier")
    a("v_lshrrev_b32 v12, 5, v0")
    a("v_lshlrev_b32 v12, 12, v12")
    a("v_and_b32 v13, 31, v0")
    a("v_lshlrev_b32 v13, 2, v13")
    a("v_add_u32 v12, v12, v13")
    a("s_and_saveexec_b64 s[16:17], vcc")
    a("s_cbranch_execz K3A_SKIP")
    for sp in range(32):
        a(f"ds_read_b32 v{128 + sp}, v12 offset:{1024 + sp * 128}")
    a("s_waitcnt lgkmcnt(0)")
    for sp in range(1, 32):
        a(f"v_add_f32 v128, v128, v{128 + sp}")
    bf16_round_pair(a, 128, 129, 130)
    a("v_lshlrev_b32 v13, 2, v0")
    a("ds_write_b32 v13, v128 offset:16384")
    a.label("K3A_SKIP")
    a("s_mov_b64 exec, s[16:17]")
    a("s_waitcnt lgkmcnt(0)")
    a("s_barrier")
    a("v_lshlrev_b32 v12, 5, v7")
    for b in range(2):
        for k in range(2):
            a(f"ds_read_b128 {vr(32 + (b * 2 + k) * 4)}, v12 offset:{16384 + b * 128 + k * 16}")
    for r in range(16, 32):
        a(f"v_mov_b32 v{r}, 0")
    a("s_waitcnt vmcnt(0) lgkmcnt(0)")
    for i in range(8):
        fma16(a, 96 + 4 * i, 32 + i, 40 + i, 16, 48)
    a("s_barrier")
    final_out_reduce(a, 11, 16)
    a.label("K3_END")
    if FUSED:
        return
    stamp(a, 7)
    stamp_flush(a, 2)
    a.label("K3_EXIT")
    a("s_endpgm")


def gen_k4(a):
    kernel_header(a, "k4fin_kernel")
    a("s_cmp_ge_u32 s2, 16")
    a("s_cbranch_scc1 K4_EXIT2" if FUSED else "s_cbranch_scc1 K4_EXIT")
    if not FUSED:
        stamp_init(a)
        a(f"s_load_dwordx2 s[4:5], s[0:1], {KA['ws']}")
    a(f"s_load_dwordx2 s[6:7], s[0:1], {KA['out']}")
    a("s_lshr_b32 s10, s2, 3")
    a("s_bfe_u32 s11, s2, 0x10002")
    a("s_and_b32 s12, s2, 3")
    a("v_lshrrev_b32 v1, 5, v0")
    a("v_and_b32 v2, 31, v0")
    a("s_lshl_b32 s13, s10, 19")
    a("s_lshl_b32 s14, s11, 11")
    a("s_add_u32 s13, s13, s14")
    a("s_lshl_b32 s14, s12, 9")
    a("s_add_u32 s13, s13, s14")
    a(f"s_add_u32 s13, s13, 0x{WS_OUTP:x}")
    a("v_lshlrev_b32 v3, 16, v1")
    a("v_lshlrev_b32 v4, 4, v2")
    a("v_add3_u32 v3, v3, v4, s13")
    a("s_waitcnt lgkmcnt(0)")
    for i in range(16):
        a(f"global_load_dwordx4 {vr(16 + 4 * i)}, v3, s[4:5]{SC}")
        if i < 15:
            a("v_add_u32 v3, 0x1000, v3")
    a("s_waitcnt vmcnt(0)")
    for i in range(1, 16):
        for r in range(4):
            a(f"v_add_f32 v{16 + r}, v{16 + r}, v{16 + 4 * i + r}")
    a("v_lshlrev_b32 v5, 4, v0")
    a(f"ds_write_b128 v5, {vr(16)}")
    a("s_waitcnt lgkmcnt(0)")
    a("s_barrier")
    a("v_cmp_gt_u32 vcc, 32, v0")
    a("s_nop 1")
    a("s_and_saveexec_b64 s[16:17], vcc")
    a("s_cbranch_execz K4_SKIP")
    for tg in range(8):
        a(f"ds_read_b128 {vr(16 + 4 * tg)}, v5 offset:{tg * 512}")
    a("s_waitcnt lgkmcnt(0)")
    for tg in range(1, 8):
        for r in range(4):
            a(f"v_add_f32 v{16 + r}, v{16 + r}, v{16 + 4 * tg + r}")
    a("v_cvt_pk_bf16_f32 v8, v16, v17")
    a("v_cvt_pk_bf16_f32 v9, v18, v19")
    a("s_lshl_b32 s13, s11, 11")
    a("s_lshl_b32 s14, s10, 10")
    a("s_add_u32 s13, s13, s14")
    a("s_lshl_b32 s14, s12, 8")
    a("s_add_u32 s13, s13, s14")
    a("v_lshlrev_b32 v6, 3, v2")
    a("v_add_u32 v6, s13, v6")
    a("global_store_dwordx2 v6, v[8:9], s[6:7]")
    a.label("K4_SKIP")
    a("s_mov_b64 exec, s[16:17]")
    a.label("K4_END")
    a.label("K4_EXIT2")
    stamp_slot(a, 7)
    stamp_flush(a, 3)
    a.label("K4_EXIT")
    a("s_endpgm")


def grid_arrive(a, idx):
    L = f"GB{idx}"
    a("s_waitcnt vmcnt(0) lgkmcnt(0)")
    a("s_barrier")
    a("v_cmp_eq_u32 vcc, 0, v0")
    a("v_mov_b32 v1, 1")
    a(f"v_mov_b32 v2, {idx * 64}")
    a("s_nop 1")
    a("s_and_saveexec_b64 s[16:17], vcc")
    a(f"s_cbranch_execz {L}_A")
    a("global_atomic_add v2, v1, s[30:31] sc1")
    a.label(f"{L}_A")
    a("s_mov_b64 exec, s[16:17]")


def grid_wait(a, idx, target=256):
    L = f"GB{idx}"
    a("v_cmp_eq_u32 vcc, 0, v0")
    a(f"v_mov_b32 v2, {idx * 64}")
    a("s_nop 1")
    a("s_and_saveexec_b64 s[16:17], vcc")
    a(f"s_cbranch_execz {L}_W")
    a("s_mov_b32 s18, 0")
    a.label(f"{L}_P")
    a("global_load_dword v3, v2, s[30:31] sc1")
    a("s_waitcnt vmcnt(0)")
    a("v_readfirstlane_b32 s19, v3")
    a("s_add_u32 s18, s18, 1")
    a(f"s_cmp_ge_u32 s19, {target}")
    a(f"s_cbranch_scc1 {L}_W")
    a("s_sleep 2")
    a("s_cmp_lt_u32 s18, 0x400000")
    a(f"s_cbranch_scc1 {L}_P")
    a.label(f"{L}_W")
    a("s_mov_b64 exec, s[16:17]")
    a("s_barrier")


def grid_barrier(a, idx, target=256, drain=0):
    grid_arrive(a, idx)
    grid_wait(a, idx, target)


HEADER = open("cdna_kernels/" + NAME + ".s.ref").read().split("; @launch")[0]


def main_fused(out):
    a = Asm()
    name = NAME + "_kernel"
    a.raw(f".globl {name}")
    a.raw(".p2align 8")
    a.raw(f".type {name},@function")
    a.label(name)
    a("s_cmp_ge_u32 s2, 256")
    a("s_cbranch_scc1 K4_EXIT")
    a(f"s_load_dwordx2 s[4:5], s[0:1], {KA['ws']}")
    a(f"s_load_dwordx2 s[30:31], s[0:1], {KA['dbg']}")
    stamp_init(a)
    CUR_PHASE[0] = 1
    gen_k1(a)
    stamp_slot(a, 3)
    grid_barrier(a, 0)
    stamp_slot(a, 4)
    CUR_PHASE[0] = 2
    gen_k2(a)
    stamp_slot(a, 8)
    grid_barrier(a, 1)
    stamp_slot(a, 9)
    CUR_PHASE[0] = 3
    gen_k3(a)
    stamp_slot(a, 13)
    grid_barrier(a, 2)
    stamp_slot(a, 14)
    CUR_PHASE[0] = 4
    gen_k4(a)
    txt = HEADER
    txt += f"; @launch grid=(256,1,1) block=(256,1,1) lds={K2_LDS}\n"
    txt += '.amdgcn_target "amdgcn-amd-amdhsa--gfx950"\n.text\n'
    txt += a.text()
    txt += '.section .rodata,"a"\n.p2align 6\n'
    txt += descriptor(name, 256)
    open(out, "w").write(txt)


def main3(out):
    global FUSED
    global STAMP
    a = Asm()
    FUSED = True
    name = "k12_kernel"
    a.raw(f".globl {name}")
    a.raw(".p2align 8")
    a.raw(f".type {name},@function")
    a.label(name)
    a("s_cmp_ge_u32 s2, 256")
    a("s_cbranch_scc1 K2_EXIT")
    a(f"s_load_dwordx2 s[4:5], s[0:1], {KA['ws']}")
    a(f"s_load_dwordx2 s[30:31], s[0:1], {KA['dbg']}")
    stamp_init(a)
    CUR_PHASE[0] = 1
    gen_k1(a)
    stamp_slot(a, 3)
    CUR_PHASE[0] = 2
    gen_k2(a)
    stamp_slot(a, 8)
    stamp_flush(a, 0)
    a.label("K2_EXIT")
    a("s_endpgm")
    FUSED = False
    _st = STAMP
    STAMP = False
    gen_k3(a)
    gen_k4(a)
    STAMP = _st
    txt = HEADER
    txt += f"; @launch kernel=k12_kernel grid=(256,1,1) block=(256,1,1) lds={K2_LDS}\n"
    txt += "; @launch kernel=k3prj_kernel grid=(256,1,1) block=(256,1,1) lds=36864\n"
    txt += "; @launch kernel=k4fin_kernel grid=(16,1,1) block=(256,1,1) lds=4096\n"
    txt += '.amdgcn_target "amdgcn-amd-amdhsa--gfx950"\n.text\n'
    txt += a.text()
    txt += '.section .rodata,"a"\n.p2align 6\n'
    txt += descriptor("k12_kernel", 384).replace(".amdhsa_accum_offset 384", ".amdhsa_accum_offset 256")
    txt += descriptor("k3prj_kernel", 256)
    txt += descriptor("k4fin_kernel", 256)
    open(out, "w").write(txt)


def main(out):
    global FUSED, SCQ
    FUSED = False
    SCQ = ""
    a = Asm()
    CUR_PHASE[0] = 1
    gen_k1(a)
    CUR_PHASE[0] = 2
    gen_k2(a)
    CUR_PHASE[0] = 3
    gen_k3(a)
    CUR_PHASE[0] = 4
    gen_k4(a)
    txt = HEADER
    txt += "; @launch kernel=k1q_kernel grid=(192,1,1) block=(256,1,1) lds=20480\n"
    txt += f"; @launch kernel=k2att_kernel grid=(256,1,1) block=(256,1,1) lds={K2_LDS}\n"
    txt += "; @launch kernel=k3prj_kernel grid=(256,1,1) block=(256,1,1) lds=36864\n"
    txt += "; @launch kernel=k4fin_kernel grid=(16,1,1) block=(256,1,1) lds=4096\n"
    txt += '.amdgcn_target "amdgcn-amd-amdhsa--gfx950"\n.text\n'
    txt += a.text()
    txt += '.section .rodata,"a"\n.p2align 6\n'
    for k in ["k1q_kernel", "k2att_kernel", "k3prj_kernel", "k4fin_kernel"]:
        if k == "k2att_kernel":
            txt += descriptor(k, 384).replace(".amdhsa_accum_offset 384", ".amdhsa_accum_offset 256")
        else:
            txt += descriptor(k, 256)
    open(out, "w").write(txt)


if __name__ == "__main__":
    if len(sys.argv) > 2 and sys.argv[2] == "stamp":
        STAMP = True
    main(sys.argv[1] if len(sys.argv) > 1 else "cdna_kernels/" + NAME + ".s")
```
